```python
import torch

def _softmax(x, axis=-1):
    return torch.softmax(x, dim=axis)
def _gelu(x):
    return torch.nn.functional.gelu(x, approximate="tanh")
def _silu(x):
    return torch.nn.functional.silu(x)
def _sigmoid(x):
    return torch.sigmoid(x)
def _layernorm(x, axis=-1, eps=1e-5):
    m = x.mean(dim=axis, keepdim=True)
    v = x.var(dim=axis, keepdim=True, unbiased=False)
    return (x - m) / torch.sqrt(v + eps)
def _scatter_add(tgt, idx, src, axis=0):
    return tgt.clone().index_add_(axis, idx, src)
def _segment_sum(src, seg, n):
    out = torch.zeros((n,) + src.shape[1:], dtype=src.dtype)
    return out.index_add_(0, seg, src)
def _pad(x, pw):
    flat = tuple(v for pair in reversed(pw) for v in pair)
    return torch.nn.functional.pad(x, flat)

kernel_name = 'parallel_sum__grouped_kv_mqa__dense_activation_gelu__prompt'

def setup_inputs():

    _w = (lambda a: (lambda t: t.to(torch.bfloat16) if t.is_floating_point() else t)(torch.as_tensor(a)))
    def _A_setup():
        B, S, D, H = 1, 2048, 640, 32
        Dh = D // H
        return {
            "x": _w((lambda *s: torch.randn(*s, dtype=torch.bfloat16) * 0.05)(B, S, D)),
            "wq": _w((lambda *s: torch.randn(*s, dtype=torch.bfloat16) * 0.1)(D, H * Dh)),
            "wk": _w((lambda *s: torch.randn(*s, dtype=torch.bfloat16) * 0.1)(D, Dh)),
            "wv": _w((lambda *s: torch.randn(*s, dtype=torch.bfloat16) * 0.05)(D, Dh)),
            "wo": _w((lambda *s: torch.randn(*s, dtype=torch.bfloat16) * 0.05)(H * Dh, D)),
        }
    _A_in = _A_setup()

    def _B_setup():
        B, S, D, F = 1, 2048, 640, 1728
        return {
            "x": _w((lambda *s: torch.randn(*s, dtype=torch.bfloat16) * 0.05)(B, S, D)),
            "w1": _w((lambda *s: torch.randn(*s, dtype=torch.bfloat16) * 1.6)(D, F) * (D ** -0.5)),
            "b1": _w((lambda *s: torch.randn(*s, dtype=torch.bfloat16) * 1.6)(F) * 0.01),
            "w2": _w((lambda *s: torch.randn(*s, dtype=torch.bfloat16) * 1.6)(F, D) * (F ** -0.5)),
            "b2": _w((lambda *s: torch.randn(*s, dtype=torch.bfloat16) * 0.8)(D) * 0.01),
        }
    _B_in = _B_setup()

    return {
        "A_x": _A_in["x"],
        "A_wq": _A_in["wq"],
        "A_wk": _A_in["wk"],
        "A_wv": _A_in["wv"],
        "A_wo": _A_in["wo"],
        "B_x": _B_in["x"],
        "B_w1": _B_in["w1"],
        "B_b1": _B_in["b1"],
        "B_w2": _B_in["w2"],
        "B_b2": _B_in["b2"],
    }

def reference(A_x, A_wq, A_wk, A_wv, A_wo, B_x, B_w1, B_b1, B_w2, B_b2):
    def _A_ref(x, wq, wk, wv, wo):
        B, S, D = x.shape
        H = 32
        Dh = D // H
        q = (lambda x, *d: x.permute(*d))((x @ wq).reshape(B, S, H, Dh), 0, 2, 1, 3)
        k = x @ wk
        v = x @ wv
        scores = torch.einsum("bhqd,bkd->bhqk", q, k) * (Dh ** -0.5)
        p = _softmax(scores, axis=-1)
        o = torch.einsum("bhqk,bkd->bhqd", p, v)
        return (lambda x, *d: x.permute(*d))(o, 0, 2, 1, 3).reshape(B, S, H * Dh) @ wo

    def _B_ref(x, w1, b1, w2, b2):
        h = torch.einsum("bsd,df->bsf", x, w1) + b1
        h = _gelu(h)
        return torch.einsum("bsf,fd->bsd", h, w2) + b2

    x = A_x
    xn = _layernorm(x, axis=-1)
    return x + _A_ref(xn, A_wq, A_wk, A_wv, A_wo) + _B_ref(xn, B_w1, B_b1, B_w2, B_b2)
```

```python
import sys
EXTRA = int(sys.argv[1]) if len(sys.argv) > 1 else 0
M=2048; D=640; F=1728
XN=0; Q=XN+M*D*4; KK=Q+M*D*4; V=KK+M*20*4; H=V+M*20*4; O=H+M*F*4
out=[]
launch=[]
def hdr(name):
    return f""".globl {name}
.p2align 8
.type {name},@function
{name}:
"""
def desc(name, nv=128, ns=96):
    return f""".amdhsa_kernel {name}
  .amdhsa_next_free_vgpr {nv}
  .amdhsa_next_free_sgpr {ns}
  .amdhsa_accum_offset {nv}
  .amdhsa_group_segment_fixed_size 0
  .amdhsa_kernarg_size 104
  .amdhsa_user_sgpr_count 2
  .amdhsa_user_sgpr_kernarg_segment_ptr 1
  .amdhsa_system_sgpr_workgroup_id_x 1
.end_amdhsa_kernel
"""
def srd(d, lo, hi, size):
    return f"""    s_mov_b32 s{d}, s{lo}
    s_and_b32 s{d+1}, s{hi}, 0xffff
    s_mov_b32 s{d+2}, {size}
    s_mov_b32 s{d+3}, 0x20000
"""
kernels=[]
def k_ln():
    name="ln_kernel"
    b=hdr(name)
    b+=f"""    s_cmp_ge_u32 s2, {M}
    s_cbranch_scc1 L_ln_end
    s_load_dwordx2 s[4:5], s[0:1], 0
    s_load_dwordx2 s[6:7], s[0:1], 96
    s_waitcnt lgkmcnt(0)
"""
    b+=srd(8,4,5,M*D*2)+srd(12,6,7,O+M*D*4)
    b+=f"""    s_mul_i32 s16, s2, {D*2}
    v_lshlrev_b32 v1, 1, v0
    v_add_u32 v1, s16, v1
"""
    for i in range(10):
        b+=f"    buffer_load_ushort v{10+i}, v1, s[8:11], 0 offen offset:{128*i}\n"
    b+="    s_waitcnt vmcnt(0)\n"
    for i in range(10):
        b+=f"    v_lshlrev_b32 v{10+i}, 16, v{10+i}\n"
    b+="    v_mov_b32 v2, 0\n"
    for i in range(10):
        b+=f"    v_add_f32 v2, v2, v{10+i}\n"
    def red(r):
        s=""
        for m in (1,2,4,8,16,32):
            s+=f"""    v_xor_b32 v4, {m}, v0
    v_lshlrev_b32 v4, 2, v4
    ds_bpermute_b32 v5, v4, v{r}
    s_waitcnt lgkmcnt(0)
    v_add_f32 v{r}, v{r}, v5
"""
        return s
    b+=red(2)
    b+=f"""    s_mov_b32 s17, 0x{int.from_bytes(__import__('struct').pack('<f',1.0/640),'little'):08x}
    v_mul_f32 v2, s17, v2
    v_mov_b32 v3, 0
"""
    for i in range(10):
        b+=f"    v_sub_f32 v{10+i}, v{10+i}, v2\n    v_fmac_f32 v3, v{10+i}, v{10+i}\n"
    b+=red(3)
    b+=f"""    v_mul_f32 v3, s17, v3
    v_add_f32 v3, 0x3727c5ac, v3
    v_rsq_f32 v3, v3
    s_nop 1
"""
    b+=f"""    s_mul_i32 s16, s2, {D*4}
    s_add_u32 s16, s16, {XN}
    v_lshlrev_b32 v1, 2, v0
    v_add_u32 v1, s16, v1
"""
    for i in range(10):
        b+=f"    v_mul_f32 v{10+i}, v{10+i}, v3\n"
        b+=f"    v_cvt_pk_bf16_f32 v{10+i}, v{10+i}, v{10+i}\n    v_lshlrev_b32 v{10+i}, 16, v{10+i}\n"
        b+=f"    buffer_store_dword v{10+i}, v1, s[12:15], 0 offen offset:{256*i}\n"
    b+="    s_waitcnt vmcnt(0)\nL_ln_end:\n    s_endpgm\n"
    kernels.append((name,b)); launch.append((name,M,64))

def k_gemm(name, Aoff, K, Bptr, N, Coff, ldc, bias=None, gelu=False, A2=None, final=False):
    NB=(N+63)//64
    b=hdr(name)
    L=name
    magic=(2**32+NB-1)//NB
    b+=f"""    s_cmp_ge_u32 s2, {M*NB}
    s_cbranch_scc1 L_{L}_end
    s_load_dwordx2 s[6:7], s[0:1], 96
    s_load_dwordx2 s[4:5], s[0:1], {Bptr}
"""
    if A2: b+=f"    s_load_dwordx2 s[30:31], s[0:1], {A2[2]}\n"
    if bias is not None: b+=f"    s_load_dwordx2 s[32:33], s[0:1], {bias}\n"
    if final: b+=f"    s_load_dwordx2 s[34:35], s[0:1], 0\n    s_load_dwordx2 s[36:37], s[0:1], 80\n"
    if NB==1: b+="    s_mov_b32 s17, s2\n"
    else: b+=f"    s_mov_b32 s16, {magic}\n    s_mul_hi_u32 s17, s2, s16\n"
    b+=f"""
    s_mul_i32 s18, s17, {NB}
    s_sub_u32 s18, s2, s18         ; nb
    s_lshl_b32 s18, s18, 6
    v_add_u32 v1, s18, v0          ; n
    v_lshlrev_b32 v2, 1, v1        ; n*2
    v_mov_b32 v3, 0
    s_waitcnt lgkmcnt(0)
"""
    def seg(Aoff,K,blo,bhi,tag):
        s=srd(8,blo,bhi,K*N*2)
        s+=f"""    s_mul_i32 s19, s17, {K*4}
    s_add_u32 s20, s6, s19
    s_addc_u32 s21, s7, 0
    s_add_u32 s20, s20, {Aoff}
    s_addc_u32 s21, s21, 0
    s_mov_b32 s22, 0
    s_mov_b32 s23, 0
L_{L}_{tag}:
    s_load_dwordx8 s[40:47], s[20:21], 0
"""
        for i in range(8):
            s+=f"    buffer_load_ushort v{10+i}, v2, s[8:11], s23 offen\n    s_add_u32 s23, s23, {N*2}\n"
        s+="    s_waitcnt vmcnt(0) lgkmcnt(0)\n"
        for i in range(8):
            s+=f"    v_lshlrev_b32 v{10+i}, 16, v{10+i}\n    v_fmac_f32 v3, s{40+i}, v{10+i}\n"
        s+=f"""    s_add_u32 s20, s20, 32
    s_addc_u32 s21, s21, 0
    s_add_u32 s22, s22, 8
    s_cmp_lt_u32 s22, {K}
    s_cbranch_scc1 L_{L}_{tag}
"""
        return s
    b+=seg(Aoff,K,4,5,"a")
    if A2: b+=seg(A2[0],A2[1],30,31,"b")
    if bias is not None:
        b+=srd(8,32,33,N*2)
        b+="""    buffer_load_ushort v10, v2, s[8:11], 0 offen
    s_waitcnt vmcnt(0)
    v_lshlrev_b32 v10, 16, v10
    v_add_f32 v3, v3, v10
"""
    if gelu:
        import math,struct
        f=lambda x: "0x%08x"%int.from_bytes(struct.pack('<f',x),'little')
        c1=-2*math.sqrt(2/math.pi)*math.log2(math.e); c2=c1*0.044715
        b+=f"""    v_mul_f32 v4, v3, v3
    v_mov_b32 v5, {f(c1)}
    v_mov_b32 v6, {f(c2)}
    v_fma_f32 v4, v4, v6, v5
    v_mul_f32 v4, v4, v3
    v_exp_f32 v4, v4
    s_nop 1
    v_add_f32 v4, 1.0, v4
    v_rcp_f32 v4, v4
    s_nop 1
    v_mul_f32 v3, v3, v4
"""
    if final:
        b+=srd(8,34,35,M*D*2)+srd(12,36,37,M*D*2)
        b+=f"""    s_mul_i32 s19, s17, {D*2}
    v_add_u32 v2, s19, v2
    buffer_load_ushort v10, v2, s[8:11], 0 offen
    s_waitcnt vmcnt(0)
    v_lshlrev_b32 v10, 16, v10
    v_add_f32 v3, v3, v10
    v_cvt_pk_bf16_f32 v3, v3, v3
    buffer_store_short v3, v2, s[12:15], 0 offen
"""
    else:
        b+=srd(12,6,7,O+M*D*4)
        b+=f"""    v_cvt_pk_bf16_f32 v3, v3, v3
    v_lshlrev_b32 v3, 16, v3
    s_mul_i32 s19, s17, {ldc*4}
    s_add_u32 s19, s19, {Coff}
    v_lshlrev_b32 v4, 2, v1
    v_add_u32 v4, s19, v4
    v_cmp_gt_u32 vcc, {N}, v1
    s_and_saveexec_b64 s[24:25], vcc
    s_cbranch_execz L_{L}_end
    buffer_store_dword v3, v4, s[12:15], 0 offen
"""
    b+=f"    s_waitcnt vmcnt(0)\nL_{L}_end:\n    s_endpgm\n"
    kernels.append((name,b)); launch.append((name,M*NB,64))

def k_attn():
    import math,struct
    f=lambda x: "0x%08x"%int.from_bytes(struct.pack('<f',x),'little')
    name="attn_kernel"
    b=hdr(name)
    b+=f"""    s_cmp_ge_u32 s2, 1024
    s_cbranch_scc1 L_at_end
    s_load_dwordx2 s[6:7], s[0:1], 96
    s_lshr_b32 s16, s2, 5      ; head
    s_and_b32 s17, s2, 31
    s_lshl_b32 s17, s17, 6
    v_add_u32 v1, s17, v0      ; token
    v_mul_u32_u24 v2, {D*4}, v1
    s_mul_i32 s18, s16, 80
    v_add_u32 v2, s18, v2
    s_waitcnt lgkmcnt(0)
"""
    b+=srd(12,6,7,O+M*D*4)
    b+=f"    v_add_u32 v3, {Q}, v2\n"
    for i in range(20):
        b+=f"    buffer_load_dword v{10+i}, v3, s[12:15], 0 offen offset:{4*i}\n"
    b+=f"    s_waitcnt vmcnt(0)\n    s_mov_b32 s19, {f(20**-0.5*math.log2(math.e))}\n"
    for i in range(20):
        b+=f"    v_mul_f32 v{10+i}, s19, v{10+i}\n"
    def dot():
        s="    v_mul_f32 v4, s40, v10\n"
        for i in range(1,20):
            s+=f"    v_fmac_f32 v4, s{40+i}, v{10+i}\n"
        return s
    b+=f"""    v_mov_b32 v5, 0xff800000
    s_add_u32 s20, s6, {KK}
    s_addc_u32 s21, s7, 0
    s_mov_b32 s22, 0
L_at_p1:
    s_load_dwordx16 s[40:55], s[20:21], 0
    s_load_dwordx4 s[56:59], s[20:21], 64
    s_waitcnt lgkmcnt(0)
"""+dot()+f"""    v_max_f32 v5, v5, v4
    s_add_u32 s20, s20, 80
    s_addc_u32 s21, s21, 0
    s_add_u32 s22, s22, 1
    s_cmp_lt_u32 s22, {M}
    s_cbranch_scc1 L_at_p1
    v_mov_b32 v6, 0
"""
    for i in range(20): b+=f"    v_mov_b32 v{40+i}, 0\n"
    b+=f"""    s_add_u32 s20, s6, {KK}
    s_addc_u32 s21, s7, 0
    s_add_u32 s24, s6, {V}
    s_addc_u32 s25, s7, 0
    s_mov_b32 s22, 0
L_at_p2:
    s_load_dwordx16 s[40:55], s[20:21], 0
    s_load_dwordx4 s[56:59], s[20:21], 64
    s_load_dwordx16 s[60:75], s[24:25], 0
    s_load_dwordx4 s[76:79], s[24:25], 64
    s_waitcnt lgkmcnt(0)
"""+dot()+"""    v_sub_f32 v4, v4, v5
    v_exp_f32 v4, v4
    s_nop 1
    v_add_f32 v6, v6, v4
"""
    for i in range(20): b+=f"    v_fmac_f32 v{40+i}, s{60+i}, v4\n"
    b+=f"""    s_add_u32 s20, s20, 80
    s_addc_u32 s21, s21, 0
    s_add_u32 s24, s24, 80
    s_addc_u32 s25, s25, 0
    s_add_u32 s22, s22, 1
    s_cmp_lt_u32 s22, {M}
    s_cbranch_scc1 L_at_p2
    v_rcp_f32 v6, v6
    s_nop 1
    v_add_u32 v3, {O}, v2
"""
    for i in range(20):
        b+=f"    v_mul_f32 v{40+i}, v{40+i}, v6\n    v_cvt_pk_bf16_f32 v{40+i}, v{40+i}, v{40+i}\n    v_lshlrev_b32 v{40+i}, 16, v{40+i}\n"
        b+=f"    buffer_store_dword v{40+i}, v3, s[12:15], 0 offen offset:{4*i}\n"
    b+="    s_waitcnt vmcnt(0)\nL_at_end:\n    s_endpgm\n"
    kernels.append((name,b)); launch.append((name,1024,64))

def k_dummy():
    name="dummy_kernel"
    b=hdr(name)+"    s_endpgm\n"
    kernels.append((name,b))

k_ln()
k_gemm("gq_kernel", XN, D, 8, 640, Q, 640)
k_gemm("gk_kernel", XN, D, 16, 20, KK, 20)
k_gemm("gv_kernel", XN, D, 24, 20, V, 20)
k_gemm("gh_kernel", XN, D, 48, F, H, F, bias=56, gelu=True)
k_attn()
k_gemm("go_kernel", O, D, 32, 640, 0, 0, bias=72, A2=(H, F, 64), final=True)
k_dummy()
for i in range(EXTRA): launch.append(("dummy_kernel",256,256))
s=""
for n,g,bl in launch:
    s+=f"; @launch kernel={n} grid=({g},1,1) block=({bl},1,1) lds=0\n"
s+='.amdgcn_target "amdgcn-amd-amdhsa--gfx950"\n.text\n'
for n,b in kernels: s+=b
s+='.section .rodata,"a"\n.p2align 6\n'
for n,b in kernels: s+=".p2align 6\n"+desc(n)
print(s)
```

```python
import sys
EXTRA = int(sys.argv[1]) if len(sys.argv) > 1 else 0
M=2048; D=640; F=1728
XN=0; Q=XN+M*D*4; KK=Q+M*D*4; V=KK+M*20*4; H=V+M*20*4; O=H+M*F*4
out=[]
launch=[]
def hdr(name):
    return f""".globl {name}
.p2align 8
.type {name},@function
{name}:
"""
def desc(name, nv=128, ns=96):
    return f""".amdhsa_kernel {name}
  .amdhsa_next_free_vgpr {nv}
  .amdhsa_next_free_sgpr {ns}
  .amdhsa_accum_offset {nv}
  .amdhsa_group_segment_fixed_size 0
  .amdhsa_kernarg_size 104
  .amdhsa_user_sgpr_count 2
  .amdhsa_user_sgpr_kernarg_segment_ptr 1
  .amdhsa_system_sgpr_workgroup_id_x 1
.end_amdhsa_kernel
"""
def srd(d, lo, hi, size):
    return f"""    s_mov_b32 s{d}, s{lo}
    s_and_b32 s{d+1}, s{hi}, 0xffff
    s_mov_b32 s{d+2}, {size}
    s_mov_b32 s{d+3}, 0x20000
"""
kernels=[]
def k_ln():
    name="ln_kernel"
    b=hdr(name)
    b+=f"""    s_cmp_ge_u32 s2, {M}
    s_cbranch_scc1 L_ln_end
    s_load_dwordx2 s[4:5], s[0:1], 0
    s_load_dwordx2 s[6:7], s[0:1], 96
    s_waitcnt lgkmcnt(0)
"""
    b+=srd(8,4,5,M*D*2)+srd(12,6,7,O+M*D*4)
    b+=f"""    s_mul_i32 s16, s2, {D*2}
    v_lshlrev_b32 v1, 1, v0
    v_add_u32 v1, s16, v1
"""
    for i in range(10):
        b+=f"    buffer_load_ushort v{10+i}, v1, s[8:11], 0 offen offset:{128*i}\n"
    b+="    s_waitcnt vmcnt(0)\n"
    for i in range(10):
        b+=f"    v_lshlrev_b32 v{10+i}, 16, v{10+i}\n"
    b+="    v_mov_b32 v2, 0\n"
    for i in range(10):
        b+=f"    v_add_f32 v2, v2, v{10+i}\n"
    def red(r):
        s=""
        for m in (1,2,4,8,16,32):
            s+=f"""    v_xor_b32 v4, {m}, v0
    v_lshlrev_b32 v4, 2, v4
    ds_bpermute_b32 v5, v4, v{r}
    s_waitcnt lgkmcnt(0)
    v_add_f32 v{r}, v{r}, v5
"""
        return s
    b+=red(2)
    b+=f"""    s_mov_b32 s17, 0x{int.from_bytes(__import__('struct').pack('<f',1.0/640),'little'):08x}
    v_mul_f32 v2, s17, v2
    v_mov_b32 v3, 0
"""
    for i in range(10):
        b+=f"    v_sub_f32 v{10+i}, v{10+i}, v2\n    v_fmac_f32 v3, v{10+i}, v{10+i}\n"
    b+=red(3)
    b+=f"""    v_mul_f32 v3, s17, v3
    v_add_f32 v3, 0x3727c5ac, v3
    v_rsq_f32 v3, v3
    s_nop 1
"""
    b+=f"""    s_mul_i32 s16, s2, {D*4}
    s_add_u32 s16, s16, {XN}
    v_lshlrev_b32 v1, 2, v0
    v_add_u32 v1, s16, v1
"""
    for i in range(10):
        b+=f"    v_mul_f32 v{10+i}, v{10+i}, v3\n"
        b+=f"    v_cvt_pk_bf16_f32 v{10+i}, v{10+i}, v{10+i}\n    v_lshlrev_b32 v{10+i}, 16, v{10+i}\n"
        b+=f"    buffer_store_dword v{10+i}, v1, s[12:15], 0 offen offset:{256*i}\n"
    b+="    s_waitcnt vmcnt(0)\nL_ln_end:\n    s_endpgm\n"
    kernels.append((name,b)); launch.append((name,M,64))

def k_gemm(name, Aoff, K, Bptr, N, Coff, ldc, bias=None, gelu=False, A2=None, final=False):
    NB=(N+63)//64
    b=hdr(name)
    L=name
    magic=(2**32+NB-1)//NB
    b+=f"""    s_cmp_ge_u32 s2, {M*NB}
    s_cbranch_scc1 L_{L}_end
    s_load_dwordx2 s[6:7], s[0:1], 96
    s_load_dwordx2 s[4:5], s[0:1], {Bptr}
"""
    if A2: b+=f"    s_load_dwordx2 s[30:31], s[0:1], {A2[2]}\n"
    if bias is not None: b+=f"    s_load_dwordx2 s[32:33], s[0:1], {bias}\n"
    if final: b+=f"    s_load_dwordx2 s[34:35], s[0:1], 0\n    s_load_dwordx2 s[36:37], s[0:1], 80\n"
    if NB==1: b+="    s_mov_b32 s17, s2\n"
    else: b+=f"    s_mov_b32 s16, {magic}\n    s_mul_hi_u32 s17, s2, s16\n"
    b+=f"""
    s_mul_i32 s18, s17, {NB}
    s_sub_u32 s18, s2, s18         ; nb
    s_lshl_b32 s18, s18, 6
    v_add_u32 v1, s18, v0          ; n
    v_lshlrev_b32 v2, 1, v1        ; n*2
    v_mov_b32 v3, 0
    s_waitcnt lgkmcnt(0)
"""
    def seg(Aoff,K,blo,bhi,tag):
        s=srd(8,blo,bhi,K*N*2)
        s+=f"""    s_mul_i32 s19, s17, {K*4}
    s_add_u32 s20, s6, s19
    s_addc_u32 s21, s7, 0
    s_add_u32 s20, s20, {Aoff}
    s_addc_u32 s21, s21, 0
    s_mov_b32 s22, 0
    s_mov_b32 s23, 0
L_{L}_{tag}:
    s_load_dwordx8 s[40:47], s[20:21], 0
"""
        for i in range(8):
            s+=f"    buffer_load_ushort v{10+i}, v2, s[8:11], s23 offen\n    s_add_u32 s23, s23, {N*2}\n"
        s+="    s_waitcnt vmcnt(0) lgkmcnt(0)\n"
        for i in range(8):
            s+=f"    v_lshlrev_b32 v{10+i}, 16, v{10+i}\n    v_fmac_f32 v3, s{40+i}, v{10+i}\n"
        s+=f"""    s_add_u32 s20, s20, 32
    s_addc_u32 s21, s21, 0
    s_add_u32 s22, s22, 8
    s_cmp_lt_u32 s22, {K}
    s_cbranch_scc1 L_{L}_{tag}
"""
        return s
    b+=seg(Aoff,K,4,5,"a")
    if A2: b+=seg(A2[0],A2[1],30,31,"b")
    if bias is not None:
        b+=srd(8,32,33,N*2)
        b+="""    buffer_load_ushort v10, v2, s[8:11], 0 offen
    s_waitcnt vmcnt(0)
    v_lshlrev_b32 v10, 16, v10
    v_add_f32 v3, v3, v10
"""
    if gelu:
        import math,struct
        f=lambda x: "0x%08x"%int.from_bytes(struct.pack('<f',x),'little')
        c1=-2*math.sqrt(2/math.pi)*math.log2(math.e); c2=c1*0.044715
        b+=f"""    v_mul_f32 v4, v3, v3
    v_mov_b32 v5, {f(c1)}
    v_mov_b32 v6, {f(c2)}
    v_fma_f32 v4, v4, v6, v5
    v_mul_f32 v4, v4, v3
    v_exp_f32 v4, v4
    s_nop 1
    v_add_f32 v4, 1.0, v4
    v_rcp_f32 v4, v4
    s_nop 1
    v_mul_f32 v3, v3, v4
"""
    if final:
        b+=srd(8,34,35,M*D*2)+srd(12,36,37,M*D*2)
        b+=f"""    s_mul_i32 s19, s17, {D*2}
    v_add_u32 v2, s19, v2
    buffer_load_ushort v10, v2, s[8:11], 0 offen
    s_waitcnt vmcnt(0)
    v_lshlrev_b32 v10, 16, v10
    v_add_f32 v3, v3, v10
    v_cvt_pk_bf16_f32 v3, v3, v3
    buffer_store_short v3, v2, s[12:15], 0 offen
"""
    else:
        b+=srd(12,6,7,O+M*D*4)
        b+=f"""    v_cvt_pk_bf16_f32 v3, v3, v3
    v_lshlrev_b32 v3, 16, v3
    s_mul_i32 s19, s17, {ldc*4}
    s_add_u32 s19, s19, {Coff}
    v_lshlrev_b32 v4, 2, v1
    v_add_u32 v4, s19, v4
    v_cmp_gt_u32 vcc, {N}, v1
    s_and_saveexec_b64 s[24:25], vcc
    s_cbranch_execz L_{L}_end
    buffer_store_dword v3, v4, s[12:15], 0 offen
"""
    b+=f"    s_waitcnt vmcnt(0)\nL_{L}_end:\n    s_endpgm\n"
    kernels.append((name,b)); launch.append((name,M*NB,64))

def k_attn():
    import math,struct
    f=lambda x: "0x%08x"%int.from_bytes(struct.pack('<f',x),'little')
    name="attn_kernel"
    b=hdr(name)
    b+=f"""    s_cmp_ge_u32 s2, 1024
    s_cbranch_scc1 L_at_end
    s_load_dwordx2 s[6:7], s[0:1], 96
    s_lshr_b32 s16, s2, 5      ; head
    s_and_b32 s17, s2, 31
    s_lshl_b32 s17, s17, 6
    v_add_u32 v1, s17, v0      ; token
    v_mul_u32_u24 v2, {D*4}, v1
    s_mul_i32 s18, s16, 80
    v_add_u32 v2, s18, v2
    s_waitcnt lgkmcnt(0)
"""
    b+=srd(12,6,7,O+M*D*4)
    b+=f"    v_add_u32 v3, {Q}, v2\n"
    for i in range(20):
        b+=f"    buffer_load_dword v{10+i}, v3, s[12:15], 0 offen offset:{4*i}\n"
    b+=f"    s_waitcnt vmcnt(0)\n    s_mov_b32 s19, {f(20**-0.5*math.log2(math.e))}\n"
    for i in range(20):
        b+=f"    v_mul_f32 v{10+i}, s19, v{10+i}\n"
    def dot():
        s="    v_mul_f32 v4, s40, v10\n"
        for i in range(1,20):
            s+=f"    v_fmac_f32 v4, s{40+i}, v{10+i}\n"
        return s
    b+=f"""    v_mov_b32 v5, 0xff800000
    s_add_u32 s20, s6, {KK}
    s_addc_u32 s21, s7, 0
    s_mov_b32 s22, 0
L_at_p1:
    s_load_dwordx16 s[40:55], s[20:21], 0
    s_load_dwordx4 s[56:59], s[20:21], 64
    s_waitcnt lgkmcnt(0)
"""+dot()+f"""    v_max_f32 v5, v5, v4
    s_add_u32 s20, s20, 80
    s_addc_u32 s21, s21, 0
    s_add_u32 s22, s22, 1
    s_cmp_lt_u32 s22, {M}
    s_cbranch_scc1 L_at_p1
    v_mov_b32 v6, 0
"""
    for i in range(20): b+=f"    v_mov_b32 v{40+i}, 0\n"
    b+=f"""    s_add_u32 s20, s6, {KK}
    s_addc_u32 s21, s7, 0
    s_add_u32 s24, s6, {V}
    s_addc_u32 s25, s7, 0
    s_mov_b32 s22, 0
L_at_p2:
    s_load_dwordx16 s[40:55], s[20:21], 0
    s_load_dwordx4 s[56:59], s[20:21], 64
    s_load_dwordx16 s[60:75], s[24:25], 0
    s_load_dwordx4 s[76:79], s[24:25], 64
    s_waitcnt lgkmcnt(0)
"""+dot()+"""    v_sub_f32 v4, v4, v5
    v_exp_f32 v4, v4
    s_nop 1
    v_add_f32 v6, v6, v4
"""
    for i in range(20): b+=f"    v_fmac_f32 v{40+i}, s{60+i}, v4\n"
    b+=f"""    s_add_u32 s20, s20, 80
    s_addc_u32 s21, s21, 0
    s_add_u32 s24, s24, 80
    s_addc_u32 s25, s25, 0
    s_add_u32 s22, s22, 1
    s_cmp_lt_u32 s22, {M}
    s_cbranch_scc1 L_at_p2
    v_rcp_f32 v6, v6
    s_nop 1
    v_add_u32 v3, {O}, v2
"""
    for i in range(20):
        b+=f"    v_mul_f32 v{40+i}, v{40+i}, v6\n    v_cvt_pk_bf16_f32 v{40+i}, v{40+i}, v{40+i}\n    v_lshlrev_b32 v{40+i}, 16, v{40+i}\n"
        b+=f"    buffer_store_dword v{40+i}, v3, s[12:15], 0 offen offset:{4*i}\n"
    b+="    s_waitcnt vmcnt(0)\nL_at_end:\n    s_endpgm\n"
    kernels.append((name,b)); launch.append((name,1024,64))

def k_dummy():
    name="dummy_kernel"
    b=hdr(name)+"    s_endpgm\n"
    kernels.append((name,b))

k_ln()
k_gemm("gq_kernel", XN, D, 8, 640, Q, 640)
k_gemm("gk_kernel", XN, D, 16, 20, KK, 20)
k_gemm("gv_kernel", XN, D, 24, 20, V, 20)
k_gemm("gh_kernel", XN, D, 48, F, H, F, bias=56, gelu=True)
k_attn()
k_gemm("go_kernel", O, D, 32, 640, 0, 0, bias=72, A2=(H, F, 64), final=True)
k_dummy()
FRONT = len(sys.argv)>2
if FRONT: launch = [("dummy_kernel",256,256)]*EXTRA + launch
else:
    for i in range(EXTRA): launch.append(("dummy_kernel",256,256))
s=""
for n,g,bl in launch:
    s+=f"; @launch kernel={n} grid=({g},1,1) block=({bl},1,1) lds=0\n"
s+='.amdgcn_target "amdgcn-amd-amdhsa--gfx950"\n.text\n'
for n,b in kernels: s+=b
s+='.section .rodata,"a"\n.p2align 6\n'
for n,b in kernels: s+=".p2align 6\n"+desc(n)
print(s)
```

```python
import struct, math

def f2u(x):
    return int.from_bytes(struct.pack('<f', x), 'little')
def fhex(x):
    return "0x%08x" % f2u(x)

def v(i, n=1):
    return f"v{i}" if n == 1 else f"v[{i}:{i+n-1}]"
def s(i, n=1):
    return f"s{i}" if n == 1 else f"s[{i}:{i+n-1}]"

class Alloc:
    def __init__(self, start, limit, kind='v'):
        self.next = start; self.limit = limit; self.kind = kind; self.hi = start
    def get(self, n=1, align=1):
        a = (self.next + align - 1) // align * align
        self.next = a + n
        assert self.next <= self.limit, f"out of {self.kind} regs: {self.next} > {self.limit}"
        self.hi = max(self.hi, self.next)
        return a
    def mark(self): return self.next
    def release(self, m): self.next = m

class Code:
    def __init__(self):
        self.lines = []
        self.vm = []
        self.lg = []
        self.uid = 0
    def e(self, t):
        for l in t.split("\n"):
            l = l.strip()
            if l: self.lines.append(("" if l.endswith(":") else "    ") + l)
    def c(self, t): self.lines.append("    ; " + t)
    def label(self, name): self.lines.append(name + ":")
    def vmem(self, t, tag=None):
        self.e(t); self.vm.append(tag)
    def vstore(self, t):
        self.e(t); self.vm.append('__store__')
    def lds(self, t, tag=None):
        self.e(t); self.lg.append(tag)
    def _cnt(self, q, tags):
        if not isinstance(tags, (list, tuple, set)): tags = [tags]
        idx = -1
        for i, t in enumerate(q):
            if t in tags: idx = i
        if idx < 0: return None
        return len(q) - 1 - idx, idx
    def wait_vm(self, tags):
        r = self._cnt(self.vm, tags)
        if r is None: return
        n, idx = r
        n = sum(1 for t in self.vm[idx+1:] if t != '__store__')
        assert n <= 63
        self.e(f"s_waitcnt vmcnt({n})")
        self.vm = self.vm[idx+1:]
    def wait_lg(self, tags):
        r = self._cnt(self.lg, tags)
        if r is None: return
        n, idx = r
        assert n <= 15, n
        self.e(f"s_waitcnt lgkmcnt({n})")
        self.lg = self.lg[idx+1:]
    def wait_lg0(self):
        self.e("s_waitcnt lgkmcnt(0)"); self.lg = []
    def wait_vm0(self):
        self.e("s_waitcnt vmcnt(0)"); self.vm = []
    def nop(self, n):
        while n > 0:
            k = min(n, 16); self.e(f"s_nop {k-1}"); n -= k
    def stamp(self, i, real=False):
        if not STAMPS: return
        self.e(f"{'s_memrealtime' if real else 's_memtime'} s[{80+2*i}:{81+2*i}]")
        self.e("s_waitcnt lgkmcnt(0)"); self.lg = []
    def finish(self, kidx=0, wave_sgpr=None, ws_srd=None):
        if STAMPS:
            self.stamp(6)
            self.stamp(7, real=True)
            self.e(f"s_lshl_b32 s3, s2, 4")
            self.e(f"s_add_u32 s3, s3, s{wave_sgpr}")
            self.e(f"s_lshl_b32 s3, s3, 6")
            self.e(f"s_add_u32 s3, s3, {STAMP + kidx*262144}")
            self.e("s_mov_b64 exec, 1")
            self.e("v_mov_b32 v1, 0")
            for i in range(8):
                self.e(f"v_mov_b32 v2, s{80+2*i}")
                self.e(f"v_mov_b32 v3, s{81+2*i}")
                self.e(f"buffer_store_dwordx2 v[2:3], v1, s[{ws_srd}:{ws_srd+3}], s3 offen offset:{8*i}")
                self.e("s_nop 1")
        self.e("s_endpgm")
    def text(self): return "\n".join(self.lines) + "\n"

def srd(c, d, lo, hi, size):
    c.e(f"s_mov_b32 s{d}, s{lo}")
    c.e(f"s_and_b32 s{d+1}, s{hi}, 0xffff")
    c.e(f"s_mov_b32 s{d+2}, {size}")
    c.e(f"s_mov_b32 s{d+3}, 0x20000")

def kernel_header(name):
    return f".globl {name}\n.p2align 8\n.type {name},@function\n{name}:\n"

def kernel_desc(name, nv, ns=96, acc=None):
    if acc is None: acc = (nv + 3) // 4 * 4
    return f""".p2align 6
.amdhsa_kernel {name}
  .amdhsa_next_free_vgpr {nv}
  .amdhsa_next_free_sgpr {ns}
  .amdhsa_accum_offset {acc}
  .amdhsa_group_segment_fixed_size 0
  .amdhsa_kernarg_size 104
  .amdhsa_user_sgpr_count 2
  .amdhsa_user_sgpr_kernarg_segment_ptr 1
  .amdhsa_system_sgpr_workgroup_id_x 1
  .amdhsa_float_denorm_mode_32 3
.end_amdhsa_kernel
"""

import os
STAMPS = bool(int(os.environ.get('STAMPS', '0')))
M = 2048; D = 640; F = 1728
QF  = 0
HF  = QF + 64*40*1024
KV  = HF + 64*108*1024
W2F = KV + 163840
WOF = W2F + 4*108*5*1024
OF  = WOF + 4*40*5*1024
PART = OF + 64*40*1024
FLAGS = PART + 2048*640*4
STATS = FLAGS
STAMP = FLAGS + 65536
WS_USED = STAMP + 1048576
```

```python
from core import *
EXP = os.environ.get('EXP', '')

SLOT = 36864
XOFF = 20480
CSP  = 4*SLOT
ST   = CSP + 5120
RS   = ST + 2048
K1_LDS = RS + 512
EPS = 1e-5
QSCALE = (20 ** -0.5) * math.log2(math.e)

S_X, S_W, S_O, S_B, S_SJ, S_SO = 8, 12, 16, 20, 44, 48
sW, sTW, sFH, sTB, sFT, sSTR, sWOFF, sXOFF, sW1K, sW2K, sOUT, sISH, sT0, sT1, sT2, sT3, sKB, sCH, sXB, sMASK = range(52, 72)

def k1_prologue(c):
    c.e("s_cmp_ge_u32 s2, 256")
    c.e("s_cbranch_scc1 K1_END")
    c.e("s_load_dwordx4 s[24:27], s[0:1], 0")
    c.e("s_load_dwordx4 s[28:31], s[0:1], 16")
    c.e("s_load_dwordx2 s[32:33], s[0:1], 32")
    c.e("s_load_dwordx4 s[36:39], s[0:1], 48")
    c.e("s_load_dwordx2 s[40:41], s[0:1], 64")
    c.e("s_load_dwordx2 s[42:43], s[0:1], 96")
    c.e("v_lshrrev_b32 v1, 6, v0")
    c.e("v_and_b32 v0, 63, v0")
    c.e(f"v_readfirstlane_b32 s{sW}, v1")
    c.e("s_and_b32 s3, s2, 7")
    c.e(f"s_lshr_b32 s{sT0}, s2, 3")
    c.e(f"s_and_b32 s{sTB}, s3, 1")
    c.e(f"s_lshl_b32 s{sTB}, s{sTB}, 3")
    c.e(f"s_and_b32 s{sT1}, s{sT0}, 7")
    c.e(f"s_add_u32 s{sTB}, s{sTB}, s{sT1}")
    c.e(f"s_lshr_b32 s{sFT}, s3, 1")
    c.e(f"s_lshl_b32 s{sFT}, s{sFT}, 2")
    c.e(f"s_lshr_b32 s{sT1}, s{sT0}, 3")
    c.e(f"s_add_u32 s{sFT}, s{sFT}, s{sT1}")
    c.e(f"s_and_b32 s{sTW}, s{sW}, 3")
    c.e(f"s_lshr_b32 s{sFH}, s{sW}, 2")
    c.e("s_waitcnt lgkmcnt(0)")
    c.stamp(0, real=True)
    c.stamp(1)
    srd(c, S_X, 24, 25, M*D*2)
    srd(c, S_O, 42, 43, WS_USED)

def x_dma_addr(c, vXa, vXb, vt):
    c.e(f"s_lshl_b32 s{sT0}, s{sTB}, 7")
    c.e(f"s_lshl_b32 s{sT1}, s{sTW}, 5")
    c.e(f"s_add_u32 s{sT0}, s{sT0}, s{sT1}")
    c.e(f"v_lshrrev_b32 v{vt}, 3, v0")
    c.e(f"v_add_u32 v{vt}, s{sT0}, v{vt}")
    c.e(f"v_mul_u32_u24 v{vXa}, 1280, v{vt}")
    c.e(f"v_and_b32 v{vt}, 7, v0")
    c.e(f"v_lshrrev_b32 v{vXb}, 4, v0")
    c.e(f"v_xor_b32 v{vt}, v{vt}, v{vXb}")
    c.e(f"v_lshlrev_b32 v{vt}, 4, v{vt}")
    c.e(f"v_xor_b32 v{vXb}, 64, v{vt}")
    c.e(f"v_add_u32 v{vXb}, v{vXa}, v{vXb}")
    c.e(f"v_add_u32 v{vXb}, 10240, v{vXb}")
    c.e(f"v_add_u32 v{vXa}, v{vXa}, v{vt}")

def x_read_addr(c, vRX, vt, vt2):
    c.e(f"v_and_b32 v{vt}, 31, v0")
    c.e(f"v_bfe_u32 v{vt2}, v0, 1, 3")
    c.e(f"v_lshrrev_b32 v{vRX}, 5, v0")
    c.e(f"v_xor_b32 v{vt2}, v{vt2}, v{vRX}")
    c.e(f"v_lshlrev_b32 v{vt2}, 4, v{vt2}")
    c.e(f"s_lshl_b32 s{sT0}, s{sTW}, 5")
    c.e(f"v_add_u32 v{vt}, s{sT0}, v{vt}")
    c.e(f"v_lshlrev_b32 v{vt}, 7, v{vt}")
    c.e(f"v_add_u32 v{vt}, v{vt}, v{vt2}")
    c.e(f"v_add_u32 v{vRX}, {XOFF}, v{vt}")
    for k in range(1, 4):
        c.e(f"v_xor_b32 v{vRX+k}, {32*k}, v{vRX}")
    for k in range(4):
        c.e(f"v_add_u32 v{vRX+4+k}, {2*SLOT}, v{vRX+k}")

def tr_addr(c, vd, rowstride, hmul, vt):
    c.e(f"v_lshrrev_b32 v{vd}, 5, v0")
    c.e(f"v_mul_u32_u24 v{vd}, {hmul}, v{vd}")
    c.e(f"v_bfe_u32 v{vt}, v0, 2, 2")
    c.e(f"v_add_u32 v{vd}, v{vd}, v{vt}")
    c.e(f"v_mul_u32_u24 v{vd}, {rowstride}, v{vd}")
    c.e(f"v_bfe_u32 v{vt}, v0, 4, 1")
    c.e(f"v_lshl_add_u32 v{vd}, v{vt}, 5, v{vd}")
    c.e(f"v_and_b32 v{vt}, 3, v0")
    c.e(f"v_lshl_add_u32 v{vd}, v{vt}, 3, v{vd}")

def x_dma(c, vXa, vXb, chunk, tag):
    slot = chunk % 4
    c.e(f"s_lshl_b32 s{sXB}, s{sCH}, 7")
    for i in range(4):
        c.e(f"s_add_u32 m0, s{sW2K}, {slot*SLOT + XOFF + 1024*i}")
        c.e(f"s_add_u32 s{sXOFF}, s{sXB}, {(i >> 1)*16*1280}")
        c.vmem(f"buffer_load_dwordx4 v{vXb if i & 1 else vXa}, s[{S_X}:{S_X+3}], s{sXOFF} offen lds", tag)
    c.e(f"s_add_u32 s{sCH}, s{sCH}, 1")
    c.e(f"s_cmp_eq_u32 s{sCH}, 10")
    c.e(f"s_cselect_b32 s{sCH}, 0, s{sCH}")

def split_hi_lo(c, val, hi, lo, tmp):
    c.e(f"v_cvt_pk_bf16_f32 v{tmp}, v{val}, v{val}")
    c.e(f"v_and_b32 v{hi}, 0xffff0000, v{tmp}")
    c.e(f"v_sub_f32 v{lo}, v{val}, v{hi}")

def token_stats(c, vS, vQ, va, vb, vc_, vd):
    c.e(f"v_add_f32 v{vS}, v{vS}, v{vS+1}")
    c.e(f"v_add_f32 v{vQ}, v{vQ}, v{vQ+1}")
    c.e(f"v_mov_b32 v{va}, v{vS}")
    c.e(f"v_mov_b32 v{vb}, v{vQ}")
    c.nop(2)
    c.e(f"v_permlane32_swap_b32 v{vS}, v{va}")
    c.e(f"v_permlane32_swap_b32 v{vQ}, v{vb}")
    c.nop(2)
    c.e(f"v_add_f32 v{vS}, v{vS}, v{va}")
    c.e(f"v_add_f32 v{vQ}, v{vQ}, v{vb}")
    c.e(f"v_mul_f32 v{va}, {fhex(1.0/640)}, v{vS}")
    c.e(f"v_mul_f32 v{vQ}, {fhex(1.0/640)}, v{vQ}")
    c.e(f"v_fma_f32 v{vQ}, -v{va}, v{va}, v{vQ}")
    c.e(f"v_max_f32 v{vQ}, 0, v{vQ}")
    c.e(f"v_add_f32 v{vQ}, {fhex(EPS)}, v{vQ}")
    c.e(f"v_rsq_f32 v{vb}, v{vQ}")
    c.nop(1)
    c.e(f"v_mul_f32 v{vc_}, v{vQ}, v{vb}")

def build_Baug(c, vB, vmean, vstd, t0, t1, t2, t3):
    c.e(f"v_sub_f32 v{t0}, 0, v{vmean}")
    split_hi_lo(c, t0, t1, t2, t3)
    c.e(f"v_cvt_pk_bf16_f32 v{vB}, v{t1}, v{t2}")
    split_hi_lo(c, vstd, t0, t2, t3)
    c.e(f"v_cvt_pk_bf16_f32 v{vB+1}, v{t1}, v{t0}")
    c.e(f"v_mov_b32 v{vB+3}, 0")
    c.e(f"v_cvt_pk_bf16_f32 v{vB+2}, v{t2}, v{vB+3}")

def build_Aaug(c, vA, vcs, vbias, t0, t1, t2):
    c.e(f"v_cvt_pk_bf16_f32 v{vA}, v{vcs}, v{vcs}")
    c.e(f"v_and_b32 v{t0}, 0xffff0000, v{vA}")
    c.e(f"v_sub_f32 v{t1}, v{vcs}, v{t0}")
    c.e(f"v_cvt_pk_bf16_f32 v{vA+1}, v{t1}, v{vbias}")
    c.e(f"v_mov_b32 v{vA+3}, 0")
    c.e(f"v_cvt_pk_bf16_f32 v{vA+2}, v{vbias}, v{vA+3}")

def k1_main(c, fh):
    tiles = [0, 1, 2] if fh == 0 else [3, 4]
    nt = len(tiles)
    L = f"K1M{fh}"
    a = Alloc(1, 168)
    vt, vt2 = a.get(), a.get()
    vRW = a.get(2)
    vRX = a.get(8)
    vL16 = a.get()
    vOnes = a.get()
    vS = a.get(2); vQ = a.get(2); vU = a.get(4)
    vCS = [a.get() for _ in range(nt)]
    vBias = [a.get() for _ in range(nt)]
    acc = [a.get(16, 4) for _ in range(nt)]
    fW = [[a.get(4, 4) for _ in range(nt)] for _ in range(2)]
    fX = [a.get(4, 4) for _ in range(2)]
    if fh == 1 and 'noprioB' not in EXP: c.e("s_setprio 1")
    c.e(f"s_mov_b32 s{sMASK}, 0xffff0000")
    c.e(f"v_lshlrev_b32 v{vL16}, 4, v0")
    c.e(f"v_and_b32 v{vt}, 31, v0")
    c.e(f"v_lshlrev_b32 v{vt}, 1, v{vt}")
    for i, t in enumerate(tiles):
        c.vmem(f"buffer_load_ushort v{vBias[i]}, v{vt}, s[{S_B}:{S_B+3}], 0 offen offset:{64*t}", "bias")
    tr_addr(c, vRW, 320, 8, vt)
    c.e(f"v_add_u32 v{vRW+1}, {2*SLOT}, v{vRW}")
    x_read_addr(c, vRX, vt, vt2)
    c.e(f"v_mov_b32 v{vOnes}, 0x3f803f80")
    for r in (vS, vS+1, vQ, vQ+1): c.e(f"v_mov_b32 v{r}, 0")
    for t in range(nt):
        for i in range(16): c.e(f"v_mov_b32 v{acc[t]+i}, 0")

    def reads(n):
        ch, sp = divmod(n, 4); slot = ch % 4; b = n & 1
        hi = slot >> 1; base = (slot & 1) * SLOT
        c.lds(f"ds_read_b128 v[{fX[b]}:{fX[b]+3}], v{vRX+4*hi+sp} offset:{base}", n)
        for i, t in enumerate(tiles):
            off = base + sp*5120 + 64*t
            c.lds(f"ds_read_b64_tr_b16 v[{fW[b][i]}:{fW[b][i]+1}], v{vRW+hi} offset:{off}", n)
            c.lds(f"ds_read_b64_tr_b16 v[{fW[b][i]+2}:{fW[b][i]+3}], v{vRW+hi} offset:{off+1280}", n)

    c.e("s_barrier")
    c.stamp(2)
    reads(0)
    for n in range(40):
        ch, sp = divmod(n, 4); b = n & 1
        c.wait_lg(n)
        if sp == 3 and ch + 1 < 10:
            c.e("s_barrier")
        work = []
        if fh == 1 and 'nostats' not in EXP:
            for r in range(4):
                lo, hi = vU + 2*(r & 1), vU + 2*(r & 1) + 1
                work.append(f"v_lshlrev_b32 v{lo}, 16, v{fX[b]+r}")
                work.append(f"v_and_b32 v{hi}, s{sMASK}, v{fX[b]+r}")
                work.append(f"v_add_f32 v{vS}, v{vS}, v{lo}")
                work.append(f"v_fmac_f32 v{vQ}, v{lo}, v{lo}")
                work.append(f"v_add_f32 v{vS+1}, v{vS+1}, v{hi}")
                work.append(f"v_fmac_f32 v{vQ+1}, v{hi}, v{hi}")
        save = c.lines; c.lines = []
        if n + 1 < 40: reads(n + 1)
        rd = c.lines; c.lines = save
        mf = [f"v_mfma_f32_32x32x16_bf16 v[{acc[i]}:{acc[i]+15}], v[{fW[b][i]}:{fW[b][i]+3}], v[{fX[b]}:{fX[b]+3}], v[{acc[i]}:{acc[i]+15}]" for i in range(nt)]
        if fh == 0:
            c.e(mf[0]); c.lines += rd
            for m_ in mf[1:]: c.e(m_)
        else:
            c.lines += rd
            for w_ in work[:12]: c.e(w_)
            c.e(mf[0])
            for w_ in work[12:]: c.e(w_)
            c.e(mf[1])
    c.wait_vm("bias")
    c.stamp(3)
    tmp = a.get(8, 4)
    if fh == 1:
        token_stats(c, vS, vQ, tmp, tmp+1, tmp+2, tmp+3)
        c.e(f"v_and_b32 v{vt}, 31, v0")
        c.e(f"s_lshl_b32 s{sT0}, s{sTW}, 5")
        c.e(f"v_add_u32 v{vt}, s{sT0}, v{vt}")
        c.e(f"v_lshlrev_b32 v{vt}, 4, v{vt}")
        c.e(f"v_add_u32 v{vt}, {ST}, v{vt}")
        c.lds(f"ds_write_b128 v{vt}, v[{tmp}:{tmp+3}]")
    c.wait_lg0()
    c.e("s_barrier")
    c.e(f"v_and_b32 v{vt}, 31, v0")
    c.e(f"s_lshl_b32 s{sT0}, s{sTW}, 5")
    c.e(f"v_add_u32 v{vt2}, s{sT0}, v{vt}")
    c.e(f"v_lshlrev_b32 v{vt2}, 4, v{vt2}")
    c.e(f"v_add_u32 v{vt2}, {ST}, v{vt2}")
    stt = a.get(4, 4)
    c.lds(f"ds_read_b128 v[{stt}:{stt+3}], v{vt2}")
    c.e(f"v_lshlrev_b32 v{vt}, 5, v{vt}")
    c.e(f"v_add_u32 v{vt}, {CSP}, v{vt}")
    csr = fW[0] + fW[1]
    for i, t in enumerate(tiles):
        c.lds(f"ds_read_b128 v[{fW[0][i]}:{fW[0][i]+3}], v{vt} offset:{t*1024}")
        c.lds(f"ds_read_b128 v[{fW[1][i]}:{fW[1][i]+3}], v{vt} offset:{t*1024+16}")
    c.wait_lg0()
    c.e(f"v_cmp_gt_u32 vcc, 32, v0")
    for i in range(nt):
        A, B = fW[0][i], fW[1][i]
        c.e(f"v_add_f32 v{A}, v{A}, v{A+1}"); c.e(f"v_add_f32 v{A+2}, v{A+2}, v{A+3}")
        c.e(f"v_add_f32 v{B}, v{B}, v{B+1}"); c.e(f"v_add_f32 v{B+2}, v{B+2}, v{B+3}")
        c.e(f"v_add_f32 v{A}, v{A}, v{A+2}"); c.e(f"v_add_f32 v{B}, v{B}, v{B+2}")
        c.e(f"v_add_f32 v{A}, v{A}, v{B}")
        c.e(f"v_cndmask_b32 v{vCS[i]}, 0, v{A}, vcc")
        c.e(f"v_lshlrev_b32 v{vBias[i]}, 16, v{vBias[i]}")
        c.e(f"v_cndmask_b32 v{vBias[i]}, 0, v{vBias[i]}, vcc")
    vB = fX[0]
    build_Baug(c, vB, stt, stt+2, tmp, tmp+1, tmp+2, tmp+3)
    for i in range(nt):
        build_Aaug(c, fW[0][i], vCS[i], vBias[i], tmp, tmp+1, tmp+2)
    c.nop(2)
    for i in range(nt):
        c.e(f"v_mfma_f32_32x32x16_bf16 v[{acc[i]}:{acc[i]+15}], v[{fW[0][i]}:{fW[0][i]+3}], v[{vB}:{vB+3}], v[{acc[i]}:{acc[i]+15}]")
    rs = a.get(2, 2)
    kc = a.get(4, 2)
    one = a.get(2, 2)
    c.e(f"v_mov_b32 v{rs}, v{stt+1}")
    c1 = -2*math.sqrt(2/math.pi)*math.log2(math.e); c2 = c1*0.044715
    c.e(f"v_mov_b32 v{kc}, {fhex(c1)}"); c.e(f"v_mov_b32 v{kc+1}, {fhex(c1)}")
    c.e(f"v_mov_b32 v{kc+2}, {fhex(c2)}"); c.e(f"v_mov_b32 v{kc+3}, {fhex(c2)}")
    c.e(f"v_mov_b32 v{one}, 1.0"); c.e(f"v_mov_b32 v{one+1}, 1.0")
    c.e(f"s_cmp_eq_u32 s{sISH}, 0")
    c.e(f"s_cbranch_scc0 {L}_H")
    c.e(f"v_mul_f32 v{rs}, {fhex(QSCALE)}, v{rs}")
    c.e(f"v_mov_b32 v{rs+1}, v{rs}")
    c.nop(16)
    ob = a.get(8, 4)
    for i, t in enumerate(tiles):
        A = acc[i]
        for p in range(8):
            c.e(f"v_pk_mul_f32 v[{A+2*p}:{A+2*p+1}], v[{A+2*p}:{A+2*p+1}], v[{rs}:{rs+1}]")
        for p in range(8):
            c.e(f"v_cvt_pk_bf16_f32 v{A+p}, v{A+2*p}, v{A+2*p+1}")
        c.e(f"s_add_u32 s{sT0}, s{sOUT}, {2048*t}")
        c.e(f"buffer_store_dwordx4 v[{A}:{A+3}], v{vL16}, s[{S_O}:{S_O+3}], s{sT0} offen")
        c.e(f"buffer_store_dwordx4 v[{A+4}:{A+7}], v{vL16}, s[{S_O}:{S_O+3}], s{sT0} offen offset:1024")
    c.stamp(4)
    c.finish(0, sW, S_O)
    c.label(f"{L}_H")
    c.e(f"v_mov_b32 v{rs+1}, v{rs}")
    c.nop(16)
    g = a.get(8, 2)
    for i, t in enumerate(tiles):
        A = acc[i]
        if t == 4:
            c.e(f"s_cmp_eq_u32 s{sFT}, 14")
            c.e(f"s_cbranch_scc1 {L}_done")
        for q in range(4):
            P = [A+4*q, A+4*q+2]
            for u, z in enumerate(P):
                c.e(f"v_pk_mul_f32 v[{z}:{z+1}], v[{z}:{z+1}], v[{rs}:{rs+1}]")
            for u, z in enumerate(P):
                c.e(f"v_pk_mul_f32 v[{g+2*u}:{g+2*u+1}], v[{z}:{z+1}], v[{z}:{z+1}]")
            for u, z in enumerate(P):
                c.e(f"v_pk_fma_f32 v[{g+2*u}:{g+2*u+1}], v[{g+2*u}:{g+2*u+1}], v[{kc+2}:{kc+3}], v[{kc}:{kc+1}]")
            for u, z in enumerate(P):
                c.e(f"v_pk_mul_f32 v[{g+2*u}:{g+2*u+1}], v[{g+2*u}:{g+2*u+1}], v[{z}:{z+1}]")
            for u in range(4): c.e(f"v_exp_f32 v{g+u}, v{g+u}")
            c.e("s_nop 0")
            for u in range(2):
                c.e(f"v_pk_add_f32 v[{g+2*u}:{g+2*u+1}], v[{g+2*u}:{g+2*u+1}], v[{one}:{one+1}]")
            for u in range(4): c.e(f"v_rcp_f32 v{g+u}, v{g+u}")
            c.e("s_nop 0")
            for u, z in enumerate(P):
                c.e(f"v_pk_mul_f32 v[{z}:{z+1}], v[{z}:{z+1}], v[{g+2*u}:{g+2*u+1}]")
            for u, z in enumerate(P):
                c.e(f"v_cvt_pk_bf16_f32 v{A+2*q+u}, v{z}, v{z+1}")
        c.e(f"s_add_u32 s{sT0}, s{sOUT}, {2048*t}")
        c.e(f"buffer_store_dwordx4 v[{A}:{A+3}], v{vL16}, s[{S_O}:{S_O+3}], s{sT0} offen")
        c.e(f"buffer_store_dwordx4 v[{A+4}:{A+7}], v{vL16}, s[{S_O}:{S_O+3}], s{sT0} offen offset:1024")
    c.label(f"{L}_done")
    c.stamp(4)
    c.finish(0, sW, S_O)
    return a.hi

def k1_kv(c, fh):
    L = f"K1KV{fh}"
    a = Alloc(1, 168)
    vt, vt2 = a.get(), a.get()
    vRW = a.get()
    vRX = a.get(8)
    vL16 = a.get()
    vOnes = a.get()
    vS = a.get(2); vQ = a.get(2); vCS = a.get()
    acc = a.get(16, 4)
    fW = [a.get(4, 4) for _ in range(2)]
    fX = [a.get(4, 4) for _ in range(2)]
    c.e(f"v_lshlrev_b32 v{vL16}, 4, v0")
    tr_addr(c, vRW, 40, 8, vt)
    c.e(f"v_add_u32 v{vRW}, {2*fh*SLOT}, v{vRW}")
    x_read_addr(c, vRX, vt, vt2)
    c.e(f"v_mov_b32 v{vOnes}, 0x3f803f80")
    for r in (vS, vS+1, vQ, vQ+1, vCS): c.e(f"v_mov_b32 v{r}, 0")
    for i in range(16): c.e(f"v_mov_b32 v{acc+i}, 0")
    def reads(n):
        ch, sp = divmod(n, 4); slot = ch % 4; b = n & 1
        hi = slot >> 1; base = (slot & 1) * SLOT
        c.lds(f"ds_read_b128 v[{fX[b]}:{fX[b]+3}], v{vRX+4*hi+sp} offset:{base}", n)
        hf = n // 20; k0 = (n % 20) * 16
        off = hf*SLOT + k0*40
        c.lds(f"ds_read_b64_tr_b16 v[{fW[b]}:{fW[b]+1}], v{vRW} offset:{off}", n)
        c.lds(f"ds_read_b64_tr_b16 v[{fW[b]+2}:{fW[b]+3}], v{vRW} offset:{off+160}", n)
    c.e("s_barrier")
    reads(0)
    for n in range(40):
        ch, sp = divmod(n, 4); b = n & 1
        c.wait_lg(n)
        if sp == 3 and ch + 1 < 10:
            c.e("s_barrier")
        if n + 1 < 40: reads(n + 1)
        if fh == 0:
            c.e(f"v_mfma_f32_32x32x16_bf16 v[{acc}:{acc+15}], v[{fW[b]}:{fW[b]+3}], v[{fX[b]}:{fX[b]+3}], v[{acc}:{acc+15}]")
        else:
            c.e(f"v_mfma_f32_32x32x16_bf16 v[{acc}:{acc+15}], v[{fX[b]}:{fX[b]+3}], v[{fW[b]}:{fW[b]+3}], v[{acc}:{acc+15}]")
        for r in range(4):
            c.e(f"v_dot2_f32_bf16 v{vS+(r&1)}, v{fX[b]+r}, v{vOnes}, v{vS+(r&1)}")
            c.e(f"v_dot2_f32_bf16 v{vQ+(r&1)}, v{fX[b]+r}, v{fX[b]+r}, v{vQ+(r&1)}")
            c.e(f"v_dot2_f32_bf16 v{vCS}, v{fW[b]+r}, v{vOnes}, v{vCS}")
    tmp = a.get(8, 4)
    c.nop(4)
    token_stats(c, vS, vQ, tmp, tmp+1, tmp+2, tmp+3)
    c.e(f"v_mov_b32 v{vt}, v{vCS}")
    c.nop(2)
    c.e(f"v_permlane32_swap_b32 v{vCS}, v{vt}")
    c.nop(2)
    c.e(f"v_add_f32 v{vCS}, v{vCS}, v{vt}")
    c.e(f"v_cmp_gt_u32 vcc, 32, v0")
    c.nop(2)
    c.e(f"v_cndmask_b32 v{vCS}, 0, v{vCS}, vcc")
    c.e(f"v_mov_b32 v{vt}, 0")
    t2 = a.get(4, 4)
    build_Baug(c, fX[0], tmp, tmp+2, t2, t2+1, t2+2, t2+3)
    build_Aaug(c, fW[0], vCS, vt, t2, t2+1, t2+2)
    c.nop(2)
    kvb = f"s{sOUT}"
    if fh == 0:
        c.e(f"v_mfma_f32_32x32x16_bf16 v[{acc}:{acc+15}], v[{fW[0]}:{fW[0]+3}], v[{fX[0]}:{fX[0]+3}], v[{acc}:{acc+15}]")
        c.nop(16)
        for r in range(12):
            c.e(f"v_mul_f32 v{acc+r}, v{acc+r}, v{tmp+1}")
        for p in range(6):
            c.e(f"v_cvt_pk_bf16_f32 v{acc+p}, v{acc+2*p}, v{acc+2*p+1}")
        c.e(f"buffer_store_dwordx4 v[{acc}:{acc+3}], v{vL16}, s[{S_O}:{S_O+3}], {kvb} offen")
        c.e(f"v_lshlrev_b32 v{vt}, 3, v0")
        c.e(f"v_cmp_gt_u32 vcc, 32, v0")
        c.e(f"s_and_saveexec_b64 s[4:5], vcc")
        c.e(f"buffer_store_dwordx2 v[{acc+4}:{acc+5}], v{vt}, s[{S_O}:{S_O+3}], {kvb} offen offset:1024")
        c.finish(0, sW, S_O)
    else:
        c.e(f"v_mfma_f32_32x32x16_bf16 v[{acc}:{acc+15}], v[{fX[0]}:{fX[0]+3}], v[{fW[0]}:{fW[0]+3}], v[{acc}:{acc+15}]")
        c.e(f"v_and_b32 v{vt}, 31, v0")
        c.e(f"s_lshl_b32 s{sT0}, s{sTW}, 5")
        c.e(f"v_add_u32 v{vt}, s{sT0}, v{vt}")
        c.e(f"v_lshlrev_b32 v{vt}, 2, v{vt}")
        c.e(f"v_add_u32 v{vt}, {RS}, v{vt}")
        c.lds(f"ds_write_b32 v{vt}, v{tmp+1}")
        c.wait_lg0()
        c.e(f"v_lshrrev_b32 v{vt}, 5, v0")
        c.e(f"v_lshlrev_b32 v{vt}, 4, v{vt}")
        c.e(f"s_lshl_b32 s{sT0}, s{sTW}, 7")
        c.e(f"v_add_u32 v{vt}, s{sT0}, v{vt}")
        c.e(f"v_add_u32 v{vt}, {RS}, v{vt}")
        rr = a.get(16, 4)
        for j in range(4):
            c.lds(f"ds_read_b128 v[{rr+4*j}:{rr+4*j+3}], v{vt} offset:{32*j}")
        c.wait_lg0()
        c.nop(16)
        for r in range(16):
            c.e(f"v_mul_f32 v{acc+r}, v{acc+r}, v{rr+r}")
        for p in range(8):
            c.e(f"v_cvt_pk_bf16_f32 v{acc+p}, v{acc+2*p}, v{acc+2*p+1}")
        c.e(f"v_and_b32 v{vt}, 31, v0")
        c.e(f"v_lshrrev_b32 v{vt2}, 5, v0")
        c.e(f"v_mul_u32_u24 v{vt2}, 20, v{vt2}")
        c.e(f"v_add_u32 v{vt2}, v{vt2}, v{vt}")
        c.e(f"v_lshlrev_b32 v{vt2}, 4, v{vt2}")
        c.e(f"v_cmp_gt_u32 vcc, 20, v{vt}")
        c.e(f"s_and_saveexec_b64 s[4:5], vcc")
        c.e(f"buffer_store_dwordx4 v[{acc}:{acc+3}], v{vt2}, s[{S_O}:{S_O+3}], {kvb} offen offset:1280")
        c.e(f"buffer_store_dwordx4 v[{acc+4}:{acc+7}], v{vt2}, s[{S_O}:{S_O+3}], {kvb} offen offset:1920")
        c.finish(0, sW, S_O)
    return a.hi


def k1_loader(c, kv):
    a = Alloc(1, 168)
    vt, vt2 = a.get(), a.get()
    vXa, vXb = a.get(), a.get()
    vL16 = a.get()
    if 'noprio' not in EXP: c.e("s_setprio 3")
    c.e(f"s_lshl_b32 s{sW2K}, s{sTW}, 12")
    c.e(f"s_mul_i32 s{sW1K}, s{sTW}, 5120")
    if kv or 'norot' in EXP:
        c.e(f"s_mov_b32 s{sCH}, 0")
    else:
        c.e(f"s_lshr_b32 s{sCH}, s2, 3")
        c.e(f"s_mul_i32 s{sT0}, s{sCH}, 26")
        c.e(f"s_lshr_b32 s{sT0}, s{sT0}, 8")
        c.e(f"s_mul_i32 s{sT0}, s{sT0}, 10")
        c.e(f"s_sub_u32 s{sCH}, s{sCH}, s{sT0}")
    x_dma_addr(c, vXa, vXb, vt)
    c.e(f"v_lshlrev_b32 v{vL16}, 4, v0")
    if not kv:
        vWd = [a.get() for _ in range(5)]
        c.e(f"s_lshl_b32 s{sT0}, s{sTW}, 4")
        c.e(f"s_mul_i32 s{sT0}, s{sT0}, s{sSTR}")
        for i, r in enumerate(vWd):
            c.e(f"v_add_u32 v{vt}, {64*i}, v0")
            c.e(f"v_mul_u32_u24 v{vt2}, 3277, v{vt}")
            c.e(f"v_lshrrev_b32 v{vt2}, 16, v{vt2}")
            c.e(f"v_mul_u32_u24 v{r}, 20, v{vt2}")
            c.e(f"v_sub_u32 v{vt}, v{vt}, v{r}")
            c.e(f"v_mul_u32_u24 v{r}, s{sSTR}, v{vt2}")
            c.e(f"v_lshl_add_u32 v{r}, v{vt}, 4, v{r}")
            c.e(f"v_add_u32 v{r}, s{sT0}, v{r}")
        def dma(chunk):
            slot = chunk % 4
            c.e(f"s_lshl_b32 s{sWOFF}, s{sCH}, 6")
            c.e(f"s_mul_i32 s{sWOFF}, s{sSTR}, s{sWOFF}")
            for i, r in enumerate(vWd):
                c.e(f"s_add_u32 m0, s{sW1K}, {slot*SLOT + 1024*i}")
                c.e("s_nop 0")
                c.vmem(f"buffer_load_dwordx4 v{r}, s[{S_W}:{S_W+3}], s{sWOFF} offen lds", f"ch{chunk}")
            x_dma(c, vXa, vXb, chunk, f"ch{chunk}")
        dma(0); dma(1)
        vSJ = a.get()
        tr_addr(c, vSJ, 1280, 4, vt)
        c.e(f"v_add_u32 v{vSJ}, {2*SLOT}, v{vSJ}")
        vRW = a.get(2)
        tr_addr(c, vRW, 320, 8, vt)
        c.e(f"s_mul_i32 s{sT0}, s{sTW}, 5120")
        c.e(f"v_add_u32 v{vRW}, s{sT0}, v{vRW}")
        c.e(f"v_add_u32 v{vRW+1}, {2*SLOT}, v{vRW}")
        vOnes = a.get(); c.e(f"v_mov_b32 v{vOnes}, 0x3f803f80")
        vCS = [a.get() for _ in range(5)]
        for r in vCS: c.e(f"v_mov_b32 v{r}, 0")
        fW = [a.get(4, 4) for _ in range(5)]
        def cs_reads(chunk):
            if 'nocsr' in EXP: return
            slot = chunk % 4
            for t in range(5):
                off = (slot & 1)*SLOT + 64*t
                c.lds(f"ds_read_b64_tr_b16 v[{fW[t]}:{fW[t]+1}], v{vRW+(slot>>1)} offset:{off}", "cs")
                c.lds(f"ds_read_b64_tr_b16 v[{fW[t]+2}:{fW[t]+3}], v{vRW+(slot>>1)} offset:{off+1280}", "cs")
        def cs_work():
            if 'nocs' in EXP: return []
            return [f"v_dot2_f32_bf16 v{vCS[t]}, v{fW[t]+r}, v{vOnes}, v{vCS[t]}" for r in range(4) for t in range(5)]
        def dma_mix(chunks, work, after=2):
            sub = Code(); sub.vm = c.vm; sub.lg = c.lg
            save = c.lines; c.lines = []
            for chn in chunks: dma(chn)
            L_ = c.lines; c.lines = save
            idx = [i for i, l in enumerate(L_) if "buffer_load" in l]
            nslots = max(1, len(idx) - after)
            waited = False; k = 0
            for i, l in enumerate(L_):
                c.lines.append(l)
                if i in idx:
                    p = idx.index(i)
                    if p >= after - 1 and work:
                        if not waited: c.wait_lg0(); waited = True
                        nper = (len(work) + (len(idx) - 1 - p)) // max(1, len(idx) - p)
                        for _ in range(nper):
                            if work: c.e(work.pop(0))
            if work:
                if not waited: c.wait_lg0()
                for w_ in work: c.e(w_)
        c.wait_vm("ch0")
        c.e("s_barrier")
        cs_reads(0)
        dma_mix([2, 3], cs_work())
        for ch in range(9):
            if ch == 4: c.stamp(2)
            c.wait_lg0()
            c.wait_vm([f"ch{ch+1}"] + (["sj"] if ch == 8 else []))
            if ch == 4: c.stamp(3)
            c.e("s_barrier")
            if ch == 4: c.stamp(4)
            cs_reads(ch + 1)
            dma_mix([ch + 4] if ch + 4 < 10 else [], cs_work())
            if ch == 4: c.stamp(5)
            if ch == 6:
                for i in range(5):
                    c.e(f"s_add_u32 m0, s{sW1K}, {2*SLOT + 1024*i}")
                    c.e(f"s_add_u32 s{sT0}, s{sW1K}, {1024*i}")
                    c.vmem(f"buffer_load_dwordx4 v{vL16}, s[{S_SJ}:{S_SJ+3}], s{sT0} offen lds", "sj")
        c.nop(4)
        c.e(f"v_and_b32 v{vt}, 31, v0")
        c.e(f"v_lshlrev_b32 v{vt}, 5, v{vt}")
        c.e(f"v_lshrrev_b32 v{vt2}, 5, v0")
        c.e(f"v_lshl_add_u32 v{vt}, v{vt2}, 2, v{vt}")
        c.e(f"s_lshl_b32 s{sT0}, s{sTW}, 3")
        c.e(f"v_add_u32 v{vt}, s{sT0}, v{vt}")
        c.e(f"v_add_u32 v{vt}, {CSP}, v{vt}")
        for t in range(5):
            c.lds(f"ds_write_b32 v{vt}, v{vCS[t]} offset:{t*1024}")
        sj = [a.get(4, 4) for _ in range(5)]
        c.e(f"s_mul_i32 s{sT0}, s{sTW}, 320")
        c.e(f"v_add_u32 v{vt}, s{sT0}, v{vSJ}")
        for i in range(5):
            c.lds(f"ds_read_b64_tr_b16 v[{sj[i]}:{sj[i]+1}], v{vt} offset:{64*i}", "sjr")
            c.lds(f"ds_read_b64_tr_b16 v[{sj[i]+2}:{sj[i]+3}], v{vt} offset:{64*i + 8*1280}", "sjr")
        c.wait_lg0()
        c.e("s_barrier")
        c.e(f"s_mul_i32 s{sT1}, s{sTW}, s{sT2}")
        c.e(f"s_add_u32 s{sT1}, s{sT1}, s{sT3}")
        for i in range(5):
            c.e(f"s_add_u32 s{sT0}, s{sT1}, {1024*i}")
            c.vstore(f"buffer_store_dwordx4 v[{sj[i]}:{sj[i]+3}], v{vL16}, s[{S_SO}:{S_SO+3}], s{sT0} offen")
    else:
        c.e(f"s_lshr_b32 s{sT0}, s{sTW}, 1")
        c.e(f"s_cmp_eq_u32 s{sT0}, 0")
        c.e(f"s_cselect_b32 s{S_W}, s28, s30")
        c.e(f"s_cselect_b32 s{S_W+1}, s29, s31")
        c.e(f"s_and_b32 s{S_W+1}, s{S_W+1}, 0xffff")
        c.e(f"s_mov_b32 s{S_W+2}, 25600")
        c.e(f"s_mov_b32 s{S_W+3}, 0x20000")
        c.e(f"s_and_b32 s{sT1}, s{sTW}, 1")
        c.e(f"s_mul_i32 s{sWOFF}, s{sT1}, 12800")
        c.e(f"s_mul_i32 s{sW1K}, s{sTW}, {SLOT}")
        x_dma(c, vXa, vXb, 0, "ch0")
        for i in range(13):
            c.e(f"s_add_u32 m0, s{sW1K}, {1024*i}")
            c.e(f"s_add_u32 s{sT0}, s{sWOFF}, {1024*i}")
            c.vmem(f"buffer_load_dwordx4 v{vL16}, s[{S_W}:{S_W+3}], s{sT0} offen lds", "ch0")
        x_dma(c, vXa, vXb, 1, "ch1")
        c.wait_vm("ch0")
        c.e("s_barrier")
        for ch in range(2, 4): x_dma(c, vXa, vXb, ch, f"ch{ch}")
        for ch in range(9):
            c.wait_vm(f"ch{ch+1}")
            c.e("s_barrier")
            if ch + 4 < 10: x_dma(c, vXa, vXb, ch + 4, f"ch{ch+4}")
    c.finish(0, sW, S_O)
    return a.hi

def gen_k1():
    c = Code()
    k1_prologue(c)
    c.e(f"s_cmp_lt_u32 s2, 108")
    c.e(f"s_cselect_b32 s{sT0}, s40, s32")
    c.e(f"s_cselect_b32 s{sT1}, s41, s33")
    c.e(f"s_cselect_b32 s{sKB}, s2, 0")
    c.e(f"s_mov_b32 s{sT2}, {108*5120}")
    c.e(f"s_mov_b32 s{sT3}, {W2F}")
    c.e(f"s_cbranch_scc1 K1_SJ1")
    c.e(f"s_mov_b32 s{sT2}, {40*5120}")
    c.e(f"s_mov_b32 s{sT3}, {WOF}")
    c.e(f"s_sub_u32 s{sKB}, s2, 108")
    c.label("K1_SJ1")
    c.e(f"s_mul_i32 s3, s{sKB}, {16*1280}")
    c.e(f"s_add_u32 s{S_SJ}, s{sT0}, s3")
    c.e(f"s_addc_u32 s{S_SJ+1}, s{sT1}, 0")
    c.e(f"s_and_b32 s{S_SJ+1}, s{S_SJ+1}, 0xffff")
    c.e(f"s_cmp_lt_u32 s2, 148")
    c.e(f"s_cselect_b32 s{S_SJ+2}, {16*1280}, 0")
    c.e(f"s_cselect_b32 s{S_SO+2}, {WS_USED}, 0")
    c.e(f"s_mov_b32 s{S_SJ+3}, 0x20000")
    c.e(f"s_mov_b32 s{S_SO}, s42")
    c.e(f"s_and_b32 s{S_SO+1}, s43, 0xffff")
    c.e(f"s_mov_b32 s{S_SO+3}, 0x20000")
    c.e(f"s_mul_i32 s3, s{sKB}, 5120")
    c.e(f"s_add_u32 s{sT3}, s{sT3}, s3")
    c.e(f"s_cmp_eq_u32 s{sFT}, 15")
    c.e("s_cbranch_scc1 K1_KV")
    c.e(f"s_cmp_lt_u32 s{sFT}, 4")
    c.e("s_cbranch_scc0 K1_HSET")
    c.e(f"s_mul_i32 s3, s{sFT}, 320")
    c.e(f"s_add_u32 s{S_W}, s26, s3")
    c.e(f"s_addc_u32 s{S_W+1}, s27, 0")
    c.e(f"s_sub_u32 s{S_W+2}, {640*640*2}, s3")
    c.e(f"s_mov_b32 s{sSTR}, 1280")
    c.e(f"s_mov_b32 s{sISH}, 0")
    c.e(f"s_mov_b32 s{S_B}, s38")
    c.e(f"s_mov_b32 s{S_B+1}, s39")
    c.e(f"s_mov_b32 s{S_B+2}, 0")
    c.e(f"s_lshl_b32 s3, s{sTB}, 2")
    c.e(f"s_add_u32 s3, s3, s{sTW}")
    c.e(f"s_mul_i32 s3, s3, 40")
    c.e(f"s_mul_i32 s{sOUT}, s{sFT}, 10")
    c.e(f"s_add_u32 s{sOUT}, s{sOUT}, s3")
    c.e(f"s_lshl_b32 s{sOUT}, s{sOUT}, 10")
    c.e(f"s_add_u32 s{sOUT}, s{sOUT}, {QF}")
    c.e("s_branch K1_MAIN")
    c.label("K1_HSET")
    c.e(f"s_sub_u32 s{sISH}, s{sFT}, 4")
    c.e(f"s_mul_i32 s3, s{sISH}, 320")
    c.e(f"s_add_u32 s{S_W}, s36, s3")
    c.e(f"s_addc_u32 s{S_W+1}, s37, 0")
    c.e(f"s_sub_u32 s{S_W+2}, {640*1728*2}, s3")
    c.e(f"s_mov_b32 s{sSTR}, 3456")
    c.e(f"s_add_u32 s{S_B}, s38, s3")
    c.e(f"s_addc_u32 s{S_B+1}, s39, 0")
    c.e(f"s_sub_u32 s{S_B+2}, {1728*2}, s3")
    c.e(f"s_lshl_b32 s3, s{sTB}, 2")
    c.e(f"s_add_u32 s3, s3, s{sTW}")
    c.e(f"s_mul_i32 s3, s3, 108")
    c.e(f"s_mul_i32 s{sOUT}, s{sISH}, 10")
    c.e(f"s_add_u32 s{sOUT}, s{sOUT}, s3")
    c.e(f"s_lshl_b32 s{sOUT}, s{sOUT}, 10")
    c.e(f"s_add_u32 s{sOUT}, s{sOUT}, {HF}")
    c.e(f"s_mov_b32 s{sISH}, 1")
    c.label("K1_MAIN")
    c.e(f"s_and_b32 s{S_W+1}, s{S_W+1}, 0xffff")
    c.e(f"s_mov_b32 s{S_W+3}, 0x20000")
    c.e(f"s_and_b32 s{S_B+1}, s{S_B+1}, 0xffff")
    c.e(f"s_mov_b32 s{S_B+3}, 0x20000")
    c.e(f"s_cmp_eq_u32 s{sFH}, 2")
    c.e("s_cbranch_scc1 K1_LOADM")
    c.e(f"s_cmp_eq_u32 s{sFH}, 0")
    c.e("s_cbranch_scc0 K1_MAIN1")
    import copy
    hi = 0
    c0 = Code(); hi = max(hi, k1_main(c0, 0)); c.lines += c0.lines
    c.label("K1_MAIN1")
    c1 = Code(); hi = max(hi, k1_main(c1, 1)); c.lines += c1.lines
    c.label("K1_LOADM")
    cl = Code(); hi = max(hi, k1_loader(cl, False)); c.lines += cl.lines
    c.label("K1_KV")
    c.e(f"s_cmp_eq_u32 s{sFH}, 2")
    c.e("s_cbranch_scc1 K1_LOADKV")
    c.e(f"s_lshl_b32 s3, s{sTB}, 2")
    c.e(f"s_add_u32 s3, s3, s{sTW}")
    c.e(f"s_mul_i32 s{sOUT}, s3, 2560")
    c.e(f"s_add_u32 s{sOUT}, s{sOUT}, {KV}")
    c.e(f"s_cmp_eq_u32 s{sFH}, 0")
    c.e("s_cbranch_scc0 K1_KV1")
    c2 = Code(); hi = max(hi, k1_kv(c2, 0)); c.lines += c2.lines
    c.label("K1_KV1")
    c3 = Code(); hi = max(hi, k1_kv(c3, 1)); c.lines += c3.lines
    c.label("K1_LOADKV")
    cl = Code(); hi = max(hi, k1_loader(cl, True)); c.lines += cl.lines
    c.label("K1_END")
    c.e("s_endpgm")
    return c.text(), hi

if __name__ == "__main__":
    t, hi = gen_k1()
    print(t)
    import sys
    print("vgprs", hi, "lds", K1_LDS, file=sys.stderr)
```

```python
from core import *
EXP = os.environ.get('EXP', '')

K2_LDS = 163840
S_WS = 8
sW, sTT, sHEAD, sT0, sT1, sT2, sIT, sW1K = range(40, 48)
sVM = 48

def piece_addr(c, vdst, vk0, vn, vt, base_sgpr):
    c.e(f"v_lshrrev_b32 v{vdst}, 4, v{vk0}")
    c.e(f"v_lshlrev_b32 v{vdst}, 10, v{vdst}")
    c.e(f"v_bfe_u32 v{vt}, v{vk0}, 2, 1")
    c.e(f"v_lshl_add_u32 v{vt}, v{vt}, 5, v{vn}")
    c.e(f"v_lshl_add_u32 v{vdst}, v{vt}, 4, v{vdst}")
    c.e(f"v_bfe_u32 v{vt}, v{vk0}, 3, 1")
    c.e(f"v_lshl_add_u32 v{vdst}, v{vt}, 3, v{vdst}")
    c.e(f"v_add_u32 v{vdst}, s{base_sgpr}, v{vdst}")

def attn_tile(c, R, j, first=False):
    S = R['S'][j & 1]; N = R['S'][(j + 1) & 1]; P = R['P']; O = R['O']
    K0, K1, Va, Vb, Q0, Q1 = R['K0'], R['K1'], R['Va'], R['Vb'], R['Q0'], R['Q1']
    vK0, vK1, vV = R['vK0'], R['vK1'], R['vV']
    def ex(lo):
        c.e(f"v_exp_f32 v{S+lo}, v{S+lo}")
        c.e(f"v_exp_f32 v{S+lo+1}, v{S+lo+1}")
        c.e(f"v_exp_f32 v{S+lo+2}, v{S+lo+2}")
        c.e(f"v_cvt_pk_bf16_f32 v{P+lo//2}, v{S+lo}, v{S+lo+1}")
        c.e(f"v_exp_f32 v{S+lo+3}, v{S+lo+3}")
        R['pend'] = (P + lo//2 + 1, S + lo + 2, S + lo + 3)
    def flush():
        if R.get('pend'):
            d, a_, b_ = R['pend']; c.e(f"v_cvt_pk_bf16_f32 v{d}, v{a_}, v{b_}"); R['pend'] = None
    T = 2560
    c.e("s_waitcnt lgkmcnt(3)")
    flush()
    c.e(f"v_mfma_f32_32x32x16_bf16 v[{N}:{N+15}], v[{K0}:{K0+3}], v[{Q0}:{Q0+3}], 0")
    c.e(f"ds_read_b128 v[{K0}:{K0+3}], v{vK0} offset:{(j+2)*T}")
    ex(0)
    c.e("s_waitcnt lgkmcnt(3)")
    flush()
    c.e(f"v_mfma_f32_32x32x16_bf16 v[{N}:{N+15}], v[{K1}:{K1+3}], v[{Q1}:{Q1+3}], v[{N}:{N+15}]")
    c.e(f"ds_read_b64 v[{K1}:{K1+1}], v{vK1} offset:{(j+2)*T}")
    ex(4)
    c.e("s_waitcnt lgkmcnt(3)")
    flush()
    c.e(f"v_mfma_f32_32x32x16_bf16 v[{O}:{O+15}], v[{Vb}:{Vb+3}], v[{P+4}:{P+7}], v[{O}:{O+15}]")
    ex(8)
    c.e("s_waitcnt lgkmcnt(2)")
    flush()
    c.e(f"v_mfma_f32_32x32x16_bf16 v[{O}:{O+15}], v[{Va}:{Va+3}], v[{P}:{P+3}], v[{O}:{O+15}]")
    c.e(f"s_mov_b64 exec, s[{sVM}:{sVM+1}]")
    c.e(f"ds_read_b128 v[{Vb}:{Vb+3}], v{vV} offset:{j*T + 640}")
    c.e(f"ds_read_b128 v[{Va}:{Va+3}], v{vV} offset:{(j+1)*T}")
    c.e("s_mov_b64 exec, -1")
    ex(12)

def gen_k2():
    c = Code()
    c.e("s_cmp_ge_u32 s2, 256")
    c.e("s_cbranch_scc1 K2_END")
    c.e("s_load_dwordx2 s[4:5], s[0:1], 96")
    c.e("v_lshrrev_b32 v1, 6, v0")
    c.e("v_and_b32 v0, 63, v0")
    c.e(f"v_readfirstlane_b32 s{sW}, v1")
    c.e(f"s_and_b32 s{sT0}, s2, 31")
    c.e(f"s_lshr_b32 s{sT1}, s2, 5")
    c.e(f"s_lshr_b32 s{sT2}, s{sW}, 2")
    c.e(f"s_lshl_b32 s{sTT}, s{sT0}, 1")
    c.e(f"s_add_u32 s{sTT}, s{sTT}, s{sT2}")
    c.e(f"s_and_b32 s{sT2}, s{sW}, 3")
    c.e(f"s_lshl_b32 s{sHEAD}, s{sT1}, 2")
    c.e(f"s_add_u32 s{sHEAD}, s{sHEAD}, s{sT2}")
    c.e(f"s_lshl_b32 s{sW1K}, s{sW}, 10")
    c.e("s_waitcnt lgkmcnt(0)")
    c.stamp(0, real=True); c.stamp(1)
    srd(c, S_WS, 4, 5, WS_USED)
    a = Alloc(1, 128)
    vt, vt2, vn, vk = a.get(), a.get(), a.get(), a.get()
    vA, vB, vC = a.get(), a.get(), a.get()
    vL16 = a.get()
    vK0, vK1, vV = a.get(), a.get(), a.get()
    R = dict(S=[a.get(16, 4), a.get(16, 4)], P=a.get(8, 4), O=a.get(16, 4), K0=a.get(4, 4), K1=a.get(4, 4),
             Va=a.get(4, 4), Vb=a.get(4, 4), Q0=a.get(4, 4), Q1=a.get(4, 4), vK0=vK0, vK1=vK1, vV=vV)
    Q0, Q1, O, P = R['Q0'], R['Q1'], R['O'], R['P']
    c.e(f"v_and_b32 v{vn}, 31, v0")
    c.e(f"v_lshrrev_b32 v{vt2}, 5, v0")
    c.e(f"s_mul_i32 s{sT0}, s{sHEAD}, 20")
    c.e(f"s_mul_i32 s{sT1}, s{sTT}, {40*1024}")
    c.e(f"v_lshlrev_b32 v{vk}, 2, v{vt2}")
    c.e(f"v_add_u32 v{vk}, s{sT0}, v{vk}")
    piece_addr(c, vA, vk, vn, vt, sT1)
    c.e(f"v_add_u32 v{vk}, 8, v{vk}")
    piece_addr(c, vB, vk, vn, vt, sT1)
    c.e(f"v_mov_b32 v{vk}, s{sT0}")
    c.e(f"v_add_u32 v{vk}, 16, v{vk}")
    piece_addr(c, vC, vk, vn, vt, sT1)
    c.e(f"s_mov_b32 s{sT2}, {QF}")
    c.vmem(f"buffer_load_dwordx2 v[{Q0}:{Q0+1}], v{vA}, s[{S_WS}:{S_WS+3}], s{sT2} offen", "q")
    c.vmem(f"buffer_load_dwordx2 v[{Q0+2}:{Q0+3}], v{vB}, s[{S_WS}:{S_WS+3}], s{sT2} offen", "q")
    c.vmem(f"buffer_load_dwordx2 v[{Q1}:{Q1+1}], v{vC}, s[{S_WS}:{S_WS+3}], s{sT2} offen", "q")
    c.e(f"v_lshlrev_b32 v{vL16}, 4, v0")
    for i in range(20):
        c.e(f"s_add_u32 m0, s{sW1K}, {8192*i}")
        c.e(f"s_add_u32 s{sT2}, s{sW1K}, {KV + 8192*i}")
        c.vmem(f"buffer_load_dwordx4 v{vL16}, s[{S_WS}:{S_WS+3}], s{sT2} offen lds", f"kv{i}")
    c.e(f"v_mov_b32 v{vK0}, v{vL16}")
    c.e(f"v_lshlrev_b32 v{vK1}, 3, v{vn}")
    c.e(f"v_add_u32 v{vK1}, 1024, v{vK1}")
    c.e(f"v_lshrrev_b32 v{vt2}, 5, v0")
    c.e(f"v_mul_u32_u24 v{vV}, 20, v{vt2}")
    c.e(f"v_add_u32 v{vV}, v{vV}, v{vn}")
    c.e(f"v_lshlrev_b32 v{vV}, 4, v{vV}")
    c.e(f"v_add_u32 v{vV}, 1280, v{vV}")
    c.e(f"s_mov_b32 s{sVM}, 0x000fffff")
    c.e(f"s_mov_b32 s{sVM+1}, 0x000fffff")
    c.e(f"v_mov_b32 v{R['K1']+2}, 0x3f803f80")
    c.e(f"v_mov_b32 v{R['K1']+3}, 0x00003f80")
    c.e(f"v_cmp_eq_u32 vcc, 20, v{vn}")
    c.e(f"v_mov_b32 v{vt}, 0x3f803f80")
    c.nop(1)
    for r in range(4):
        c.e(f"v_cndmask_b32 v{R['Va']+r}, 0, v{vt}, vcc")
        c.e(f"v_cndmask_b32 v{R['Vb']+r}, 0, v{vt}, vcc")
    for r in range(16): c.e(f"v_mov_b32 v{O+r}, 0")
    for r in range(8): c.e(f"v_mov_b32 v{P+r}, 0")
    c.wait_vm("q")
    c.e(f"v_cmp_gt_u32 vcc, 32, v0")
    c.e(f"v_mov_b32 v{Q1+2}, 0")
    c.e(f"v_mov_b32 v{Q1+3}, 0")
    c.e(f"v_cndmask_b32 v{Q1}, 0, v{Q1}, vcc")
    c.e(f"v_cndmask_b32 v{Q1+1}, 0, v{Q1+1}, vcc")
    c.wait_vm("kv5")
    c.e("s_barrier")
    c.stamp(2)
    c.label("K2_PASS")
    S0 = R['S'][0]
    c.e(f"ds_read_b128 v[{R['K0']}:{R['K0']+3}], v{vK0}")
    c.e(f"ds_read_b64 v[{R['K1']}:{R['K1']+1}], v{vK1}")
    c.e("s_waitcnt lgkmcnt(0)")
    c.e(f"v_mfma_f32_32x32x16_bf16 v[{S0}:{S0+15}], v[{R['K0']}:{R['K0']+3}], v[{Q0}:{Q0+3}], 0")
    c.e(f"v_mfma_f32_32x32x16_bf16 v[{S0}:{S0+15}], v[{R['K1']}:{R['K1']+3}], v[{Q1}:{Q1+3}], v[{S0}:{S0+15}]")
    c.e(f"ds_read_b128 v[{R['K0']}:{R['K0']+3}], v{vK0} offset:2560")
    c.e(f"ds_read_b64 v[{R['K1']}:{R['K1']+1}], v{vK1} offset:2560")
    c.e(f"s_mov_b64 exec, s[{sVM}:{sVM+1}]")
    c.e(f"ds_read_b128 v[{R['Vb']}:{R['Vb']+3}], v{vV}")
    c.e(f"ds_read_b128 v[{R['Va']}:{R['Va']+3}], v{vV}")
    c.e("s_mov_b64 exec, -1")
    c.e(f"s_mov_b32 s{sIT}, 0")
    c.nop(16)
    c.label("K2_LOOP")
    for j in range(4): attn_tile(c, R, j)
    c.e(f"v_add_u32 v{vK0}, {4*2560}, v{vK0}")
    d, a_, b_ = R['pend']; c.e(f"v_cvt_pk_bf16_f32 v{d}, v{a_}, v{b_}"); R['pend'] = None
    c.e(f"v_add_u32 v{vK1}, {4*2560}, v{vK1}")
    c.e(f"v_add_u32 v{vV}, {4*2560}, v{vV}")
    c.e(f"s_add_u32 s{sIT}, s{sIT}, 1")
    c.e(f"s_cmp_lg_u32 s{sIT}, 3")
    c.e("s_cbranch_scc1 K2_NOBAR")
    c.e("s_waitcnt vmcnt(0)")
    c.e("s_barrier")
    c.label("K2_NOBAR")
    c.e(f"s_cmp_lt_u32 s{sIT}, 16")
    c.e("s_cbranch_scc1 K2_LOOP")
    c.e("s_waitcnt lgkmcnt(0)")
    c.nop(2)
    c.e(f"v_mfma_f32_32x32x16_bf16 v[{O}:{O+15}], v[{R['Vb']}:{R['Vb']+3}], v[{P+4}:{P+7}], v[{O}:{O+15}]")
    c.nop(16)
    c.stamp(3)
    c.e(f"v_mov_b32 v{vt}, v{O+8}")
    c.e(f"v_mov_b32 v{vt2}, v{O+8}")
    c.nop(2)
    c.e(f"v_permlane32_swap_b32 v{vt}, v{vt2}")
    c.nop(2)
    c.e(f"v_cmp_gt_u32 vcc, 32, v0")
    c.nop(2)
    c.e(f"v_cndmask_b32 v{vt}, v{O+8}, v{vt2}, vcc")
    c.e(f"v_rcp_f32 v{vt}, v{vt}")
    c.nop(1)
    for r in range(12): c.e(f"v_mul_f32 v{O+r}, v{O+r}, v{vt}")
    for p in range(6): c.e(f"v_cvt_pk_bf16_f32 v{O+p}, v{O+2*p}, v{O+2*p+1}")
    c.e(f"s_mov_b32 s{sT2}, {OF}")
    c.e(f"buffer_store_dwordx2 v[{O}:{O+1}], v{vA}, s[{S_WS}:{S_WS+3}], s{sT2} offen")
    c.e(f"buffer_store_dwordx2 v[{O+2}:{O+3}], v{vB}, s[{S_WS}:{S_WS+3}], s{sT2} offen")
    c.e("s_and_saveexec_b64 s[4:5], vcc")
    c.e(f"buffer_store_dwordx2 v[{O+4}:{O+5}], v{vC}, s[{S_WS}:{S_WS+3}], s{sT2} offen")
    c.e("s_mov_b64 exec, -1")
    c.stamp(4)
    c.finish(1, sW, S_WS)
    c.label("K2_END")
    c.e("s_endpgm")
    return c.text(), a.hi, K2_LDS
```

```python
from core import *
EXP = os.environ.get('EXP', '')
K3_LDS = 163840
S_WS, S_X, S_B2, S_OUT = 8, 12, 16, 20
sW, sTT, sFB, sT0, sT1, sT2, sA, sB, sN, sAS = range(40, 50)

def gen_k3():
    c = Code()
    c.e("s_cmp_ge_u32 s2, 256")
    c.e("s_cbranch_scc1 K3_END")
    c.e("s_load_dwordx2 s[4:5], s[0:1], 96")
    c.e("s_load_dwordx2 s[6:7], s[0:1], 0")
    c.e("s_load_dwordx4 s[24:27], s[0:1], 72")
    c.e("v_lshrrev_b32 v1, 6, v0")
    c.e("v_and_b32 v0, 63, v0")
    c.e(f"v_readfirstlane_b32 s{sW}, v1")
    c.e(f"s_and_b32 s{sTT}, s2, 63")
    c.e(f"s_lshr_b32 s{sFB}, s2, 6")
    c.e("s_waitcnt lgkmcnt(0)")
    c.stamp(0, real=True); c.stamp(1)
    srd(c, S_WS, 4, 5, WS_USED)
    srd(c, S_X, 6, 7, M*D*2)
    srd(c, S_B2, 24, 25, D*2)
    srd(c, S_OUT, 26, 27, M*D*2)
    a = Alloc(1, 256)
    vt, vt2, vL16 = a.get(), a.get(), a.get()
    acc = [a.get(16, 4) for _ in range(5)]
    fA = [[a.get(4, 4) for _ in range(5)] for _ in range(2)]
    fB = [a.get(4, 4) for _ in range(2)]
    c.e(f"v_lshlrev_b32 v{vL16}, 4, v0")
    for t in range(5):
        for r in range(16): c.e(f"v_mov_b32 v{acc[t]+r}, 0")
    def loads(b, tag):
        c.vmem(f"buffer_load_dwordx4 v[{fB[b]}:{fB[b]+3}], v{vL16}, s[{S_WS}:{S_WS+3}], s{sB} offen", tag)
        for t in range(5):
            if t < 4: c.vmem(f"buffer_load_dwordx4 v[{fA[b][t]}:{fA[b][t]+3}], v{vL16}, s[{S_WS}:{S_WS+3}], s{sA} offen offset:{1024*t}", tag)
            else:
                c.e(f"s_add_u32 s{sAS}, s{sA}, 4096")
                c.vmem(f"buffer_load_dwordx4 v[{fA[b][t]}:{fA[b][t]+3}], v{vL16}, s[{S_WS}:{S_WS+3}], s{sAS} offen", tag)
        c.e(f"s_add_u32 s{sA}, s{sA}, {8*5120}")
        c.e(f"s_add_u32 s{sB}, s{sB}, {8*1024}")
    def mfmas(b):
        for t in range(5):
            c.e(f"v_mfma_f32_32x32x16_bf16 v[{acc[t]}:{acc[t]+15}], v[{fA[b][t]}:{fA[b][t]+3}], v[{fB[b]}:{fB[b]+3}], v[{acc[t]}:{acc[t]+15}]")
    def seg(Abase, Bbase, ns, nsteps, tag):
        c.e(f"s_mul_i32 s{sA}, s{sFB}, {ns*5120}")
        c.e(f"s_mul_i32 s{sT0}, s{sW}, 5120")
        c.e(f"s_add_u32 s{sA}, s{sA}, s{sT0}")
        c.e(f"s_add_u32 s{sA}, s{sA}, {Abase}")
        c.e(f"s_mul_i32 s{sB}, s{sTT}, {ns*1024}")
        c.e(f"s_lshl_b32 s{sT0}, s{sW}, 10")
        c.e(f"s_add_u32 s{sB}, s{sB}, s{sT0}")
        c.e(f"s_add_u32 s{sB}, s{sB}, {Bbase}")
        loads(0, f"{tag}0")
        for i in range(nsteps):
            if i + 1 < nsteps: loads((i + 1) & 1, f"{tag}{i+1}")
            c.wait_vm(f"{tag}{i}")
            mfmas(i & 1)
    seg(WOF, OF, 40, 5, "o")
    seg(W2F, HF, 108, 13, "h")
    c.e(f"s_cmp_ge_u32 s{sW}, 4")
    c.e("s_cbranch_scc1 K3_RED")
    loads(0, "x"); c.wait_vm("x"); mfmas(0)
    c.label("K3_RED")
    c.stamp(2)
    c.nop(16)
    c.e(f"s_mul_i32 s{sT0}, s{sW}, 20480")
    c.e(f"v_add_u32 v{vt}, s{sT0}, v{vL16}")
    for t in range(5):
        for j in range(4):
            c.e(f"ds_write_b128 v{vt}, v[{acc[t]+4*j}:{acc[t]+4*j+3}] offset:{(t*4+j)*1024}")
    c.e("s_waitcnt lgkmcnt(0)")
    c.e("s_barrier")
    xr = a.get(2, 2); br = a.get(2, 2); sm = a.get(4, 4); rd = [a.get(4, 4) for _ in range(8)]
    vo = a.get()
    for i in range(3):
        if i == 2:
            c.e(f"s_cmp_ge_u32 s{sW}, 4")
            c.e("s_cbranch_scc1 K3_DONE")
        c.e(f"s_add_u32 s{sT0}, s{sW}, {8*i}")
        c.e(f"s_lshl_b32 s{sT1}, s{sT0}, 10")
        c.e(f"v_add_u32 v{vt}, s{sT1}, v{vL16}")
        c.e(f"v_add_u32 v{vt2}, {4*20480}, v{vt}")
        for k in range(8):
            base = vt if k < 4 else vt2
            off = (k % 4)*20480
            if off > 65535:
                raise Exception
            c.e(f"ds_read_b128 v[{rd[k]}:{rd[k]+3}], v{base} offset:{off}")
        c.e(f"s_mul_i32 s{sT1}, s{sFB}, 160")
        c.e(f"s_lshl_b32 s{sT2}, s{sT0}, 3")
        c.e(f"s_add_u32 s{sT1}, s{sT1}, s{sT2}")
        c.e(f"s_lshl_b32 s{sT1}, s{sT1}, 1")
        c.e(f"v_lshrrev_b32 v{vo}, 5, v0")
        c.e(f"v_lshlrev_b32 v{vo}, 3, v{vo}")
        c.e(f"v_add_u32 v{vo}, s{sT1}, v{vo}")
        c.e(f"buffer_load_dwordx2 v[{br}:{br+1}], v{vo}, s[{S_B2}:{S_B2+3}], 0 offen")
        c.e(f"v_and_b32 v{vt2}, 31, v0")
        c.e(f"s_lshl_b32 s{sT2}, s{sTT}, 5")
        c.e(f"v_add_u32 v{vt2}, s{sT2}, v{vt2}")
        c.e(f"v_mul_u32_u24 v{vt2}, 1280, v{vt2}")
        c.e(f"v_add_u32 v{vo}, v{vo}, v{vt2}")
        c.e(f"buffer_load_dwordx2 v[{xr}:{xr+1}], v{vo}, s[{S_X}:{S_X+3}], 0 offen")
        c.e("s_waitcnt lgkmcnt(0)")
        for r in range(4):
            c.e(f"v_add_f32 v{sm+r}, v{rd[0]+r}, v{rd[1]+r}")
            for k in range(2, 8): c.e(f"v_add_f32 v{sm+r}, v{sm+r}, v{rd[k]+r}")
        c.e("s_waitcnt vmcnt(0)")
        for src in (xr, br):
            for r in range(4):
                if r & 1: c.e(f"v_and_b32 v{vt}, 0xffff0000, v{src+(r>>1)}")
                else: c.e(f"v_lshlrev_b32 v{vt}, 16, v{src+(r>>1)}")
                c.e(f"v_add_f32 v{sm+r}, v{sm+r}, v{vt}")
        c.e(f"v_cvt_pk_bf16_f32 v{sm}, v{sm}, v{sm+1}")
        c.e(f"v_cvt_pk_bf16_f32 v{sm+1}, v{sm+2}, v{sm+3}")
        c.e(f"buffer_store_dwordx2 v[{sm}:{sm+1}], v{vo}, s[{S_OUT}:{S_OUT+3}], 0 offen")
        c.nop(2)
    c.label("K3_DONE")
    c.stamp(3)
    c.finish(2, sW, S_WS)
    c.label("K3_END")
    c.e("s_endpgm")
    return c.text(), a.hi, K3_LDS
```

```python
import sys
from core import *
import k1
def build(which=("k1",)):
    launches = []; body = ""; desc = ""
    if "k1" in which:
        t, hi = k1.gen_k1()
        launches.append(f"; @launch kernel=k1_kernel grid=(256,1,1) block=(768,1,1) lds={k1.K1_LDS}")
        body += kernel_header("k1_kernel") + t
        desc += kernel_desc("k1_kernel", hi)
    if "k2" in which:
        import k2
        t, hi, lds = k2.gen_k2()
        launches.append(f"; @launch kernel=k2_kernel grid=(256,1,1) block=(512,1,1) lds={lds}")
        body += kernel_header("k2_kernel") + t
        desc += kernel_desc("k2_kernel", hi)
    if "k3" in which:
        import k3
        t, hi, lds = k3.gen_k3()
        launches.append(f"; @launch kernel=k3_kernel grid=(256,1,1) block=(512,1,1) lds={lds}")
        body += kernel_header("k3_kernel") + t
        desc += kernel_desc("k3_kernel", hi)
    s = "\n".join(launches) + "\n"
    s += '.amdgcn_target "amdgcn-amd-amdhsa--gfx950"\n.text\n' + body
    s += '.section .rodata,"a"\n' + desc
    return s
if __name__ == "__main__":
    print(build(sys.argv[1].split(",")))
```

```python
from core import *
EXP = os.environ.get('EXP', '')

SLOT = 36864
XOFF = 20480
CSP  = 4*SLOT
ST   = CSP + 5120
RS   = ST + 2048
K1_LDS = RS + 512
EPS = 1e-5
QSCALE = (20 ** -0.5) * math.log2(math.e)

S_X, S_W, S_O, S_B, S_SJ, S_SO = 8, 12, 16, 20, 44, 48
sW, sTW, sFH, sTB, sFT, sSTR, sWOFF, sXOFF, sW1K, sW2K, sOUT, sISH, sT0, sT1, sT2, sT3, sKB, sCH, sXB, sMASK = range(52, 72)

def k1_prologue(c):
    c.e("s_cmp_ge_u32 s2, 256")
    c.e("s_cbranch_scc1 K1_END")
    c.e("s_load_dwordx4 s[24:27], s[0:1], 0")
    c.e("s_load_dwordx4 s[28:31], s[0:1], 16")
    c.e("s_load_dwordx2 s[32:33], s[0:1], 32")
    c.e("s_load_dwordx4 s[36:39], s[0:1], 48")
    c.e("s_load_dwordx2 s[40:41], s[0:1], 64")
    c.e("s_load_dwordx2 s[42:43], s[0:1], 96")
    c.e("v_lshrrev_b32 v1, 6, v0")
    c.e("v_and_b32 v0, 63, v0")
    c.e(f"v_readfirstlane_b32 s{sW}, v1")
    c.e("s_and_b32 s3, s2, 7")
    c.e(f"s_lshr_b32 s{sT0}, s2, 3")
    c.e(f"s_and_b32 s{sTB}, s3, 1")
    c.e(f"s_lshl_b32 s{sTB}, s{sTB}, 3")
    c.e(f"s_and_b32 s{sT1}, s{sT0}, 7")
    c.e(f"s_add_u32 s{sTB}, s{sTB}, s{sT1}")
    c.e(f"s_lshr_b32 s{sFT}, s3, 1")
    c.e(f"s_lshl_b32 s{sFT}, s{sFT}, 2")
    c.e(f"s_lshr_b32 s{sT1}, s{sT0}, 3")
    c.e(f"s_add_u32 s{sFT}, s{sFT}, s{sT1}")
    c.e(f"s_and_b32 s{sTW}, s{sW}, 3")
    c.e(f"s_lshr_b32 s{sFH}, s{sW}, 2")
    c.e("s_waitcnt lgkmcnt(0)")
    c.stamp(0, real=True)
    c.stamp(1)
    srd(c, S_X, 24, 25, M*D*2)
    srd(c, S_O, 42, 43, WS_USED)
    c.e(f"s_cmp_lg_u32 s{sW}, 0")
    c.e("s_cbranch_scc1 K1_NOFLAG")
    c.e(f"s_lshl_b32 s{sT0}, s2, 7")
    c.e(f"s_add_u32 s{sT0}, s{sT0}, {FLAGS}")
    c.e("v_mov_b32 v1, 0")
    c.e("s_mov_b64 exec, 1")
    c.e(f"buffer_store_dword v1, v1, s[{S_O}:{S_O+3}], s{sT0} offen")
    c.e("s_mov_b64 exec, -1")
    c.label("K1_NOFLAG")

def x_dma_addr(c, vXa, vXb, vt):
    c.e(f"s_lshl_b32 s{sT0}, s{sTB}, 7")
    c.e(f"s_lshl_b32 s{sT1}, s{sTW}, 5")
    c.e(f"s_add_u32 s{sT0}, s{sT0}, s{sT1}")
    c.e(f"v_lshrrev_b32 v{vt}, 3, v0")
    c.e(f"v_add_u32 v{vt}, s{sT0}, v{vt}")
    c.e(f"v_mul_u32_u24 v{vXa}, 1280, v{vt}")
    c.e(f"v_and_b32 v{vt}, 7, v0")
    c.e(f"v_lshrrev_b32 v{vXb}, 4, v0")
    c.e(f"v_xor_b32 v{vt}, v{vt}, v{vXb}")
    c.e(f"v_lshlrev_b32 v{vt}, 4, v{vt}")
    c.e(f"v_xor_b32 v{vXb}, 64, v{vt}")
    c.e(f"v_add_u32 v{vXb}, v{vXa}, v{vXb}")
    c.e(f"v_add_u32 v{vXb}, 10240, v{vXb}")
    c.e(f"v_add_u32 v{vXa}, v{vXa}, v{vt}")

def x_read_addr(c, vRX, vt, vt2):
    c.e(f"v_and_b32 v{vt}, 31, v0")
    c.e(f"v_bfe_u32 v{vt2}, v0, 1, 3")
    c.e(f"v_lshrrev_b32 v{vRX}, 5, v0")
    c.e(f"v_xor_b32 v{vt2}, v{vt2}, v{vRX}")
    c.e(f"v_lshlrev_b32 v{vt2}, 4, v{vt2}")
    c.e(f"s_lshl_b32 s{sT0}, s{sTW}, 5")
    c.e(f"v_add_u32 v{vt}, s{sT0}, v{vt}")
    c.e(f"v_lshlrev_b32 v{vt}, 7, v{vt}")
    c.e(f"v_add_u32 v{vt}, v{vt}, v{vt2}")
    c.e(f"v_add_u32 v{vRX}, {XOFF}, v{vt}")
    for k in range(1, 4):
        c.e(f"v_xor_b32 v{vRX+k}, {32*k}, v{vRX}")
    for k in range(4):
        c.e(f"v_add_u32 v{vRX+4+k}, {2*SLOT}, v{vRX+k}")

def tr_addr(c, vd, rowstride, hmul, vt):
    c.e(f"v_lshrrev_b32 v{vd}, 5, v0")
    c.e(f"v_mul_u32_u24 v{vd}, {hmul}, v{vd}")
    c.e(f"v_bfe_u32 v{vt}, v0, 2, 2")
    c.e(f"v_add_u32 v{vd}, v{vd}, v{vt}")
    c.e(f"v_mul_u32_u24 v{vd}, {rowstride}, v{vd}")
    c.e(f"v_bfe_u32 v{vt}, v0, 4, 1")
    c.e(f"v_lshl_add_u32 v{vd}, v{vt}, 5, v{vd}")
    c.e(f"v_and_b32 v{vt}, 3, v0")
    c.e(f"v_lshl_add_u32 v{vd}, v{vt}, 3, v{vd}")

def x_dma(c, vXa, vXb, chunk, tag):
    slot = chunk % 4
    c.e(f"s_lshl_b32 s{sXB}, s{sCH}, 7")
    for i in range(4):
        c.e(f"s_add_u32 m0, s{sW2K}, {slot*SLOT + XOFF + 1024*i}")
        c.e(f"s_add_u32 s{sXOFF}, s{sXB}, {(i >> 1)*16*1280}")
        c.vmem(f"buffer_load_dwordx4 v{vXb if i & 1 else vXa}, s[{S_X}:{S_X+3}], s{sXOFF} offen lds", tag)
    c.e(f"s_add_u32 s{sCH}, s{sCH}, 1")
    c.e(f"s_cmp_eq_u32 s{sCH}, 10")
    c.e(f"s_cselect_b32 s{sCH}, 0, s{sCH}")

def split_hi_lo(c, val, hi, lo, tmp):
    c.e(f"v_cvt_pk_bf16_f32 v{tmp}, v{val}, v{val}")
    c.e(f"v_and_b32 v{hi}, 0xffff0000, v{tmp}")
    c.e(f"v_sub_f32 v{lo}, v{val}, v{hi}")

def token_stats(c, vS, vQ, va, vb, vc_, vd):
    c.e(f"v_add_f32 v{vS}, v{vS}, v{vS+1}")
    c.e(f"v_add_f32 v{vQ}, v{vQ}, v{vQ+1}")
    c.e(f"v_mov_b32 v{va}, v{vS}")
    c.e(f"v_mov_b32 v{vb}, v{vQ}")
    c.nop(2)
    c.e(f"v_permlane32_swap_b32 v{vS}, v{va}")
    c.e(f"v_permlane32_swap_b32 v{vQ}, v{vb}")
    c.nop(2)
    c.e(f"v_add_f32 v{vS}, v{vS}, v{va}")
    c.e(f"v_add_f32 v{vQ}, v{vQ}, v{vb}")
    c.e(f"v_mul_f32 v{va}, {fhex(1.0/640)}, v{vS}")
    c.e(f"v_mul_f32 v{vQ}, {fhex(1.0/640)}, v{vQ}")
    c.e(f"v_fma_f32 v{vQ}, -v{va}, v{va}, v{vQ}")
    c.e(f"v_max_f32 v{vQ}, 0, v{vQ}")
    c.e(f"v_add_f32 v{vQ}, {fhex(EPS)}, v{vQ}")
    c.e(f"v_rsq_f32 v{vb}, v{vQ}")
    c.nop(1)
    c.e(f"v_mul_f32 v{vc_}, v{vQ}, v{vb}")

def build_Baug(c, vB, vmean, vstd, t0, t1, t2, t3):
    c.e(f"v_sub_f32 v{t0}, 0, v{vmean}")
    split_hi_lo(c, t0, t1, t2, t3)
    c.e(f"v_cvt_pk_bf16_f32 v{vB}, v{t1}, v{t2}")
    split_hi_lo(c, vstd, t0, t2, t3)
    c.e(f"v_cvt_pk_bf16_f32 v{vB+1}, v{t1}, v{t0}")
    c.e(f"v_mov_b32 v{vB+3}, 0")
    c.e(f"v_cvt_pk_bf16_f32 v{vB+2}, v{t2}, v{vB+3}")

def build_Aaug(c, vA, vcs, vbias, t0, t1, t2):
    c.e(f"v_cvt_pk_bf16_f32 v{vA}, v{vcs}, v{vcs}")
    c.e(f"v_and_b32 v{t0}, 0xffff0000, v{vA}")
    c.e(f"v_sub_f32 v{t1}, v{vcs}, v{t0}")
    c.e(f"v_cvt_pk_bf16_f32 v{vA+1}, v{t1}, v{vbias}")
    c.e(f"v_mov_b32 v{vA+3}, 0")
    c.e(f"v_cvt_pk_bf16_f32 v{vA+2}, v{vbias}, v{vA+3}")

def k1_main(c, fh):
    tiles = [0, 1, 2] if fh == 0 else [3, 4]
    nt = len(tiles)
    L = f"K1M{fh}"
    a = Alloc(1, 168)
    vt, vt2 = a.get(), a.get()
    vRW = a.get(2)
    vRX = a.get(8)
    vL16 = a.get()
    vOnes = a.get()
    vS = a.get(2); vQ = a.get(2); vU = a.get(4)
    vCS = [a.get() for _ in range(nt)]
    vBias = [a.get() for _ in range(nt)]
    acc = [a.get(16, 4) for _ in range(nt)]
    fW = [[a.get(4, 4) for _ in range(nt)] for _ in range(2)]
    fX = [a.get(4, 4) for _ in range(2)]
    if fh == 1 and 'noprioB' not in EXP: c.e("s_setprio 1")
    c.e(f"s_mov_b32 s{sMASK}, 0xffff0000")
    c.e(f"v_lshlrev_b32 v{vL16}, 4, v0")
    c.e(f"v_and_b32 v{vt}, 31, v0")
    c.e(f"v_lshlrev_b32 v{vt}, 1, v{vt}")
    for i, t in enumerate(tiles):
        c.vmem(f"buffer_load_ushort v{vBias[i]}, v{vt}, s[{S_B}:{S_B+3}], 0 offen offset:{64*t}", "bias")
    tr_addr(c, vRW, 320, 8, vt)
    c.e(f"v_add_u32 v{vRW+1}, {2*SLOT}, v{vRW}")
    x_read_addr(c, vRX, vt, vt2)
    c.e(f"v_mov_b32 v{vOnes}, 0x3f803f80")
    for r in (vS, vS+1, vQ, vQ+1): c.e(f"v_mov_b32 v{r}, 0")
    for t in range(nt):
        for i in range(16): c.e(f"v_mov_b32 v{acc[t]+i}, 0")

    def reads(n):
        ch, sp = divmod(n, 4); slot = ch % 4; b = n & 1
        hi = slot >> 1; base = (slot & 1) * SLOT
        c.lds(f"ds_read_b128 v[{fX[b]}:{fX[b]+3}], v{vRX+4*hi+sp} offset:{base}", n)
        for i, t in enumerate(tiles):
            off = base + sp*5120 + 64*t
            c.lds(f"ds_read_b64_tr_b16 v[{fW[b][i]}:{fW[b][i]+1}], v{vRW+hi} offset:{off}", n)
            c.lds(f"ds_read_b64_tr_b16 v[{fW[b][i]+2}:{fW[b][i]+3}], v{vRW+hi} offset:{off+1280}", n)

    c.e("s_barrier")
    c.stamp(2)
    reads(0)
    for n in range(40):
        ch, sp = divmod(n, 4); b = n & 1
        c.wait_lg(n)
        if sp == 3 and ch + 1 < 10:
            c.e("s_barrier")
        work = []
        if fh == 1 and 'nostats' not in EXP:
            for r in range(4):
                lo, hi = vU + 2*(r & 1), vU + 2*(r & 1) + 1
                work.append(f"v_lshlrev_b32 v{lo}, 16, v{fX[b]+r}")
                work.append(f"v_and_b32 v{hi}, s{sMASK}, v{fX[b]+r}")
                work.append(f"v_add_f32 v{vS}, v{vS}, v{lo}")
                work.append(f"v_fmac_f32 v{vQ}, v{lo}, v{lo}")
                work.append(f"v_add_f32 v{vS+1}, v{vS+1}, v{hi}")
                work.append(f"v_fmac_f32 v{vQ+1}, v{hi}, v{hi}")
        save = c.lines; c.lines = []
        if n + 1 < 40: reads(n + 1)
        rd = c.lines; c.lines = save
        mf = [f"v_mfma_f32_32x32x16_bf16 v[{acc[i]}:{acc[i]+15}], v[{fW[b][i]}:{fW[b][i]+3}], v[{fX[b]}:{fX[b]+3}], v[{acc[i]}:{acc[i]+15}]" for i in range(nt)]
        if fh == 0:
            c.e(mf[0]); c.lines += rd
            for m_ in mf[1:]: c.e(m_)
        else:
            c.lines += rd
            for w_ in work[:12]: c.e(w_)
            c.e(mf[0])
            for w_ in work[12:]: c.e(w_)
            c.e(mf[1])
    c.wait_vm("bias")
    c.stamp(3)
    tmp = a.get(8, 4)
    if fh == 1:
        token_stats(c, vS, vQ, tmp, tmp+1, tmp+2, tmp+3)
        c.e(f"v_and_b32 v{vt}, 31, v0")
        c.e(f"s_lshl_b32 s{sT0}, s{sTW}, 5")
        c.e(f"v_add_u32 v{vt}, s{sT0}, v{vt}")
        c.e(f"v_lshlrev_b32 v{vt}, 4, v{vt}")
        c.e(f"v_add_u32 v{vt}, {ST}, v{vt}")
        c.lds(f"ds_write_b128 v{vt}, v[{tmp}:{tmp+3}]")
    c.wait_lg0()
    c.e("s_barrier")
    c.e(f"v_and_b32 v{vt}, 31, v0")
    c.e(f"s_lshl_b32 s{sT0}, s{sTW}, 5")
    c.e(f"v_add_u32 v{vt2}, s{sT0}, v{vt}")
    c.e(f"v_lshlrev_b32 v{vt2}, 4, v{vt2}")
    c.e(f"v_add_u32 v{vt2}, {ST}, v{vt2}")
    stt = a.get(4, 4)
    c.lds(f"ds_read_b128 v[{stt}:{stt+3}], v{vt2}")
    c.e(f"v_lshlrev_b32 v{vt}, 5, v{vt}")
    c.e(f"v_add_u32 v{vt}, {CSP}, v{vt}")
    csr = fW[0] + fW[1]
    for i, t in enumerate(tiles):
        c.lds(f"ds_read_b128 v[{fW[0][i]}:{fW[0][i]+3}], v{vt} offset:{t*1024}")
        c.lds(f"ds_read_b128 v[{fW[1][i]}:{fW[1][i]+3}], v{vt} offset:{t*1024+16}")
    c.wait_lg0()
    c.e(f"v_cmp_gt_u32 vcc, 32, v0")
    for i in range(nt):
        A, B = fW[0][i], fW[1][i]
        c.e(f"v_add_f32 v{A}, v{A}, v{A+1}"); c.e(f"v_add_f32 v{A+2}, v{A+2}, v{A+3}")
        c.e(f"v_add_f32 v{B}, v{B}, v{B+1}"); c.e(f"v_add_f32 v{B+2}, v{B+2}, v{B+3}")
        c.e(f"v_add_f32 v{A}, v{A}, v{A+2}"); c.e(f"v_add_f32 v{B}, v{B}, v{B+2}")
        c.e(f"v_add_f32 v{A}, v{A}, v{B}")
        c.e(f"v_cndmask_b32 v{vCS[i]}, 0, v{A}, vcc")
        c.e(f"v_lshlrev_b32 v{vBias[i]}, 16, v{vBias[i]}")
        c.e(f"v_cndmask_b32 v{vBias[i]}, 0, v{vBias[i]}, vcc")
    vB = fX[0]
    build_Baug(c, vB, stt, stt+2, tmp, tmp+1, tmp+2, tmp+3)
    for i in range(nt):
        build_Aaug(c, fW[0][i], vCS[i], vBias[i], tmp, tmp+1, tmp+2)
    c.nop(2)
    for i in range(nt):
        c.e(f"v_mfma_f32_32x32x16_bf16 v[{acc[i]}:{acc[i]+15}], v[{fW[0][i]}:{fW[0][i]+3}], v[{vB}:{vB+3}], v[{acc[i]}:{acc[i]+15}]")
    rs = a.get(2, 2)
    kc = a.get(4, 2)
    one = a.get(2, 2)
    c.e(f"v_mov_b32 v{rs}, v{stt+1}")
    c1 = -2*math.sqrt(2/math.pi)*math.log2(math.e); c2 = c1*0.044715
    c.e(f"v_mov_b32 v{kc}, {fhex(c1)}"); c.e(f"v_mov_b32 v{kc+1}, {fhex(c1)}")
    c.e(f"v_mov_b32 v{kc+2}, {fhex(c2)}"); c.e(f"v_mov_b32 v{kc+3}, {fhex(c2)}")
    c.e(f"v_mov_b32 v{one}, 1.0"); c.e(f"v_mov_b32 v{one+1}, 1.0")
    c.e(f"s_cmp_eq_u32 s{sISH}, 0")
    c.e(f"s_cbranch_scc0 {L}_H")
    c.e(f"v_mul_f32 v{rs}, {fhex(QSCALE)}, v{rs}")
    c.e(f"v_mov_b32 v{rs+1}, v{rs}")
    c.nop(16)
    ob = a.get(8, 4)
    for i, t in enumerate(tiles):
        A = acc[i]
        for p in range(8):
            c.e(f"v_pk_mul_f32 v[{A+2*p}:{A+2*p+1}], v[{A+2*p}:{A+2*p+1}], v[{rs}:{rs+1}]")
        for p in range(8):
            c.e(f"v_cvt_pk_bf16_f32 v{A+p}, v{A+2*p}, v{A+2*p+1}")
        c.e(f"s_add_u32 s{sT0}, s{sOUT}, {2048*t}")
        c.e(f"buffer_store_dwordx4 v[{A}:{A+3}], v{vL16}, s[{S_O}:{S_O+3}], s{sT0} offen")
        c.e(f"buffer_store_dwordx4 v[{A+4}:{A+7}], v{vL16}, s[{S_O}:{S_O+3}], s{sT0} offen offset:1024")
    c.stamp(4)
    c.finish(0, sW, S_O)
    c.label(f"{L}_H")
    c.e(f"v_mov_b32 v{rs+1}, v{rs}")
    c.nop(16)
    g = a.get(8, 2)
    for i, t in enumerate(tiles):
        A = acc[i]
        if t == 4:
            c.e(f"s_cmp_eq_u32 s{sFT}, 14")
            c.e(f"s_cbranch_scc1 {L}_done")
        for q in range(4):
            P = [A+4*q, A+4*q+2]
            for u, z in enumerate(P):
                c.e(f"v_pk_mul_f32 v[{z}:{z+1}], v[{z}:{z+1}], v[{rs}:{rs+1}]")
            for u, z in enumerate(P):
                c.e(f"v_pk_mul_f32 v[{g+2*u}:{g+2*u+1}], v[{z}:{z+1}], v[{z}:{z+1}]")
            for u, z in enumerate(P):
                c.e(f"v_pk_fma_f32 v[{g+2*u}:{g+2*u+1}], v[{g+2*u}:{g+2*u+1}], v[{kc+2}:{kc+3}], v[{kc}:{kc+1}]")
            for u, z in enumerate(P):
                c.e(f"v_pk_mul_f32 v[{g+2*u}:{g+2*u+1}], v[{g+2*u}:{g+2*u+1}], v[{z}:{z+1}]")
            for u in range(4): c.e(f"v_exp_f32 v{g+u}, v{g+u}")
            c.e("s_nop 0")
            for u in range(2):
                c.e(f"v_pk_add_f32 v[{g+2*u}:{g+2*u+1}], v[{g+2*u}:{g+2*u+1}], v[{one}:{one+1}]")
            for u in range(4): c.e(f"v_rcp_f32 v{g+u}, v{g+u}")
            c.e("s_nop 0")
            for u, z in enumerate(P):
                c.e(f"v_pk_mul_f32 v[{z}:{z+1}], v[{z}:{z+1}], v[{g+2*u}:{g+2*u+1}]")
            for u, z in enumerate(P):
                c.e(f"v_cvt_pk_bf16_f32 v{A+2*q+u}, v{z}, v{z+1}")
        c.e(f"s_add_u32 s{sT0}, s{sOUT}, {2048*t}")
        c.e(f"buffer_store_dwordx4 v[{A}:{A+3}], v{vL16}, s[{S_O}:{S_O+3}], s{sT0} offen")
        c.e(f"buffer_store_dwordx4 v[{A+4}:{A+7}], v{vL16}, s[{S_O}:{S_O+3}], s{sT0} offen offset:1024")
    c.label(f"{L}_done")
    c.stamp(4)
    c.finish(0, sW, S_O)
    return a.hi

def k1_kv(c, fh):
    L = f"K1KV{fh}"
    a = Alloc(1, 168)
    vt, vt2 = a.get(), a.get()
    vRW = a.get()
    vRX = a.get(8)
    vL16 = a.get()
    vOnes = a.get()
    vS = a.get(2); vQ = a.get(2); vCS = a.get()
    acc = a.get(16, 4)
    fW = [a.get(4, 4) for _ in range(2)]
    fX = [a.get(4, 4) for _ in range(2)]
    c.e(f"v_lshlrev_b32 v{vL16}, 4, v0")
    tr_addr(c, vRW, 40, 8, vt)
    c.e(f"v_add_u32 v{vRW}, {2*fh*SLOT}, v{vRW}")
    x_read_addr(c, vRX, vt, vt2)
    c.e(f"v_mov_b32 v{vOnes}, 0x3f803f80")
    for r in (vS, vS+1, vQ, vQ+1, vCS): c.e(f"v_mov_b32 v{r}, 0")
    for i in range(16): c.e(f"v_mov_b32 v{acc+i}, 0")
    def reads(n):
        ch, sp = divmod(n, 4); slot = ch % 4; b = n & 1
        hi = slot >> 1; base = (slot & 1) * SLOT
        c.lds(f"ds_read_b128 v[{fX[b]}:{fX[b]+3}], v{vRX+4*hi+sp} offset:{base}", n)
        hf = n // 20; k0 = (n % 20) * 16
        off = hf*SLOT + k0*40
        c.lds(f"ds_read_b64_tr_b16 v[{fW[b]}:{fW[b]+1}], v{vRW} offset:{off}", n)
        c.lds(f"ds_read_b64_tr_b16 v[{fW[b]+2}:{fW[b]+3}], v{vRW} offset:{off+160}", n)
    c.e("s_barrier")
    reads(0)
    for n in range(40):
        ch, sp = divmod(n, 4); b = n & 1
        c.wait_lg(n)
        if sp == 3 and ch + 1 < 10:
            c.e("s_barrier")
        if n + 1 < 40: reads(n + 1)
        if fh == 0:
            c.e(f"v_mfma_f32_32x32x16_bf16 v[{acc}:{acc+15}], v[{fW[b]}:{fW[b]+3}], v[{fX[b]}:{fX[b]+3}], v[{acc}:{acc+15}]")
        else:
            c.e(f"v_mfma_f32_32x32x16_bf16 v[{acc}:{acc+15}], v[{fX[b]}:{fX[b]+3}], v[{fW[b]}:{fW[b]+3}], v[{acc}:{acc+15}]")
        for r in range(4):
            c.e(f"v_dot2_f32_bf16 v{vS+(r&1)}, v{fX[b]+r}, v{vOnes}, v{vS+(r&1)}")
            c.e(f"v_dot2_f32_bf16 v{vQ+(r&1)}, v{fX[b]+r}, v{fX[b]+r}, v{vQ+(r&1)}")
            c.e(f"v_dot2_f32_bf16 v{vCS}, v{fW[b]+r}, v{vOnes}, v{vCS}")
    tmp = a.get(8, 4)
    c.nop(4)
    token_stats(c, vS, vQ, tmp, tmp+1, tmp+2, tmp+3)
    c.e(f"v_mov_b32 v{vt}, v{vCS}")
    c.nop(2)
    c.e(f"v_permlane32_swap_b32 v{vCS}, v{vt}")
    c.nop(2)
    c.e(f"v_add_f32 v{vCS}, v{vCS}, v{vt}")
    c.e(f"v_cmp_gt_u32 vcc, 32, v0")
    c.nop(2)
    c.e(f"v_cndmask_b32 v{vCS}, 0, v{vCS}, vcc")
    c.e(f"v_mov_b32 v{vt}, 0")
    t2 = a.get(4, 4)
    build_Baug(c, fX[0], tmp, tmp+2, t2, t2+1, t2+2, t2+3)
    build_Aaug(c, fW[0], vCS, vt, t2, t2+1, t2+2)
    c.nop(2)
    kvb = f"s{sOUT}"
    if fh == 0:
        c.e(f"v_mfma_f32_32x32x16_bf16 v[{acc}:{acc+15}], v[{fW[0]}:{fW[0]+3}], v[{fX[0]}:{fX[0]+3}], v[{acc}:{acc+15}]")
        c.nop(16)
        for r in range(12):
            c.e(f"v_mul_f32 v{acc+r}, v{acc+r}, v{tmp+1}")
        for p in range(6):
            c.e(f"v_cvt_pk_bf16_f32 v{acc+p}, v{acc+2*p}, v{acc+2*p+1}")
        c.e(f"buffer_store_dwordx4 v[{acc}:{acc+3}], v{vL16}, s[{S_O}:{S_O+3}], {kvb} offen")
        c.e(f"v_lshlrev_b32 v{vt}, 3, v0")
        c.e(f"v_cmp_gt_u32 vcc, 32, v0")
        c.e(f"s_and_saveexec_b64 s[4:5], vcc")
        c.e(f"buffer_store_dwordx2 v[{acc+4}:{acc+5}], v{vt}, s[{S_O}:{S_O+3}], {kvb} offen offset:1024")
        c.finish(0, sW, S_O)
    else:
        c.e(f"v_mfma_f32_32x32x16_bf16 v[{acc}:{acc+15}], v[{fX[0]}:{fX[0]+3}], v[{fW[0]}:{fW[0]+3}], v[{acc}:{acc+15}]")
        c.e(f"v_and_b32 v{vt}, 31, v0")
        c.e(f"s_lshl_b32 s{sT0}, s{sTW}, 5")
        c.e(f"v_add_u32 v{vt}, s{sT0}, v{vt}")
        c.e(f"v_lshlrev_b32 v{vt}, 2, v{vt}")
        c.e(f"v_add_u32 v{vt}, {RS}, v{vt}")
        c.lds(f"ds_write_b32 v{vt}, v{tmp+1}")
        c.wait_lg0()
        c.e(f"v_lshrrev_b32 v{vt}, 5, v0")
        c.e(f"v_lshlrev_b32 v{vt}, 4, v{vt}")
        c.e(f"s_lshl_b32 s{sT0}, s{sTW}, 7")
        c.e(f"v_add_u32 v{vt}, s{sT0}, v{vt}")
        c.e(f"v_add_u32 v{vt}, {RS}, v{vt}")
        rr = a.get(16, 4)
        for j in range(4):
            c.lds(f"ds_read_b128 v[{rr+4*j}:{rr+4*j+3}], v{vt} offset:{32*j}")
        c.wait_lg0()
        c.nop(16)
        for r in range(16):
            c.e(f"v_mul_f32 v{acc+r}, v{acc+r}, v{rr+r}")
        for p in range(8):
            c.e(f"v_cvt_pk_bf16_f32 v{acc+p}, v{acc+2*p}, v{acc+2*p+1}")
        c.e(f"v_and_b32 v{vt}, 31, v0")
        c.e(f"v_lshrrev_b32 v{vt2}, 5, v0")
        c.e(f"v_mul_u32_u24 v{vt2}, 20, v{vt2}")
        c.e(f"v_add_u32 v{vt2}, v{vt2}, v{vt}")
        c.e(f"v_lshlrev_b32 v{vt2}, 4, v{vt2}")
        c.e(f"v_cmp_gt_u32 vcc, 20, v{vt}")
        c.e(f"s_and_saveexec_b64 s[4:5], vcc")
        c.e(f"buffer_store_dwordx4 v[{acc}:{acc+3}], v{vt2}, s[{S_O}:{S_O+3}], {kvb} offen offset:1280")
        c.e(f"buffer_store_dwordx4 v[{acc+4}:{acc+7}], v{vt2}, s[{S_O}:{S_O+3}], {kvb} offen offset:1920")
        c.finish(0, sW, S_O)
    return a.hi


def k1_loader(c, kv):
    a = Alloc(1, 168)
    vt, vt2 = a.get(), a.get()
    vXa, vXb = a.get(), a.get()
    vL16 = a.get()
    if 'noprio' not in EXP: c.e("s_setprio 3")
    c.e(f"s_lshl_b32 s{sW2K}, s{sTW}, 12")
    c.e(f"s_mul_i32 s{sW1K}, s{sTW}, 5120")
    if kv or 'norot' in EXP:
        c.e(f"s_mov_b32 s{sCH}, 0")
    else:
        c.e(f"s_lshr_b32 s{sCH}, s2, 3")
        c.e(f"s_mul_i32 s{sT0}, s{sCH}, 26")
        c.e(f"s_lshr_b32 s{sT0}, s{sT0}, 8")
        c.e(f"s_mul_i32 s{sT0}, s{sT0}, 10")
        c.e(f"s_sub_u32 s{sCH}, s{sCH}, s{sT0}")
    x_dma_addr(c, vXa, vXb, vt)
    c.e(f"v_lshlrev_b32 v{vL16}, 4, v0")
    if not kv:
        vWd = [a.get() for _ in range(5)]
        c.e(f"s_lshl_b32 s{sT0}, s{sTW}, 4")
        c.e(f"s_mul_i32 s{sT0}, s{sT0}, s{sSTR}")
        for i, r in enumerate(vWd):
            c.e(f"v_add_u32 v{vt}, {64*i}, v0")
            c.e(f"v_mul_u32_u24 v{vt2}, 3277, v{vt}")
            c.e(f"v_lshrrev_b32 v{vt2}, 16, v{vt2}")
            c.e(f"v_mul_u32_u24 v{r}, 20, v{vt2}")
            c.e(f"v_sub_u32 v{vt}, v{vt}, v{r}")
            c.e(f"v_mul_u32_u24 v{r}, s{sSTR}, v{vt2}")
            c.e(f"v_lshl_add_u32 v{r}, v{vt}, 4, v{r}")
            c.e(f"v_add_u32 v{r}, s{sT0}, v{r}")
        def dma(chunk):
            slot = chunk % 4
            c.e(f"s_lshl_b32 s{sWOFF}, s{sCH}, 6")
            c.e(f"s_mul_i32 s{sWOFF}, s{sSTR}, s{sWOFF}")
            for i, r in enumerate(vWd):
                c.e(f"s_add_u32 m0, s{sW1K}, {slot*SLOT + 1024*i}")
                c.e("s_nop 0")
                c.vmem(f"buffer_load_dwordx4 v{r}, s[{S_W}:{S_W+3}], s{sWOFF} offen lds", f"ch{chunk}")
            x_dma(c, vXa, vXb, chunk, f"ch{chunk}")
        dma(0); dma(1)
        vSJ = a.get()
        tr_addr(c, vSJ, 1280, 4, vt)
        c.e(f"v_add_u32 v{vSJ}, {2*SLOT}, v{vSJ}")
        vRW = a.get(2)
        tr_addr(c, vRW, 320, 8, vt)
        c.e(f"s_mul_i32 s{sT0}, s{sTW}, 5120")
        c.e(f"v_add_u32 v{vRW}, s{sT0}, v{vRW}")
        c.e(f"v_add_u32 v{vRW+1}, {2*SLOT}, v{vRW}")
        vOnes = a.get(); c.e(f"v_mov_b32 v{vOnes}, 0x3f803f80")
        vCS = [a.get() for _ in range(5)]
        for r in vCS: c.e(f"v_mov_b32 v{r}, 0")
        fW = [a.get(4, 4) for _ in range(5)]
        def cs_reads(chunk):
            if 'nocsr' in EXP: return
            slot = chunk % 4
            for t in range(5):
                off = (slot & 1)*SLOT + 64*t
                c.lds(f"ds_read_b64_tr_b16 v[{fW[t]}:{fW[t]+1}], v{vRW+(slot>>1)} offset:{off}", "cs")
                c.lds(f"ds_read_b64_tr_b16 v[{fW[t]+2}:{fW[t]+3}], v{vRW+(slot>>1)} offset:{off+1280}", "cs")
        def cs_work():
            if 'nocs' in EXP: return []
            return [f"v_dot2_f32_bf16 v{vCS[t]}, v{fW[t]+r}, v{vOnes}, v{vCS[t]}" for r in range(4) for t in range(5)]
        def dma_mix(chunks, work, after=2):
            sub = Code(); sub.vm = c.vm; sub.lg = c.lg
            save = c.lines; c.lines = []
            for chn in chunks: dma(chn)
            L_ = c.lines; c.lines = save
            idx = [i for i, l in enumerate(L_) if "buffer_load" in l]
            nslots = max(1, len(idx) - after)
            waited = False; k = 0
            for i, l in enumerate(L_):
                c.lines.append(l)
                if i in idx:
                    p = idx.index(i)
                    if p >= after - 1 and work:
                        if not waited: c.wait_lg0(); waited = True
                        nper = (len(work) + (len(idx) - 1 - p)) // max(1, len(idx) - p)
                        for _ in range(nper):
                            if work: c.e(work.pop(0))
            if work:
                if not waited: c.wait_lg0()
                for w_ in work: c.e(w_)
        c.wait_vm("ch0")
        c.e("s_barrier")
        cs_reads(0)
        dma_mix([2, 3], cs_work())
        for ch in range(9):
            if ch == 4: c.stamp(2)
            c.wait_lg0()
            c.wait_vm([f"ch{ch+1}"] + (["sj"] if ch == 8 else []))
            if ch == 4: c.stamp(3)
            c.e("s_barrier")
            if ch == 4: c.stamp(4)
            cs_reads(ch + 1)
            dma_mix([ch + 4] if ch + 4 < 10 else [], cs_work())
            if ch == 4: c.stamp(5)
            if ch == 6:
                for i in range(5):
                    c.e(f"s_add_u32 m0, s{sW1K}, {2*SLOT + 1024*i}")
                    c.e(f"s_add_u32 s{sT0}, s{sW1K}, {1024*i}")
                    c.vmem(f"buffer_load_dwordx4 v{vL16}, s[{S_SJ}:{S_SJ+3}], s{sT0} offen lds", "sj")
        c.nop(4)
        c.e(f"v_and_b32 v{vt}, 31, v0")
        c.e(f"v_lshlrev_b32 v{vt}, 5, v{vt}")
        c.e(f"v_lshrrev_b32 v{vt2}, 5, v0")
        c.e(f"v_lshl_add_u32 v{vt}, v{vt2}, 2, v{vt}")
        c.e(f"s_lshl_b32 s{sT0}, s{sTW}, 3")
        c.e(f"v_add_u32 v{vt}, s{sT0}, v{vt}")
        c.e(f"v_add_u32 v{vt}, {CSP}, v{vt}")
        for t in range(5):
            c.lds(f"ds_write_b32 v{vt}, v{vCS[t]} offset:{t*1024}")
        sj = [a.get(4, 4) for _ in range(5)]
        c.e(f"s_mul_i32 s{sT0}, s{sTW}, 320")
        c.e(f"v_add_u32 v{vt}, s{sT0}, v{vSJ}")
        for i in range(5):
            c.lds(f"ds_read_b64_tr_b16 v[{sj[i]}:{sj[i]+1}], v{vt} offset:{64*i}", "sjr")
            c.lds(f"ds_read_b64_tr_b16 v[{sj[i]+2}:{sj[i]+3}], v{vt} offset:{64*i + 8*1280}", "sjr")
        c.wait_lg0()
        c.e("s_barrier")
        c.e(f"s_mul_i32 s{sT1}, s{sTW}, s{sT2}")
        c.e(f"s_add_u32 s{sT1}, s{sT1}, s{sT3}")
        for i in range(5):
            c.e(f"s_add_u32 s{sT0}, s{sT1}, {1024*i}")
            c.vstore(f"buffer_store_dwordx4 v[{sj[i]}:{sj[i]+3}], v{vL16}, s[{S_SO}:{S_SO+3}], s{sT0} offen")
    else:
        c.e(f"s_lshr_b32 s{sT0}, s{sTW}, 1")
        c.e(f"s_cmp_eq_u32 s{sT0}, 0")
        c.e(f"s_cselect_b32 s{S_W}, s28, s30")
        c.e(f"s_cselect_b32 s{S_W+1}, s29, s31")
        c.e(f"s_and_b32 s{S_W+1}, s{S_W+1}, 0xffff")
        c.e(f"s_mov_b32 s{S_W+2}, 25600")
        c.e(f"s_mov_b32 s{S_W+3}, 0x20000")
        c.e(f"s_and_b32 s{sT1}, s{sTW}, 1")
        c.e(f"s_mul_i32 s{sWOFF}, s{sT1}, 12800")
        c.e(f"s_mul_i32 s{sW1K}, s{sTW}, {SLOT}")
        x_dma(c, vXa, vXb, 0, "ch0")
        for i in range(13):
            c.e(f"s_add_u32 m0, s{sW1K}, {1024*i}")
            c.e(f"s_add_u32 s{sT0}, s{sWOFF}, {1024*i}")
            c.vmem(f"buffer_load_dwordx4 v{vL16}, s[{S_W}:{S_W+3}], s{sT0} offen lds", "ch0")
        x_dma(c, vXa, vXb, 1, "ch1")
        c.wait_vm("ch0")
        c.e("s_barrier")
        for ch in range(2, 4): x_dma(c, vXa, vXb, ch, f"ch{ch}")
        for ch in range(9):
            c.wait_vm(f"ch{ch+1}")
            c.e("s_barrier")
            if ch + 4 < 10: x_dma(c, vXa, vXb, ch + 4, f"ch{ch+4}")
    c.finish(0, sW, S_O)
    return a.hi

def gen_k1():
    c = Code()
    k1_prologue(c)
    c.e(f"s_cmp_lt_u32 s2, 108")
    c.e(f"s_cselect_b32 s{sT0}, s40, s32")
    c.e(f"s_cselect_b32 s{sT1}, s41, s33")
    c.e(f"s_cselect_b32 s{sKB}, s2, 0")
    c.e(f"s_mov_b32 s{sT2}, {108*5120}")
    c.e(f"s_mov_b32 s{sT3}, {W2F}")
    c.e(f"s_cbranch_scc1 K1_SJ1")
    c.e(f"s_mov_b32 s{sT2}, {40*5120}")
    c.e(f"s_mov_b32 s{sT3}, {WOF}")
    c.e(f"s_sub_u32 s{sKB}, s2, 108")
    c.label("K1_SJ1")
    c.e(f"s_mul_i32 s3, s{sKB}, {16*1280}")
    c.e(f"s_add_u32 s{S_SJ}, s{sT0}, s3")
    c.e(f"s_addc_u32 s{S_SJ+1}, s{sT1}, 0")
    c.e(f"s_and_b32 s{S_SJ+1}, s{S_SJ+1}, 0xffff")
    c.e(f"s_cmp_lt_u32 s2, 148")
    c.e(f"s_cselect_b32 s{S_SJ+2}, {16*1280}, 0")
    c.e(f"s_cselect_b32 s{S_SO+2}, {WS_USED}, 0")
    c.e(f"s_mov_b32 s{S_SJ+3}, 0x20000")
    c.e(f"s_mov_b32 s{S_SO}, s42")
    c.e(f"s_and_b32 s{S_SO+1}, s43, 0xffff")
    c.e(f"s_mov_b32 s{S_SO+3}, 0x20000")
    c.e(f"s_mul_i32 s3, s{sKB}, 5120")
    c.e(f"s_add_u32 s{sT3}, s{sT3}, s3")
    c.e(f"s_cmp_eq_u32 s{sFT}, 15")
    c.e("s_cbranch_scc1 K1_KV")
    c.e(f"s_cmp_lt_u32 s{sFT}, 4")
    c.e("s_cbranch_scc0 K1_HSET")
    c.e(f"s_mul_i32 s3, s{sFT}, 320")
    c.e(f"s_add_u32 s{S_W}, s26, s3")
    c.e(f"s_addc_u32 s{S_W+1}, s27, 0")
    c.e(f"s_sub_u32 s{S_W+2}, {640*640*2}, s3")
    c.e(f"s_mov_b32 s{sSTR}, 1280")
    c.e(f"s_mov_b32 s{sISH}, 0")
    c.e(f"s_mov_b32 s{S_B}, s38")
    c.e(f"s_mov_b32 s{S_B+1}, s39")
    c.e(f"s_mov_b32 s{S_B+2}, 0")
    c.e(f"s_lshl_b32 s3, s{sTB}, 2")
    c.e(f"s_add_u32 s3, s3, s{sTW}")
    c.e(f"s_mul_i32 s3, s3, 40")
    c.e(f"s_mul_i32 s{sOUT}, s{sFT}, 10")
    c.e(f"s_add_u32 s{sOUT}, s{sOUT}, s3")
    c.e(f"s_lshl_b32 s{sOUT}, s{sOUT}, 10")
    c.e(f"s_add_u32 s{sOUT}, s{sOUT}, {QF}")
    c.e("s_branch K1_MAIN")
    c.label("K1_HSET")
    c.e(f"s_sub_u32 s{sISH}, s{sFT}, 4")
    c.e(f"s_mul_i32 s3, s{sISH}, 320")
    c.e(f"s_add_u32 s{S_W}, s36, s3")
    c.e(f"s_addc_u32 s{S_W+1}, s37, 0")
    c.e(f"s_sub_u32 s{S_W+2}, {640*1728*2}, s3")
    c.e(f"s_mov_b32 s{sSTR}, 3456")
    c.e(f"s_add_u32 s{S_B}, s38, s3")
    c.e(f"s_addc_u32 s{S_B+1}, s39, 0")
    c.e(f"s_sub_u32 s{S_B+2}, {1728*2}, s3")
    c.e(f"s_lshl_b32 s3, s{sTB}, 2")
    c.e(f"s_add_u32 s3, s3, s{sTW}")
    c.e(f"s_mul_i32 s3, s3, 108")
    c.e(f"s_mul_i32 s{sOUT}, s{sISH}, 10")
    c.e(f"s_add_u32 s{sOUT}, s{sOUT}, s3")
    c.e(f"s_lshl_b32 s{sOUT}, s{sOUT}, 10")
    c.e(f"s_add_u32 s{sOUT}, s{sOUT}, {HF}")
    c.e(f"s_mov_b32 s{sISH}, 1")
    c.label("K1_MAIN")
    c.e(f"s_and_b32 s{S_W+1}, s{S_W+1}, 0xffff")
    c.e(f"s_mov_b32 s{S_W+3}, 0x20000")
    c.e(f"s_and_b32 s{S_B+1}, s{S_B+1}, 0xffff")
    c.e(f"s_mov_b32 s{S_B+3}, 0x20000")
    c.e(f"s_cmp_eq_u32 s{sFH}, 2")
    c.e("s_cbranch_scc1 K1_LOADM")
    c.e(f"s_cmp_eq_u32 s{sFH}, 0")
    c.e("s_cbranch_scc0 K1_MAIN1")
    import copy
    hi = 0
    c0 = Code(); hi = max(hi, k1_main(c0, 0)); c.lines += c0.lines
    c.label("K1_MAIN1")
    c1 = Code(); hi = max(hi, k1_main(c1, 1)); c.lines += c1.lines
    c.label("K1_LOADM")
    cl = Code(); hi = max(hi, k1_loader(cl, False)); c.lines += cl.lines
    c.label("K1_KV")
    c.e(f"s_cmp_eq_u32 s{sFH}, 2")
    c.e("s_cbranch_scc1 K1_LOADKV")
    c.e(f"s_lshl_b32 s3, s{sTB}, 2")
    c.e(f"s_add_u32 s3, s3, s{sTW}")
    c.e(f"s_mul_i32 s{sOUT}, s3, 2560")
    c.e(f"s_add_u32 s{sOUT}, s{sOUT}, {KV}")
    c.e(f"s_cmp_eq_u32 s{sFH}, 0")
    c.e("s_cbranch_scc0 K1_KV1")
    c2 = Code(); hi = max(hi, k1_kv(c2, 0)); c.lines += c2.lines
    c.label("K1_KV1")
    c3 = Code(); hi = max(hi, k1_kv(c3, 1)); c.lines += c3.lines
    c.label("K1_LOADKV")
    cl = Code(); hi = max(hi, k1_loader(cl, True)); c.lines += cl.lines
    c.label("K1_END")
    c.e("s_endpgm")
    return c.text(), hi

if __name__ == "__main__":
    t, hi = gen_k1()
    print(t)
    import sys
    print("vgprs", hi, "lds", K1_LDS, file=sys.stderr)
```

```python
from core import *
import k2 as K2old
from k2 import piece_addr
EXP = os.environ.get('EXP', '')

K2_LDS = 163840
S_WS, S_X, S_B2, S_OUT = 8, 12, 16, 20
sW, sTT, sHEAD, sT0, sT1, sT2, sIT, sGW, sFBK, sA, sB, sAS, sRB, sG, sFB, sTO, sSPIN = range(40, 57)
sVM = 58
K2old.sVM = sVM
NV = 168

def attn_tile(c, R, j):
    S = R['S'][j & 1]; N = R['S'][(j + 1) & 1]; P = R['P']; O = R['O']
    K0, K1, Va, Vb, Q0, Q1 = R['K0'], R['K1'], R['Va'], R['Vb'], R['Q0'], R['Q1']
    vK0, vK1, vV = R['vK0'], R['vK1'], R['vV']
    def ex(lo):
        c.e(f"v_exp_f32 v{S+lo}, v{S+lo}")
        c.e(f"v_exp_f32 v{S+lo+1}, v{S+lo+1}")
        c.e(f"v_exp_f32 v{S+lo+2}, v{S+lo+2}")
        c.e(f"v_cvt_pk_bf16_f32 v{P+lo//2}, v{S+lo}, v{S+lo+1}")
        c.e(f"v_exp_f32 v{S+lo+3}, v{S+lo+3}")
        R['pend'] = (P + lo//2 + 1, S + lo + 2, S + lo + 3)
    def flush():
        if R.get('pend'):
            d, a_, b_ = R['pend']; c.e(f"v_cvt_pk_bf16_f32 v{d}, v{a_}, v{b_}"); R['pend'] = None
    T = 2560
    if 'noprio' not in EXP: c.e("s_setprio 2")
    c.e("s_waitcnt lgkmcnt(3)")
    flush()
    c.e(f"v_mfma_f32_32x32x16_bf16 v[{N}:{N+15}], v[{K0}:{K0+3}], v[{Q0}:{Q0+3}], 0")
    c.e(f"ds_read_b128 v[{K0}:{K0+3}], v{vK0} offset:{(j+2)*T}")
    ex(0)
    c.e("s_waitcnt lgkmcnt(3)")
    flush()
    c.e(f"v_mfma_f32_32x32x16_bf16 v[{N}:{N+15}], v[{K1}:{K1+3}], v[{Q1}:{Q1+3}], v[{N}:{N+15}]")
    c.e(f"ds_read_b64 v[{K1}:{K1+1}], v{vK1} offset:{(j+2)*T}")
    ex(4)
    if 'noprio' not in EXP: c.e("s_setprio 1")
    c.e("s_waitcnt lgkmcnt(3)")
    flush()
    c.e(f"v_mfma_f32_32x32x16_bf16 v[{O}:{O+15}], v[{Vb}:{Vb+3}], v[{P+4}:{P+7}], v[{O}:{O+15}]")
    ex(8)
    c.e("s_waitcnt lgkmcnt(2)")
    flush()
    c.e(f"v_mfma_f32_32x32x16_bf16 v[{O}:{O+15}], v[{Va}:{Va+3}], v[{P}:{P+3}], v[{O}:{O+15}]")
    c.e(f"s_mov_b64 exec, s[{sVM}:{sVM+1}]")
    c.e(f"ds_read_b128 v[{Vb}:{Vb+3}], v{vV} offset:{j*T + 640}")
    c.e(f"ds_read_b128 v[{Va}:{Va+3}], v{vV} offset:{(j+1)*T}")
    c.e("s_mov_b64 exec, -1")
    ex(12)

def final_epilogue(c, a, vL16, nwaves=12):
    vt, vt2, vo = a.get(), a.get(), a.get()
    xr = a.get(2, 2); br = a.get(2, 2); sm = a.get(4, 4); rd = [a.get(4, 4) for _ in range(4)]
    for i in range(2):
        if i == 1:
            c.e(f"s_cmp_ge_u32 s{sW}, 8")
            c.e("s_cbranch_scc1 K2_DONE")
        c.e(f"s_add_u32 s{sT0}, s{sW}, {12*i}")
        c.e(f"s_lshl_b32 s{sT1}, s{sT0}, 10")
        c.e(f"v_add_u32 v{vt}, s{sT1}, v{vL16}")
        for k in range(4):
            c.e(f"ds_read_b128 v[{rd[k]}:{rd[k]+3}], v{vt} offset:{k*20480}")
        c.e(f"s_mul_i32 s{sT1}, s{sFBK}, 160")
        c.e(f"s_lshl_b32 s{sT2}, s{sT0}, 3")
        c.e(f"s_add_u32 s{sT1}, s{sT1}, s{sT2}")
        c.e(f"s_lshl_b32 s{sT1}, s{sT1}, 1")
        c.e(f"v_lshrrev_b32 v{vo}, 5, v0")
        c.e(f"v_lshlrev_b32 v{vo}, 3, v{vo}")
        c.e(f"v_add_u32 v{vo}, s{sT1}, v{vo}")
        c.e(f"buffer_load_dwordx2 v[{br}:{br+1}], v{vo}, s[{S_B2}:{S_B2+3}], 0 offen")
        c.e(f"v_and_b32 v{vt2}, 31, v0")
        c.e(f"s_lshl_b32 s{sT2}, s{sTO}, 5")
        c.e(f"v_add_u32 v{vt2}, s{sT2}, v{vt2}")
        c.e(f"v_mul_u32_u24 v{vt2}, 1280, v{vt2}")
        c.e(f"v_add_u32 v{vo}, v{vo}, v{vt2}")
        c.e(f"buffer_load_dwordx2 v[{xr}:{xr+1}], v{vo}, s[{S_X}:{S_X+3}], 0 offen")
        c.e("s_waitcnt lgkmcnt(0)")
        for r in range(4):
            c.e(f"v_add_f32 v{sm+r}, v{rd[0]+r}, v{rd[1]+r}")
            c.e(f"v_add_f32 v{rd[2]+r}, v{rd[2]+r}, v{rd[3]+r}")
        for r in range(4): c.e(f"v_add_f32 v{sm+r}, v{sm+r}, v{rd[2]+r}")
        c.e("s_waitcnt vmcnt(0)")
        for src in (xr, br):
            for r in range(4):
                if r & 1: c.e(f"v_and_b32 v{vt}, 0xffff0000, v{src+(r>>1)}")
                else: c.e(f"v_lshlrev_b32 v{vt}, 16, v{src+(r>>1)}")
                c.e(f"v_add_f32 v{sm+r}, v{sm+r}, v{vt}")
        c.e(f"v_cvt_pk_bf16_f32 v{sm}, v{sm}, v{sm+1}")
        c.e(f"v_cvt_pk_bf16_f32 v{sm+1}, v{sm+2}, v{sm+3}")
        c.e(f"buffer_store_dwordx2 v[{sm}:{sm+1}], v{vo}, s[{S_OUT}:{S_OUT+3}], 0 offen")
        c.nop(2)

def gen_attn(c):
    a = Alloc(1, NV)
    vt, vt2, vn, vk = a.get(), a.get(), a.get(), a.get()
    vA, vB, vC = a.get(), a.get(), a.get()
    vL16 = a.get()
    vK0, vK1, vV = a.get(), a.get(), a.get()
    R = dict(S=[a.get(16, 4), a.get(16, 4)], P=a.get(8, 4), O=a.get(16, 4), K0=a.get(4, 4), K1=a.get(4, 4),
             Va=a.get(4, 4), Vb=a.get(4, 4), Q0=a.get(4, 4), Q1=a.get(4, 4), vK0=vK0, vK1=vK1, vV=vV)
    Q0, Q1, O, P = R['Q0'], R['Q1'], R['O'], R['P']
    c.e(f"s_lshr_b32 s{sT2}, s{sW}, 2")
    c.e(f"s_lshl_b32 s{sTT}, s{sRB}, 1")
    c.e(f"s_add_u32 s{sTT}, s{sTT}, s{sT2}")
    c.e(f"s_and_b32 s{sT2}, s{sW}, 3")
    c.e(f"s_lshl_b32 s{sHEAD}, s{sG}, 2")
    c.e(f"s_add_u32 s{sHEAD}, s{sHEAD}, s{sT2}")
    c.e(f"v_and_b32 v{vn}, 31, v0")
    c.e(f"v_lshrrev_b32 v{vt2}, 5, v0")
    c.e(f"s_mul_i32 s{sT0}, s{sHEAD}, 20")
    c.e(f"s_mul_i32 s{sT1}, s{sTT}, {40*1024}")
    c.e(f"v_lshlrev_b32 v{vk}, 2, v{vt2}")
    c.e(f"v_add_u32 v{vk}, s{sT0}, v{vk}")
    piece_addr(c, vA, vk, vn, vt, sT1)
    c.e(f"v_add_u32 v{vk}, 8, v{vk}")
    piece_addr(c, vB, vk, vn, vt, sT1)
    c.e(f"v_mov_b32 v{vk}, s{sT0}")
    c.e(f"v_add_u32 v{vk}, 16, v{vk}")
    piece_addr(c, vC, vk, vn, vt, sT1)
    c.e(f"s_mov_b32 s{sT2}, {QF}")
    c.vmem(f"buffer_load_dwordx2 v[{Q0}:{Q0+1}], v{vA}, s[{S_WS}:{S_WS+3}], s{sT2} offen", "q")
    c.vmem(f"buffer_load_dwordx2 v[{Q0+2}:{Q0+3}], v{vB}, s[{S_WS}:{S_WS+3}], s{sT2} offen", "q")
    c.vmem(f"buffer_load_dwordx2 v[{Q1}:{Q1+1}], v{vC}, s[{S_WS}:{S_WS+3}], s{sT2} offen", "q")
    c.e(f"v_lshlrev_b32 v{vL16}, 4, v0")
    def base_addrs():
        c.e(f"v_mov_b32 v{vK0}, v{vL16}")
        c.e(f"v_lshlrev_b32 v{vK1}, 3, v{vn}")
        c.e(f"v_add_u32 v{vK1}, 1024, v{vK1}")
        c.e(f"v_lshrrev_b32 v{vt2}, 5, v0")
        c.e(f"v_mul_u32_u24 v{vV}, 20, v{vt2}")
        c.e(f"v_add_u32 v{vV}, v{vV}, v{vn}")
        c.e(f"v_lshlrev_b32 v{vV}, 4, v{vV}")
        c.e(f"v_add_u32 v{vV}, 1280, v{vV}")
        for r in range(16): c.e(f"v_mov_b32 v{O+r}, 0")
        for r in range(8): c.e(f"v_mov_b32 v{P+r}, 0")
    base_addrs()
    c.e(f"s_mov_b32 s{sVM}, 0x000fffff")
    c.e(f"s_mov_b32 s{sVM+1}, 0x000fffff")
    c.e(f"s_mov_b32 s{sFB}, 0")
    c.e(f"v_mov_b32 v{R['K1']+2}, 0x3f803f80")
    c.e(f"v_mov_b32 v{R['K1']+3}, 0x00003f80")
    c.e(f"v_cmp_eq_u32 vcc, 20, v{vn}")
    c.e(f"v_mov_b32 v{vt}, 0x3f803f80")
    c.nop(1)
    for r in range(4):
        c.e(f"v_cndmask_b32 v{R['Va']+r}, 0, v{vt}, vcc")
        c.e(f"v_cndmask_b32 v{R['Vb']+r}, 0, v{vt}, vcc")
    c.wait_vm("q")
    c.e(f"v_cmp_gt_u32 vcc, 32, v0")
    c.e(f"v_mov_b32 v{Q1+2}, 0")
    c.e(f"v_mov_b32 v{Q1+3}, 0")
    c.e(f"v_cndmask_b32 v{Q1}, 0, v{Q1}, vcc")
    c.e(f"v_cndmask_b32 v{Q1+1}, 0, v{Q1+1}, vcc")
    c.e("s_barrier")
    c.stamp(2)
    c.label("K2_PASS")
    S0 = R['S'][0]
    c.e(f"ds_read_b128 v[{R['K0']}:{R['K0']+3}], v{vK0}")
    c.e(f"ds_read_b64 v[{R['K1']}:{R['K1']+1}], v{vK1}")
    c.e("s_waitcnt lgkmcnt(0)")
    c.e(f"v_mfma_f32_32x32x16_bf16 v[{S0}:{S0+15}], v[{R['K0']}:{R['K0']+3}], v[{Q0}:{Q0+3}], 0")
    c.e(f"v_mfma_f32_32x32x16_bf16 v[{S0}:{S0+15}], v[{R['K1']}:{R['K1']+3}], v[{Q1}:{Q1+3}], v[{S0}:{S0+15}]")
    c.e(f"ds_read_b128 v[{R['K0']}:{R['K0']+3}], v{vK0} offset:2560")
    c.e(f"ds_read_b64 v[{R['K1']}:{R['K1']+1}], v{vK1} offset:2560")
    c.e(f"s_mov_b64 exec, s[{sVM}:{sVM+1}]")
    c.e(f"ds_read_b128 v[{R['Vb']}:{R['Vb']+3}], v{vV}")
    c.e(f"ds_read_b128 v[{R['Va']}:{R['Va']+3}], v{vV}")
    c.e("s_mov_b64 exec, -1")
    c.e(f"s_mov_b32 s{sIT}, 0")
    c.nop(16)
    c.label("K2_LOOP")
    for j in range(4): attn_tile(c, R, j)
    c.e(f"v_add_u32 v{vK0}, {4*2560}, v{vK0}")
    d, a_, b_ = R['pend']; c.e(f"v_cvt_pk_bf16_f32 v{d}, v{a_}, v{b_}"); R['pend'] = None
    c.e(f"v_add_u32 v{vK1}, {4*2560}, v{vK1}")
    c.e(f"v_add_u32 v{vV}, {4*2560}, v{vV}")
    c.e(f"s_add_u32 s{sIT}, s{sIT}, 1")
    c.e(f"s_or_b32 s{sT0}, s{sIT}, s{sFB}")
    c.e(f"s_cmp_lg_u32 s{sT0}, 2")
    c.e("s_cbranch_scc1 K2_NOBAR")
    c.e("s_barrier")
    c.label("K2_NOBAR")
    c.e(f"s_cmp_lt_u32 s{sIT}, 16")
    c.e("s_cbranch_scc1 K2_LOOP")
    c.e("s_waitcnt lgkmcnt(0)")
    c.nop(2)
    c.e(f"v_mfma_f32_32x32x16_bf16 v[{O}:{O+15}], v[{R['Vb']}:{R['Vb']+3}], v[{P+4}:{P+7}], v[{O}:{O+15}]")
    c.nop(16)
    c.stamp(3)
    c.e(f"v_mov_b32 v{vt}, v{O+8}")
    c.e(f"v_mov_b32 v{vt2}, v{O+8}")
    c.nop(2)
    c.e(f"v_permlane32_swap_b32 v{vt}, v{vt2}")
    c.nop(2)
    c.e(f"v_cmp_gt_u32 vcc, 32, v0")
    c.nop(2)
    c.e(f"v_cndmask_b32 v{vt}, v{O+8}, v{vt2}, vcc")
    c.e(f"s_cmp_lg_u32 s{sFB}, 0")
    c.e("s_cbranch_scc1 K2_NORM")
    c.e(f"v_mov_b32 v{vk}, {fhex(2.0**-60)}")
    c.e(f"v_cmp_ge_f32 s[4:5], v{vt}, v{vk}")
    c.e(f"v_mov_b32 v{vk}, {fhex(2.0**120)}")
    c.e(f"v_cmp_le_f32 s[6:7], v{vt}, v{vk}")
    c.e("s_and_b64 s[4:5], s[4:5], s[6:7]")
    c.e(f"v_mov_b32 v{vk}, 0x7f800000")
    for r in range(12):
        c.e(f"v_cmp_lt_f32 s[6:7], |v{O+r}|, v{vk}")
        c.e("s_and_b64 s[4:5], s[4:5], s[6:7]")
    if 'forcefb' in EXP: c.e("s_mov_b64 s[4:5], 0")
    c.e("s_cmp_eq_u64 s[4:5], -1")
    c.e("s_cbranch_scc1 K2_NORM")
    vM = vk
    c.e(f"v_mov_b32 v{vM}, 0xff800000")
    c.e(f"v_mov_b32 v{vK0}, v{vL16}")
    c.e(f"v_lshlrev_b32 v{vK1}, 3, v{vn}")
    c.e(f"v_add_u32 v{vK1}, 1024, v{vK1}")
    c.e(f"s_mov_b32 s{sIT}, 0")
    c.label("K2_FBL")
    c.e(f"ds_read_b128 v[{R['K0']}:{R['K0']+3}], v{vK0}")
    c.e(f"ds_read_b64 v[{R['K1']}:{R['K1']+1}], v{vK1}")
    c.e("s_waitcnt lgkmcnt(0)")
    c.e(f"v_mfma_f32_32x32x16_bf16 v[{S0}:{S0+15}], v[{R['K0']}:{R['K0']+3}], v[{Q0}:{Q0+3}], 0")
    c.e(f"v_mfma_f32_32x32x16_bf16 v[{S0}:{S0+15}], v[{R['K1']}:{R['K1']+3}], v[{Q1}:{Q1+3}], v[{S0}:{S0+15}]")
    c.e(f"v_add_u32 v{vK0}, 2560, v{vK0}")
    c.e(f"v_add_u32 v{vK1}, 2560, v{vK1}")
    c.nop(20)
    for r in range(0, 16, 2):
        c.e(f"v_max3_f32 v{vM}, v{vM}, v{S0+r}, v{S0+r+1}")
    c.e(f"s_add_u32 s{sIT}, s{sIT}, 1")
    c.e(f"s_cmp_lt_u32 s{sIT}, 64")
    c.e("s_cbranch_scc1 K2_FBL")
    c.e(f"v_mov_b32 v{vt}, v{vM}")
    c.nop(2)
    c.e(f"v_permlane32_swap_b32 v{vM}, v{vt}")
    c.nop(2)
    c.e(f"v_max_f32 v{vM}, v{vM}, v{vt}")
    t0, t1, t2 = R['S'][1], R['S'][1]+1, R['S'][1]+2
    c.e(f"v_sub_f32 v{vM}, 0, v{vM}")
    c.e(f"v_cvt_pk_bf16_f32 v{t0}, v{vM}, v{vM}")
    c.e(f"v_and_b32 v{t0}, 0xffff0000, v{t0}")
    c.e(f"v_sub_f32 v{vM}, v{vM}, v{t0}")
    c.e(f"v_cvt_pk_bf16_f32 v{t1}, v{vM}, v{vM}")
    c.e(f"v_and_b32 v{t1}, 0xffff0000, v{t1}")
    c.e(f"v_sub_f32 v{vM}, v{vM}, v{t1}")
    c.e(f"v_cvt_pk_bf16_f32 v{t0}, v{t0}, v{t1}")
    c.e(f"v_mov_b32 v{t2}, 0")
    c.e(f"v_cvt_pk_bf16_f32 v{t1}, v{vM}, v{t2}")
    c.e(f"v_cmp_gt_u32 vcc, 32, v0")
    c.nop(2)
    c.e(f"v_cndmask_b32 v{Q1+2}, 0, v{t0}, vcc")
    c.e(f"v_cndmask_b32 v{Q1+3}, 0, v{t1}, vcc")
    base_addrs()
    c.e(f"s_mov_b32 s{sFB}, 256")
    c.e("s_branch K2_PASS")
    c.label("K2_NORM")
    c.e(f"v_rcp_f32 v{vt}, v{vt}")
    c.e(f"v_cmp_gt_u32 vcc, 32, v0")
    for r in range(12): c.e(f"v_mul_f32 v{O+r}, v{O+r}, v{vt}")
    for p in range(6): c.e(f"v_cvt_pk_bf16_f32 v{O+p}, v{O+2*p}, v{O+2*p+1}")
    c.e(f"s_mov_b32 s{sT2}, {OF}")
    c.e(f"buffer_store_dwordx2 v[{O}:{O+1}], v{vA}, s[{S_WS}:{S_WS+3}], s{sT2} offen sc1")
    c.e(f"buffer_store_dwordx2 v[{O+2}:{O+3}], v{vB}, s[{S_WS}:{S_WS+3}], s{sT2} offen sc1")
    c.e("s_and_saveexec_b64 s[4:5], vcc")
    c.e(f"buffer_store_dwordx2 v[{O+4}:{O+5}], v{vC}, s[{S_WS}:{S_WS+3}], s{sT2} offen sc1")
    c.e("s_mov_b64 exec, -1")
    c.e("s_waitcnt vmcnt(0)")
    c.e("s_barrier")
    c.stamp(4)
    c.e(f"s_cmp_lg_u32 s{sW}, 0")
    c.e("s_cbranch_scc1 K2_NOFLAG")
    c.e(f"s_lshl_b32 s{sT0}, s2, 7")
    c.e(f"s_add_u32 s{sT0}, s{sT0}, {FLAGS}")
    c.e(f"v_mov_b32 v{vt}, 1")
    c.e(f"v_mov_b32 v{vt2}, 0")
    c.e("s_mov_b64 exec, 1")
    c.e(f"buffer_store_dword v{vt}, v{vt2}, s[{S_WS}:{S_WS+3}], s{sT0} offen sc1")
    c.e("s_mov_b64 exec, -1")
    c.label("K2_NOFLAG")
    c.e("s_setprio 0")
    c.e("s_barrier")
    c.e("s_branch K2_FINAL")
    return a.hi

def gen_gemm(c):
    a = Alloc(1, NV)
    vt, vL16, vF = a.get(), a.get(), a.get()
    acc = [a.get(16, 4) for _ in range(5)]
    fA = [[a.get(4, 4) for _ in range(5)] for _ in range(2)]
    oB = [a.get(4, 4) for _ in range(10)]
    fB = oB[:2]
    c.e("s_setprio 3")
    c.e(f"v_lshlrev_b32 v{vL16}, 4, v0")
    c.e(f"s_lshl_b32 s{sT1}, s{sGW}, 10")
    def kv(i):
        c.e(f"s_add_u32 m0, s{sT1}, {4096*i}")
        c.e(f"s_add_u32 s{sT2}, s{sT1}, {KV + 4096*i}")
        c.vmem(f"buffer_load_dwordx4 v{vL16}, s[{S_WS}:{S_WS+3}], s{sT2} offen lds", f"kv{i}")
    for i in range(16): kv(i)
    for t in range(5):
        for r in range(16): c.e(f"v_mov_b32 v{acc[t]+r}, 0")
    c.wait_vm("kv6")
    c.e("s_barrier")
    for i in range(16, 40): kv(i)
    c.wait_vm0()
    c.e("s_barrier")
    c.e("s_setprio 0")
    c.stamp(2)
    def loads(b, tag, nb=True, sc=""):
        if nb: c.vmem(f"buffer_load_dwordx4 v[{fB[b]}:{fB[b]+3}], v{vL16}, s[{S_WS}:{S_WS+3}], s{sB} offen", tag)
        for t in range(5):
            if t < 4: c.vmem(f"buffer_load_dwordx4 v[{fA[b][t]}:{fA[b][t]+3}], v{vL16}, s[{S_WS}:{S_WS+3}], s{sA} offen offset:{1024*t}", tag)
            else:
                c.e(f"s_add_u32 s{sAS}, s{sA}, 4096")
                c.vmem(f"buffer_load_dwordx4 v[{fA[b][t]}:{fA[b][t]+3}], v{vL16}, s[{S_WS}:{S_WS+3}], s{sAS} offen", tag)
        c.e(f"s_add_u32 s{sA}, s{sA}, 5120")
        if nb: c.e(f"s_add_u32 s{sB}, s{sB}, 1024")
    def mfmas(b, B=None):
        B = fB[b] if B is None else B
        for t in range(5):
            c.e(f"v_mfma_f32_32x32x16_bf16 v[{acc[t]}:{acc[t]+15}], v[{fA[b][t]}:{fA[b][t]+3}], v[{B}:{B+3}], v[{acc[t]}:{acc[t]+15}]")
    c.e(f"s_mul_i32 s{sA}, s{sFBK}, {108*5120}")
    c.e(f"s_mul_i32 s{sT0}, s{sGW}, {27*5120}")
    c.e(f"s_add_u32 s{sA}, s{sA}, s{sT0}")
    c.e(f"s_add_u32 s{sA}, s{sA}, {W2F}")
    c.e(f"s_mul_i32 s{sB}, s{sTO}, {108*1024}")
    c.e(f"s_mul_i32 s{sT0}, s{sGW}, {27*1024}")
    c.e(f"s_add_u32 s{sB}, s{sB}, s{sT0}")
    c.e(f"s_add_u32 s{sB}, s{sB}, {HF}")
    loads(0, "p")
    c.e(f"s_mov_b32 s{sIT}, 0")
    c.label("K2_GL")
    c.vm = ["a"]*6
    loads(1, "b"); c.wait_vm("a"); mfmas(0)
    loads(0, "a"); c.wait_vm("b"); mfmas(1)
    c.e(f"s_add_u32 s{sIT}, s{sIT}, 1")
    c.e(f"s_cmp_lt_u32 s{sIT}, 13")
    c.e("s_cbranch_scc1 K2_GL")
    c.wait_vm0(); mfmas(0)
    c.stamp(3)
    c.e(f"s_mul_i32 s{sA}, s{sFBK}, {40*5120}")
    c.e(f"s_mul_i32 s{sT0}, s{sGW}, {10*5120}")
    c.e(f"s_add_u32 s{sA}, s{sA}, s{sT0}")
    c.e(f"s_add_u32 s{sA}, s{sA}, {WOF}")
    loads(0, "w0", nb=False); loads(1, "w1", nb=False)
    c.e("s_barrier")
    c.stamp(4)
    c.e(f"s_lshl_b32 s{sT0}, s{sGW}, 6")
    c.e(f"s_add_u32 s{sT0}, s{sT0}, s{sRB}")
    c.e(f"s_lshl_b32 s{sT0}, s{sT0}, 7")
    c.e(f"s_add_u32 s{sT0}, s{sT0}, {FLAGS}")
    c.e(f"v_and_b32 v{vF}, 1, v0")
    c.e(f"v_lshlrev_b32 v{vF}, 12, v{vF}")
    c.e(f"s_mov_b32 s{sSPIN}, 0")
    c.label("K2_POLL")
    c.e(f"buffer_load_dword v{vt}, v{vF}, s[{S_WS}:{S_WS+3}], s{sT0} offen sc1")
    c.e("s_waitcnt vmcnt(0)")
    c.e(f"v_cmp_eq_u32 vcc, 1, v{vt}")
    c.e(f"s_add_u32 s{sSPIN}, s{sSPIN}, 1")
    c.e("s_cmp_eq_u64 vcc, -1")
    c.e("s_cbranch_scc1 K2_GOT")
    c.e("s_sleep 1")
    c.e(f"s_cmp_lt_u32 s{sSPIN}, 0x400000")
    c.e("s_cbranch_scc1 K2_POLL")
    c.label("K2_GOT")
    c.vm = []
    c.stamp(5)
    c.e("s_setprio 1")
    c.e(f"s_mul_i32 s{sB}, s{sTO}, {40*1024}")
    c.e(f"s_mul_i32 s{sT0}, s{sGW}, {10*1024}")
    c.e(f"s_add_u32 s{sB}, s{sB}, s{sT0}")
    c.e(f"s_add_u32 s{sB}, s{sB}, {OF}")
    for i in range(10):
        off = (i % 4)*1024
        if i and i % 4 == 0: c.e(f"s_add_u32 s{sB}, s{sB}, 4096")
        c.vmem(f"buffer_load_dwordx4 v[{oB[i]}:{oB[i]+3}], v{vL16}, s[{S_WS}:{S_WS+3}], s{sB} offen offset:{off} sc1", f"o{i}")
    for i in range(10):
        c.wait_vm([f"o{i}", f"w{i}"])
        mfmas(i & 1, oB[i])
        if i + 2 < 10: loads(i & 1, f"w{i+2}", nb=False)
    c.nop(16)
    c.e(f"s_mul_i32 s{sT0}, s{sGW}, 20480")
    c.e(f"v_add_u32 v{vt}, s{sT0}, v{vL16}")
    for t in range(5):
        for j in range(4):
            c.e(f"ds_write_b128 v{vt}, v[{acc[t]+4*j}:{acc[t]+4*j+3}] offset:{(t*4+j)*1024}")
    c.e("s_waitcnt lgkmcnt(0)")
    c.e("s_barrier")
    return a.hi

def gen_k2f():
    c = Code()
    c.e("s_cmp_ge_u32 s2, 256")
    c.e("s_cbranch_scc1 K2_END")
    c.e("s_load_dwordx2 s[4:5], s[0:1], 96")
    c.e("s_load_dwordx2 s[6:7], s[0:1], 0")
    c.e("s_load_dwordx4 s[24:27], s[0:1], 72")
    c.e("v_lshrrev_b32 v1, 6, v0")
    c.e("v_and_b32 v0, 63, v0")
    c.e(f"v_readfirstlane_b32 s{sW}, v1")
    c.e(f"s_and_b32 s{sRB}, s2, 31")
    c.e(f"s_lshr_b32 s{sG}, s2, 5")
    c.e(f"s_lshr_b32 s{sT0}, s{sG}, 2")
    c.e(f"s_lshl_b32 s{sTO}, s{sRB}, 1")
    c.e(f"s_add_u32 s{sTO}, s{sTO}, s{sT0}")
    c.e(f"s_and_b32 s{sFBK}, s{sG}, 3")
    c.e(f"s_sub_u32 s{sGW}, s{sW}, 8")
    c.e("s_waitcnt lgkmcnt(0)")
    c.stamp(0, real=True); c.stamp(1)
    srd(c, S_WS, 4, 5, WS_USED)
    srd(c, S_X, 6, 7, M*D*2)
    srd(c, S_B2, 24, 25, D*2)
    srd(c, S_OUT, 26, 27, M*D*2)
    c.e(f"s_cmp_ge_u32 s{sW}, 8")
    c.e("s_cbranch_scc1 K2_GEMM")
    ca = Code(); h1 = gen_attn(ca); c.lines += ca.lines
    c.label("K2_GEMM")
    cg = Code(); h2 = gen_gemm(cg); c.lines += cg.lines
    c.label("K2_FINAL")
    a = Alloc(1, NV); vL16 = a.get()
    c.e(f"v_lshlrev_b32 v{vL16}, 4, v0")
    final_epilogue(c, a, vL16)
    c.label("K2_DONE")
    c.finish(1, sW, S_WS)
    c.label("K2_END")
    c.e("s_endpgm")
    return c.text(), max(h1, h2, a.hi), K2_LDS
```

```python
import sys
from core import *
import k1
def build(which=("k1",)):
    launches = []; body = ""; desc = ""
    if "k1" in which:
        t, hi = k1.gen_k1()
        launches.append(f"; @launch kernel=k1_kernel grid=(256,1,1) block=(768,1,1) lds={k1.K1_LDS}")
        body += kernel_header("k1_kernel") + t
        desc += kernel_desc("k1_kernel", 168, ns=102)
    if "k2" in which and "k2f" not in which:
        import k2
        t, hi, lds = k2.gen_k2()
        launches.append(f"; @launch kernel=k2_kernel grid=(256,1,1) block=(512,1,1) lds={lds}")
        body += kernel_header("k2_kernel") + t
        desc += kernel_desc("k2_kernel", hi)
    if "k2f" in which:
        import k2f
        t, hi, lds = k2f.gen_k2f()
        launches.append(f"; @launch kernel=k2_kernel grid=(256,1,1) block=(768,1,1) lds={lds}")
        body += kernel_header("k2_kernel") + t
        desc += kernel_desc("k2_kernel", hi)
    if "k3" in which:
        import k3
        t, hi, lds = k3.gen_k3()
        launches.append(f"; @launch kernel=k3_kernel grid=(256,1,1) block=(512,1,1) lds={lds}")
        body += kernel_header("k3_kernel") + t
        desc += kernel_desc("k3_kernel", hi)
    body += "CODE_END:\n    s_endpgm\n"
    s = "\n".join(launches) + "\n"
    s += '.amdgcn_target "amdgcn-amd-amdhsa--gfx950"\n.text\n' + body
    s += '.section .rodata,"a"\n' + desc
    return s
if __name__ == "__main__":
    print(build(sys.argv[1].split(",")))
```

```python
from core import *
EXP = os.environ.get('EXP', '')

def trace(c, idx, vt):
    if 'trace' not in EXP: return
    c.e('s_memtime s[76:77]'); c.e('s_waitcnt lgkmcnt(0)'); c.lg = []
    c.e(f's_lshl_b32 s78, s{sW}, 7'); c.e(f's_add_u32 s78, s78, {TRC + 4*idx}')
    c.e(f'v_mov_b32 v{vt}, s78'); c.e(f'v_mov_b32 v{vt+1}, s76'); c.lds(f'ds_write_b32 v{vt}, v{vt+1}')

def trace_dump(c, vt):
    if 'trace' not in EXP: return
    c.e('s_waitcnt lgkmcnt(0)')
    c.e(f's_lshl_b32 s78, s{sW}, 7'); c.e(f'v_lshlrev_b32 v{vt}, 2, v0'); c.e(f'v_add_u32 v{vt+1}, s78, v{vt}'); c.e(f'v_add_u32 v{vt+1}, {TRC}, v{vt+1}')
    c.e(f'ds_read_b32 v{vt+1}, v{vt+1}'); c.e('s_waitcnt lgkmcnt(0)')
    c.e(f's_lshl_b32 s79, s2, 4'); c.e(f's_add_u32 s79, s79, s{sW}'); c.e('s_lshl_b32 s79, s79, 7'); c.e(f's_add_u32 s79, s79, {STAMP + 2*262144}')
    c.e('s_mov_b64 exec, 0xffffffff'); c.e(f'buffer_store_dword v{vt+1}, v{vt}, s[{S_O}:{S_O+3}], s79 offen'); c.e('s_mov_b64 exec, -1')

SLOT = 36864
XOFF = 20480
CSP  = 4*SLOT
ST   = CSP + 5120
RS   = ST + 2048
TRC  = RS + 512
K1_LDS = RS + 512 + (2048 if 'trace' in EXP else 0)
EPS = 1e-5
QSCALE = (20 ** -0.5) * math.log2(math.e)

S_X, S_W, S_O, S_B, S_SJ, S_SO, S_D, S_D2 = 8, 12, 16, 20, 44, 48, 96, 4
sW, sTW, sFH, sTB, sFT, sSTR, sWOFF, sXOFF, sW1K, sW2K, sOUT, sISH, sT0, sT1, sT2, sT3, sKB, sCH, sXB, sMASK, sSEG = range(52, 73)

def k1_prologue(c):
    c.e("s_cmp_ge_u32 s2, 256")
    c.e("s_cbranch_scc1 K1_END")
    c.e("s_load_dwordx4 s[24:27], s[0:1], 0")
    c.e("s_load_dwordx4 s[28:31], s[0:1], 16")
    c.e("s_load_dwordx2 s[32:33], s[0:1], 32")
    c.e("s_load_dwordx4 s[36:39], s[0:1], 48")
    c.e("s_load_dwordx2 s[40:41], s[0:1], 64")
    c.e("s_load_dwordx2 s[42:43], s[0:1], 96")
    c.e("s_load_dwordx2 s[6:7], s[0:1], 88")
    c.e("v_lshrrev_b32 v1, 6, v0")
    c.e("v_and_b32 v0, 63, v0")
    c.e(f"v_readfirstlane_b32 s{sW}, v1")
    c.e("s_and_b32 s3, s2, 7")
    c.e(f"s_lshr_b32 s{sT0}, s2, 3")
    c.e(f"s_and_b32 s{sTB}, s3, 1")
    c.e(f"s_lshl_b32 s{sTB}, s{sTB}, 3")
    c.e(f"s_and_b32 s{sT1}, s{sT0}, 7")
    c.e(f"s_add_u32 s{sTB}, s{sTB}, s{sT1}")
    c.e(f"s_lshr_b32 s{sFT}, s3, 1")
    c.e(f"s_lshl_b32 s{sFT}, s{sFT}, 2")
    c.e(f"s_lshr_b32 s{sT1}, s{sT0}, 3")
    c.e(f"s_add_u32 s{sFT}, s{sFT}, s{sT1}")
    c.e(f"s_sub_u32 s{sFT}, s{sFT}, 1")
    c.e(f"s_min_u32 s{sFT}, s{sFT}, 15")
    c.e(f"s_and_b32 s{sTW}, s{sW}, 3")
    c.e(f"s_lshr_b32 s{sFH}, s{sW}, 2")
    c.e("s_waitcnt lgkmcnt(0)")
    c.stamp(0, real=True)
    c.stamp(1)
    srd(c, S_X, 24, 25, M*D*2)
    srd(c, S_O, 42, 43, WS_USED)
    srd(c, S_D, 6, 7, 256)

def x_dma_addr(c, vXa, vXb, vt):
    c.e(f"s_lshl_b32 s{sT0}, s{sTB}, 7")
    c.e(f"s_lshl_b32 s{sT1}, s{sTW}, 5")
    c.e(f"s_add_u32 s{sT0}, s{sT0}, s{sT1}")
    c.e(f"v_lshrrev_b32 v{vt}, 3, v0")
    c.e(f"v_add_u32 v{vt}, s{sT0}, v{vt}")
    c.e(f"v_mul_u32_u24 v{vXa}, 1280, v{vt}")
    c.e(f"v_and_b32 v{vt}, 7, v0")
    c.e(f"v_lshrrev_b32 v{vXb}, 4, v0")
    c.e(f"v_xor_b32 v{vt}, v{vt}, v{vXb}")
    c.e(f"v_lshlrev_b32 v{vt}, 4, v{vt}")
    c.e(f"v_xor_b32 v{vXb}, 64, v{vt}")
    c.e(f"v_add_u32 v{vXb}, v{vXa}, v{vXb}")
    c.e(f"v_add_u32 v{vXb}, 10240, v{vXb}")
    c.e(f"v_add_u32 v{vXa}, v{vXa}, v{vt}")

def x_read_addr(c, vRX, vt, vt2):
    c.e(f"v_and_b32 v{vt}, 31, v0")
    c.e(f"v_bfe_u32 v{vt2}, v0, 1, 3")
    c.e(f"v_lshrrev_b32 v{vRX}, 5, v0")
    c.e(f"v_xor_b32 v{vt2}, v{vt2}, v{vRX}")
    c.e(f"v_lshlrev_b32 v{vt2}, 4, v{vt2}")
    c.e(f"s_lshl_b32 s{sT0}, s{sTW}, 5")
    c.e(f"v_add_u32 v{vt}, s{sT0}, v{vt}")
    c.e(f"v_lshlrev_b32 v{vt}, 7, v{vt}")
    c.e(f"v_add_u32 v{vt}, v{vt}, v{vt2}")
    c.e(f"v_add_u32 v{vRX}, {XOFF}, v{vt}")
    for k in range(1, 4):
        c.e(f"v_xor_b32 v{vRX+k}, {32*k}, v{vRX}")
    for k in range(4):
        c.e(f"v_add_u32 v{vRX+4+k}, {2*SLOT}, v{vRX+k}")

def tr_addr(c, vd, rowstride, hmul, vt):
    c.e(f"v_lshrrev_b32 v{vd}, 5, v0")
    c.e(f"v_mul_u32_u24 v{vd}, {hmul}, v{vd}")
    c.e(f"v_bfe_u32 v{vt}, v0, 2, 2")
    c.e(f"v_add_u32 v{vd}, v{vd}, v{vt}")
    c.e(f"v_mul_u32_u24 v{vd}, {rowstride}, v{vd}")
    c.e(f"v_bfe_u32 v{vt}, v0, 4, 1")
    c.e(f"v_lshl_add_u32 v{vd}, v{vt}, 5, v{vd}")
    c.e(f"v_and_b32 v{vt}, 3, v0")
    c.e(f"v_lshl_add_u32 v{vd}, v{vt}, 3, v{vd}")

def x_dma(c, vXa, vXb, chunk, tag):
    slot = chunk % 4
    c.e(f"s_lshl_b32 s{sXB}, s{sCH}, 7")
    for i in range(4):
        c.e(f"s_add_u32 m0, s{sW2K}, {slot*SLOT + XOFF + 1024*i}")
        c.e(f"s_add_u32 s{sXOFF}, s{sXB}, {(i >> 1)*16*1280}")
        c.vmem(f"buffer_load_dwordx4 v{vXb if i & 1 else vXa}, s[{S_X}:{S_X+3}], s{sXOFF} offen lds", tag)
    c.e(f"s_add_u32 s{sCH}, s{sCH}, 1")
    c.e(f"s_cmp_eq_u32 s{sCH}, 10")
    c.e(f"s_cselect_b32 s{sCH}, 0, s{sCH}")

def split_hi_lo(c, val, hi, lo, tmp):
    c.e(f"v_cvt_pk_bf16_f32 v{tmp}, v{val}, v{val}")
    c.e(f"v_and_b32 v{hi}, 0xffff0000, v{tmp}")
    c.e(f"v_sub_f32 v{lo}, v{val}, v{hi}")

def token_stats(c, vS, vQ, va, vb, vc_, vd):
    c.e(f"v_add_f32 v{vS}, v{vS}, v{vS+1}")
    c.e(f"v_add_f32 v{vQ}, v{vQ}, v{vQ+1}")
    c.e(f"v_mov_b32 v{va}, v{vS}")
    c.e(f"v_mov_b32 v{vb}, v{vQ}")
    c.nop(2)
    c.e(f"v_permlane32_swap_b32 v{vS}, v{va}")
    c.e(f"v_permlane32_swap_b32 v{vQ}, v{vb}")
    c.nop(2)
    c.e(f"v_add_f32 v{vS}, v{vS}, v{va}")
    c.e(f"v_add_f32 v{vQ}, v{vQ}, v{vb}")
    c.e(f"v_mul_f32 v{va}, {fhex(1.0/640)}, v{vS}")
    c.e(f"v_mul_f32 v{vQ}, {fhex(1.0/640)}, v{vQ}")
    c.e(f"v_fma_f32 v{vQ}, -v{va}, v{va}, v{vQ}")
    c.e(f"v_max_f32 v{vQ}, 0, v{vQ}")
    c.e(f"v_add_f32 v{vQ}, {fhex(EPS)}, v{vQ}")
    c.e(f"v_rsq_f32 v{vb}, v{vQ}")
    c.nop(1)
    c.e(f"v_mul_f32 v{vc_}, v{vQ}, v{vb}")

def build_Baug(c, vB, vmean, vstd, t0, t1, t2, t3):
    c.e(f"v_sub_f32 v{t0}, 0, v{vmean}")
    split_hi_lo(c, t0, t1, t2, t3)
    c.e(f"v_cvt_pk_bf16_f32 v{vB}, v{t1}, v{t2}")
    split_hi_lo(c, vstd, t0, t2, t3)
    c.e(f"v_cvt_pk_bf16_f32 v{vB+1}, v{t1}, v{t0}")
    c.e(f"v_mov_b32 v{vB+3}, 0")
    c.e(f"v_cvt_pk_bf16_f32 v{vB+2}, v{t2}, v{vB+3}")

def build_Aaug(c, vA, vcs, vbias, t0, t1, t2):
    c.e(f"v_cvt_pk_bf16_f32 v{vA}, v{vcs}, v{vcs}")
    c.e(f"v_and_b32 v{t0}, 0xffff0000, v{vA}")
    c.e(f"v_sub_f32 v{t1}, v{vcs}, v{t0}")
    c.e(f"v_cvt_pk_bf16_f32 v{vA+1}, v{t1}, v{vbias}")
    c.e(f"v_mov_b32 v{vA+3}, 0")
    c.e(f"v_cvt_pk_bf16_f32 v{vA+2}, v{vbias}, v{vA+3}")

def o_fill(c, r4, vaddr, tag):
    c.e(f"s_mul_i32 s{sT0}, s2, 10240")
    c.e(f"s_lshl_b32 s{sT1}, s{sTW}, 10")
    c.e(f"s_add_u32 s{sT0}, s{sT0}, s{sT1}")
    c.e(f"s_add_u32 s{sT0}, s{sT0}, {OF}")
    for r in range(4): c.e(f"v_mov_b32 v{r4+r}, -1")
    c.e(f"v_lshlrev_b32 v{vaddr}, 4, v0")
    c.e(f"buffer_store_dwordx4 v[{r4}:{r4+3}], v{vaddr}, s[{S_O}:{S_O+3}], s{sT0} offen sc0 sc1")
    c.e(f"s_add_u32 s{sT0}, s{sT0}, 4096")
    c.e(f"buffer_store_dwordx4 v[{r4}:{r4+3}], v{vaddr}, s[{S_O}:{S_O+3}], s{sT0} offen sc0 sc1")
    c.e(f"s_cmp_ge_u32 s{sTW}, 2")
    c.e(f"s_cbranch_scc1 K1_NF{tag}")
    c.e(f"s_add_u32 s{sT0}, s{sT0}, 4096")
    c.e(f"buffer_store_dwordx4 v[{r4}:{r4+3}], v{vaddr}, s[{S_O}:{S_O+3}], s{sT0} offen sc0 sc1")
    c.label(f"K1_NF{tag}")

def k1_compute(c):
    tiles = [0, 1, 2, 3, 4]; nt = 5
    L = "K1C"
    a = Alloc(1, 168)
    vt, vt2 = a.get(), a.get()
    vRW = a.get(2)
    vRX = a.get(8)
    vL16 = a.get()
    vCS = [a.get() for _ in range(nt)]
    vBias = [a.get() for _ in range(nt)]
    acc = [a.get(16, 4) for _ in range(nt)]
    fW = [[a.get(4, 4) for _ in range(nt)] for _ in range(2)]
    fX = [a.get(4, 4) for _ in range(2)]
    c.e("s_setprio 2")
    c.e(f"v_lshlrev_b32 v{vL16}, 4, v0")
    c.e(f"v_and_b32 v{vt}, 31, v0")
    c.e(f"v_lshlrev_b32 v{vt}, 1, v{vt}")
    for i, t in enumerate(tiles):
        c.vmem(f"buffer_load_ushort v{vBias[i]}, v{vt}, s[{S_B}:{S_B+3}], 0 offen offset:{64*t}", "bias")
    tr_addr(c, vRW, 320, 8, vt)
    c.e(f"v_add_u32 v{vRW+1}, {2*SLOT}, v{vRW}")
    x_read_addr(c, vRX, vt, vt2)
    for t in range(nt):
        for i in range(16): c.e(f"v_mov_b32 v{acc[t]+i}, 0")
    def reads(n):
        ch, sp = divmod(n, 4); slot = ch % 4; b = n & 1
        hi = slot >> 1; base = (slot & 1) * SLOT
        c.lds(f"ds_read_b128 v[{fX[b]}:{fX[b]+3}], v{vRX+4*hi+sp} offset:{base}", n)
        for i, t in enumerate(tiles):
            off = base + sp*5120 + 64*t
            c.lds(f"ds_read_b64_tr_b16 v[{fW[b][i]}:{fW[b][i]+1}], v{vRW+hi} offset:{off}", n)
            c.lds(f"ds_read_b64_tr_b16 v[{fW[b][i]+2}:{fW[b][i]+3}], v{vRW+hi} offset:{off+1280}", n)
    trace(c, 0, vt)
    c.e("s_barrier")
    trace(c, 1, vt)
    c.stamp(2)
    reads(0)
    for n in range(40):
        ch, sp = divmod(n, 4); b = n & 1
        c.wait_lg(n)
        if sp == 3 and ch + 1 < 10:
            trace(c, 2 + 2*ch, vt)
            c.e("s_barrier")
            trace(c, 3 + 2*ch, vt)
        save = c.lines; c.lines = []
        if n + 1 < 40: reads(n + 1)
        rd = c.lines; c.lines = save
        cnt = [4, 4, 3, 0, 0]
        for i in range(nt):
            c.e(f"v_mfma_f32_32x32x16_bf16 v[{acc[i]}:{acc[i]+15}], v[{fW[b][i]}:{fW[b][i]+3}], v[{fX[b]}:{fX[b]+3}], v[{acc[i]}:{acc[i]+15}]")
            c.lines += rd[:cnt[i]]; rd = rd[cnt[i]:]
    c.wait_vm("bias")
    c.stamp(3)
    trace(c, 20, vt)
    tmp = a.get(8, 4)
    c.e("s_barrier")
    trace(c, 21, vt)
    trace_dump(c, vt)
    c.e(f"v_and_b32 v{vt}, 31, v0")
    c.e(f"s_lshl_b32 s{sT0}, s{sTW}, 5")
    c.e(f"v_add_u32 v{vt2}, s{sT0}, v{vt}")
    c.e(f"v_lshlrev_b32 v{vt2}, 4, v{vt2}")
    c.e(f"v_add_u32 v{vt2}, {ST}, v{vt2}")
    stt = a.get(4, 4)
    c.lds(f"ds_read_b128 v[{stt}:{stt+3}], v{vt2}")
    c.e(f"v_lshlrev_b32 v{vt}, 5, v{vt}")
    c.e(f"v_add_u32 v{vt}, {CSP}, v{vt}")
    for i, t in enumerate(tiles):
        c.lds(f"ds_read_b128 v[{fW[0][i]}:{fW[0][i]+3}], v{vt} offset:{t*1024}")
        c.lds(f"ds_read_b128 v[{fW[1][i]}:{fW[1][i]+3}], v{vt} offset:{t*1024+16}")
    c.wait_lg0()
    c.e(f"v_cmp_gt_u32 vcc, 32, v0")
    for i in range(nt):
        A, B = fW[0][i], fW[1][i]
        c.e(f"v_add_f32 v{A}, v{A}, v{A+1}"); c.e(f"v_add_f32 v{A+2}, v{A+2}, v{A+3}")
        c.e(f"v_add_f32 v{B}, v{B}, v{B+1}"); c.e(f"v_add_f32 v{B+2}, v{B+2}, v{B+3}")
        c.e(f"v_add_f32 v{A}, v{A}, v{A+2}"); c.e(f"v_add_f32 v{B}, v{B}, v{B+2}")
        c.e(f"v_add_f32 v{A}, v{A}, v{B}")
        c.e(f"v_cndmask_b32 v{vCS[i]}, 0, v{A}, vcc")
        c.e(f"v_lshlrev_b32 v{vBias[i]}, 16, v{vBias[i]}")
        c.e(f"v_cndmask_b32 v{vBias[i]}, 0, v{vBias[i]}, vcc")
    vB = fX[0]
    build_Baug(c, vB, stt, stt+2, tmp, tmp+1, tmp+2, tmp+3)
    for i in range(nt):
        build_Aaug(c, fW[0][i], vCS[i], vBias[i], tmp, tmp+1, tmp+2)
    c.nop(2)
    for i in range(nt):
        c.e(f"v_mfma_f32_32x32x16_bf16 v[{acc[i]}:{acc[i]+15}], v[{fW[0][i]}:{fW[0][i]+3}], v[{vB}:{vB+3}], v[{acc[i]}:{acc[i]+15}]")
    F1 = fW[1]
    rs = F1[0]; sd = F1[0] + 2; k1p = F1[1]; k2p = F1[1] + 2
    c1 = -2*math.sqrt(2/math.pi)*math.log2(math.e); c2 = c1*0.044715
    c.e(f"s_cmp_eq_u32 s{sISH}, 0")
    c.e(f"s_cbranch_scc0 {L}_H")
    c.e(f"v_mul_f32 v{rs}, {fhex(QSCALE)}, v{stt+1}")
    c.e(f"v_mov_b32 v{rs+1}, v{rs}")
    c.nop(12)
    for i, t in enumerate(tiles):
        A = acc[i]
        for p in range(8):
            c.e(f"v_pk_mul_f32 v[{A+2*p}:{A+2*p+1}], v[{A+2*p}:{A+2*p+1}], v[{rs}:{rs+1}]")
        for p in range(8):
            c.e(f"v_cvt_pk_bf16_f32 v{A+p}, v{A+2*p}, v{A+2*p+1}")
        c.e(f"s_add_u32 s{sT0}, s{sOUT}, {2048*t}")
        c.e(f"buffer_store_dwordx4 v[{A}:{A+3}], v{vL16}, s[{S_O}:{S_O+3}], s{sT0} offen sc0 sc1")
        c.e(f"buffer_store_dwordx4 v[{A+4}:{A+7}], v{vL16}, s[{S_O}:{S_O+3}], s{sT0} offen offset:1024 sc0 sc1")
    c.stamp(4)
    c.finish(0, sW, S_O)
    c.label(f"{L}_H")
    r_ = stt + 1
    c.e(f"v_mul_f32 v{k1p}, {fhex(c1)}, v{r_}")
    c.e(f"v_mul_f32 v{k2p}, v{r_}, v{r_}")
    c.e(f"v_mul_f32 v{k2p}, v{k2p}, v{r_}")
    c.e(f"v_mul_f32 v{k2p}, {fhex(c2)}, v{k2p}")
    c.e(f"v_mov_b32 v{k1p+1}, v{k1p}")
    c.e(f"v_mov_b32 v{k2p+1}, v{k2p}")
    c.e(f"v_mov_b32 v{sd}, v{stt+2}")
    c.e(f"v_mov_b32 v{sd+1}, v{stt+2}")
    c.nop(8)
    g = [F1[2], F1[3]]
    def gelu_stage(A, q, G):
        P = [A+4*q, A+4*q+2]
        return [[f"v_pk_mul_f32 v[{G+2*u}:{G+2*u+1}], v[{z}:{z+1}], v[{z}:{z+1}]" for u, z in enumerate(P)],
                [f"v_pk_fma_f32 v[{G+2*u}:{G+2*u+1}], v[{G+2*u}:{G+2*u+1}], v[{k2p}:{k2p+1}], v[{k1p}:{k1p+1}]" for u, z in enumerate(P)],
                [f"v_pk_mul_f32 v[{G+2*u}:{G+2*u+1}], v[{G+2*u}:{G+2*u+1}], v[{z}:{z+1}]" for u, z in enumerate(P)],
                [f"v_exp_f32 v{G+u}, v{G+u}" for u in range(4)],
                [f"v_pk_fma_f32 v[{G+2*u}:{G+2*u+1}], v[{G+2*u}:{G+2*u+1}], v[{sd}:{sd+1}], v[{sd}:{sd+1}]" for u in range(2)],
                [f"v_rcp_f32 v{G+u}, v{G+u}" for u in range(4)],
                [f"v_pk_mul_f32 v[{z}:{z+1}], v[{z}:{z+1}], v[{G+2*u}:{G+2*u+1}]" for u, z in enumerate(P)],
                [f"v_cvt_pk_bf16_f32 v{A+2*q+u}, v{z}, v{z+1}" for u, z in enumerate(P)]]
    for i, t in enumerate(tiles):
        A = acc[i]
        if t == 4:
            c.e(f"s_cmp_eq_u32 s{sFT}, 14")
            c.e(f"s_cbranch_scc1 {L}_done")
        for q2 in range(2):
            X = gelu_stage(A, 2*q2, g[0]); Y = gelu_stage(A, 2*q2+1, g[1])
            for st in range(8):
                for x_ in X[st]: c.e(x_)
                for y_ in Y[st]: c.e(y_)
        c.e(f"s_add_u32 s{sT0}, s{sOUT}, {2048*t}")
        c.e(f"buffer_store_dwordx4 v[{A}:{A+3}], v{vL16}, s[{S_O}:{S_O+3}], s{sT0} offen sc0 sc1")
        c.e(f"buffer_store_dwordx4 v[{A+4}:{A+7}], v{vL16}, s[{S_O}:{S_O+3}], s{sT0} offen offset:1024 sc0 sc1")
    c.label(f"{L}_done")
    c.stamp(4)
    c.finish(0, sW, S_O)
    return a.hi

CHK = int(os.environ.get('CHK', '8'))
def k1_aux(c):
    a = Alloc(1, 168)
    vt, vt2 = a.get(), a.get()
    vRW = a.get(2)
    vU = a.get(10); vZ = a.get(); vA = a.get(); vG = a.get()
    vCS = [a.get() for _ in range(5)]; vC2 = [a.get() for _ in range(5)]
    stt = a.get(8, 4)
    fW = [a.get(4, 4) for _ in range(5)]
    c.e(f"s_mov_b32 s{sMASK}, 0xffff0000")
    tr_addr(c, vRW, 320, 8, vt)
    c.e(f"s_mul_i32 s{sT0}, s{sTW}, 5120")
    c.e(f"v_add_u32 v{vRW}, s{sT0}, v{vRW}")
    c.e(f"v_add_u32 v{vRW+1}, {2*SLOT}, v{vRW}")
    for r in vCS + vC2: c.e(f"v_mov_b32 v{r}, 0")
    def work(ch):
        slot = ch % 4; hi = slot >> 1; base = (slot & 1)*SLOT
        for t in range(5):
            off = base + 64*t
            c.lds(f"ds_read_b64_tr_b16 v[{fW[t]}:{fW[t]+1}], v{vRW+hi} offset:{off}", "w")
            c.lds(f"ds_read_b64_tr_b16 v[{fW[t]+2}:{fW[t]+3}], v{vRW+hi} offset:{off+1280}", "w")
        c.wait_lg0()
        if 'nocs' in EXP: return
        for r in range(4):
            for t in range(5):
                c.e(f"v_lshlrev_b32 v{vU+2*t}, 16, v{fW[t]+r}")
                c.e(f"v_and_b32 v{vU+2*t+1}, s{sMASK}, v{fW[t]+r}")
            for t in range(5):
                c.e(f"v_add_f32 v{vCS[t]}, v{vCS[t]}, v{vU+2*t}")
                c.e(f"v_add_f32 v{vC2[t]}, v{vC2[t]}, v{vU+2*t+1}")
    c.e(f"s_lshl_b32 s{sT2}, s{sTB}, 4")
    c.e(f"s_lshl_b32 s{sT3}, s{sTB}, 11")
    c.e(f"s_add_u32 s{sT3}, s{sT3}, {STATS}")
    c.e(f"v_and_b32 v{vZ}, 3, v0")
    c.e(f"v_lshlrev_b32 v{vZ}, 2, v{vZ}")
    c.e(f"v_lshlrev_b32 v{vA}, 4, v0")
    c.e("s_barrier")
    for ch in range(10):
        if ch == CHK:
            c.e(f"s_cmp_lg_u32 s{sTW}, 0")
            c.e("s_cbranch_scc1 K1_AX0")
            c.e(f"buffer_load_dword v{vG}, v{vZ}, s[{S_D}:{S_D+3}], s{sT2} offen sc1")
            c.label("K1_AX0")
        work(ch)
        if ch == CHK:
            c.e(f"s_cmp_lg_u32 s{sTW}, 0")
            c.e("s_cbranch_scc1 K1_AX1")
            c.e(f"s_mov_b32 s{sKB}, 0")
            c.label("K1_AXP")
            c.e("s_waitcnt vmcnt(0)")
            c.e(f"v_cmp_eq_u32 vcc, 1, v{vG}")
            c.e(f"s_add_u32 s{sKB}, s{sKB}, 1")
            c.e("s_cmp_eq_u64 vcc, -1")
            c.e("s_cbranch_scc1 K1_AXG")
            c.e("s_sleep 12")
            c.e(f"buffer_load_dword v{vG}, v{vZ}, s[{S_D}:{S_D+3}], s{sT2} offen sc1")
            c.e(f"s_cmp_lt_u32 s{sKB}, 0x10000")
            c.e("s_cbranch_scc1 K1_AXP")
            c.label("K1_AXG")
            c.e(f"buffer_load_dwordx4 v[{stt}:{stt+3}], v{vA}, s[{S_O}:{S_O+3}], s{sT3} offen sc1")
            c.e(f"buffer_load_dwordx4 v[{stt+4}:{stt+7}], v{vA}, s[{S_O}:{S_O+3}], s{sT3} offen offset:1024 sc1")
            c.label("K1_AX1")
        if ch < 9: c.e("s_barrier")
    for t in range(5): c.e(f"v_add_f32 v{vCS[t]}, v{vCS[t]}, v{vC2[t]}")
    c.nop(4)
    c.e(f"v_and_b32 v{vt}, 31, v0")
    c.e(f"v_lshlrev_b32 v{vt}, 5, v{vt}")
    c.e(f"v_lshrrev_b32 v{vt2}, 5, v0")
    c.e(f"v_lshl_add_u32 v{vt}, v{vt2}, 2, v{vt}")
    c.e(f"s_lshl_b32 s{sT0}, s{sTW}, 3")
    c.e(f"v_add_u32 v{vt}, s{sT0}, v{vt}")
    c.e(f"v_add_u32 v{vt}, {CSP}, v{vt}")
    for t in range(5):
        c.lds(f"ds_write_b32 v{vt}, v{vCS[t]} offset:{t*1024}")
    c.e(f"s_cmp_lg_u32 s{sTW}, 0")
    c.e("s_cbranch_scc1 K1_AX2")
    c.e("s_waitcnt vmcnt(0)")
    c.e(f"v_add_u32 v{vt}, {ST}, v{vA}")
    c.e(f"ds_write_b128 v{vt}, v[{stt}:{stt+3}]")
    c.e(f"ds_write_b128 v{vt}, v[{stt+4}:{stt+7}] offset:1024")
    c.label("K1_AX2")
    c.wait_lg0()
    c.e("s_barrier")
    o_fill(c, fW[0], vt, "A")
    c.finish(0, sW, S_O)
    return a.hi

def k1_kv(c, fh):
    L = f"K1KV{fh}"
    a = Alloc(1, 168)
    vt, vt2 = a.get(), a.get()
    vRW = a.get()
    vRX = a.get(8)
    vL16 = a.get()
    vOnes = a.get()
    vS = a.get(2); vQ = a.get(2); vCS = a.get(); vC4 = a.get(4)
    acc = a.get(16, 4)
    fW = [a.get(4, 4) for _ in range(2)]
    fX = [a.get(4, 4) for _ in range(2)]
    c.e(f"v_lshlrev_b32 v{vL16}, 4, v0")
    tr_addr(c, vRW, 40, 8, vt)
    c.e(f"v_add_u32 v{vRW}, {2*fh*SLOT}, v{vRW}")
    x_read_addr(c, vRX, vt, vt2)
    c.e(f"v_mov_b32 v{vOnes}, 0x3f803f80")
    for r in (vS, vS+1, vQ, vQ+1, vCS, vC4, vC4+1, vC4+2, vC4+3): c.e(f"v_mov_b32 v{r}, 0")
    for i in range(16): c.e(f"v_mov_b32 v{acc+i}, 0")
    def reads(n):
        ch, sp = divmod(n, 4); slot = ch % 4; b = n & 1
        hi = slot >> 1; base = (slot & 1) * SLOT
        c.lds(f"ds_read_b128 v[{fX[b]}:{fX[b]+3}], v{vRX+4*hi+sp} offset:{base}", n)
        hf = n // 20; k0 = (n % 20) * 16
        off = hf*SLOT + k0*40
        c.lds(f"ds_read_b64_tr_b16 v[{fW[b]}:{fW[b]+1}], v{vRW} offset:{off}", n)
        c.lds(f"ds_read_b64_tr_b16 v[{fW[b]+2}:{fW[b]+3}], v{vRW} offset:{off+160}", n)
    tmp = a.get(8, 4)
    if fh == 0:
        c.e("s_setprio 3")
        m0_ = a.mark()
        xb = [a.get(40, 4), a.get(40, 4)]
        vG = a.get(); SQ = a.get(8)
        c.e(f"s_lshl_b32 s{sT0}, s{sTB}, 7")
        c.e(f"s_lshl_b32 s{sT1}, s{sTW}, 5")
        c.e(f"s_add_u32 s{sT0}, s{sT0}, s{sT1}")
        c.e(f"v_lshrrev_b32 v{vG}, 3, v0")
        c.e(f"v_add_u32 v{vG}, s{sT0}, v{vG}")
        c.e(f"v_mul_u32_u24 v{vG}, 1280, v{vG}")
        c.e(f"v_and_b32 v{vt}, 7, v0")
        c.e(f"v_lshl_add_u32 v{vG}, v{vt}, 4, v{vG}")
        def xload(g):
            for ch in range(10):
                c.e(f"s_mov_b32 s{sT1}, {g*10240 + ch*128}")
                c.vmem(f"buffer_load_dwordx4 v[{xb[g&1]+4*ch}:{xb[g&1]+4*ch+3}], v{vG}, s[{S_X}:{S_X+3}], s{sT1} offen", f"xs{g}")
        xload(0); xload(1)
        for r in range(8): c.e(f"v_mov_b32 v{SQ+r}, 0")
        for g in range(4):
            c.wait_vm(f"xs{g}")
            for r in range(40):
                c.e(f"v_dot2_f32_bf16 v{SQ+2*g}, v{xb[g&1]+r}, v{vOnes}, v{SQ+2*g}")
                c.e(f"v_dot2_f32_bf16 v{SQ+2*g+1}, v{xb[g&1]+r}, v{xb[g&1]+r}, v{SQ+2*g+1}")
            if g + 2 < 4: xload(g + 2)
        c.nop(4)
        for ctl in ("quad_perm:[1,0,3,2]", "quad_perm:[2,3,0,1]", "row_half_mirror"):
            for r in range(8):
                c.e(f"v_add_f32_dpp v{SQ+r}, v{SQ+r}, v{SQ+r} {ctl} row_mask:0xf bank_mask:0xf")
            c.nop(2)
        c.e(f"v_and_b32 v{vt}, 7, v0")
        for g in range(1, 4):
            c.e(f"v_cmp_eq_u32 vcc, {g}, v{vt}")
            c.nop(2)
            c.e(f"v_cndmask_b32 v{SQ}, v{SQ}, v{SQ+2*g}, vcc")
            c.e(f"v_cndmask_b32 v{SQ+1}, v{SQ+1}, v{SQ+2*g+1}, vcc")
        c.e(f"v_mul_f32 v{tmp}, {fhex(1.0/640)}, v{SQ}")
        c.e(f"v_mul_f32 v{SQ+1}, {fhex(1.0/640)}, v{SQ+1}")
        c.e(f"v_fma_f32 v{SQ+1}, -v{tmp}, v{tmp}, v{SQ+1}")
        c.e(f"v_max_f32 v{SQ+1}, 0, v{SQ+1}")
        c.e(f"v_add_f32 v{SQ+1}, {fhex(EPS)}, v{SQ+1}")
        c.e(f"v_rsq_f32 v{tmp+1}, v{SQ+1}")
        c.nop(1)
        c.e(f"v_mul_f32 v{tmp+2}, v{SQ+1}, v{tmp+1}")
        c.e(f"v_mov_b32 v{tmp+3}, 0")
        c.e(f"v_lshlrev_b32 v{vt2}, 3, v{vt}")
        c.e(f"v_lshrrev_b32 v{vG}, 3, v0")
        c.e(f"v_add_u32 v{vt2}, v{vt2}, v{vG}")
        c.e(f"v_lshlrev_b32 v{vt2}, 4, v{vt2}")
        c.e(f"s_lshl_b32 s{sT0}, s{sTB}, 2")
        c.e(f"s_add_u32 s{sT0}, s{sT0}, s{sTW}")
        c.e(f"s_lshl_b32 s{sT1}, s{sT0}, 9")
        c.e(f"s_add_u32 s{sT1}, s{sT1}, {STATS}")
        c.e(f"v_cmp_gt_u32 vcc, 4, v{vt}")
        c.e(f"s_and_saveexec_b64 s[4:5], vcc")
        c.e(f"buffer_store_dwordx4 v[{tmp}:{tmp+3}], v{vt2}, s[{S_O}:{S_O+3}], s{sT1} offen sc0 sc1")
        c.e(f"s_lshl_b32 s{sT1}, s{sTW}, 9")
        c.e(f"v_add_u32 v{vt2}, s{sT1}, v{vt2}")
        c.e(f"v_add_u32 v{vt2}, {ST}, v{vt2}")
        c.e(f"ds_write_b128 v{vt2}, v[{tmp}:{tmp+3}]")
        c.e("s_mov_b64 exec, -1")
        c.e("s_waitcnt vmcnt(0) lgkmcnt(0)")
        c.vm = []
        c.e(f"s_lshl_b32 s{sT0}, s{sT0}, 2")
        c.e(f"v_mov_b32 v{vt}, 1")
        c.e(f"v_mov_b32 v{vt2}, 0")
        c.e("s_mov_b64 exec, 1")
        c.e(f"buffer_store_dword v{vt}, v{vt2}, s[{S_D}:{S_D+3}], s{sT0} offen sc0 sc1")
        c.e("s_mov_b64 exec, -1")
        c.e("s_setprio 0")
        a.release(m0_)
    c.e("s_barrier")
    reads(0)
    for n in range(40):
        ch, sp = divmod(n, 4); b = n & 1
        c.wait_lg(n)
        if sp == 3 and ch + 1 < 10:
            c.e("s_barrier")
        if n + 1 < 40: reads(n + 1)
        if fh == 0:
            c.e(f"v_mfma_f32_32x32x16_bf16 v[{acc}:{acc+15}], v[{fW[b]}:{fW[b]+3}], v[{fX[b]}:{fX[b]+3}], v[{acc}:{acc+15}]")
        else:
            c.e(f"v_mfma_f32_32x32x16_bf16 v[{acc}:{acc+15}], v[{fX[b]}:{fX[b]+3}], v[{fW[b]}:{fW[b]+3}], v[{acc}:{acc+15}]")
    c.e(f"v_and_b32 v{vt}, 31, v0")
    c.e(f"s_lshl_b32 s{sT0}, s{sTW}, 5")
    c.e(f"v_add_u32 v{vt}, s{sT0}, v{vt}")
    c.e(f"v_lshlrev_b32 v{vt}, 4, v{vt}")
    c.e(f"v_add_u32 v{vt}, {ST}, v{vt}")
    c.lds(f"ds_read_b128 v[{tmp}:{tmp+3}], v{vt}")
    csb = [a.get(4, 4) for _ in range(4)]
    for n0 in range(0, 40, 4):
        for u in range(4):
            n = n0 + u; hf = n // 20; k0 = (n % 20) * 16; off = hf*SLOT + k0*40
            c.lds(f"ds_read_b64_tr_b16 v[{csb[u]}:{csb[u]+1}], v{vRW} offset:{off}", "cs")
            c.lds(f"ds_read_b64_tr_b16 v[{csb[u]+2}:{csb[u]+3}], v{vRW} offset:{off+160}", "cs")
        c.wait_lg0()
        for r in range(4):
            for u in range(4):
                c.e(f"v_dot2_f32_bf16 v{vC4+u}, v{csb[u]+r}, v{vOnes}, v{vC4+u}")
    c.nop(4)
    c.e(f"v_add_f32 v{vC4}, v{vC4}, v{vC4+1}")
    c.e(f"v_add_f32 v{vC4+2}, v{vC4+2}, v{vC4+3}")
    c.e(f"v_add_f32 v{vCS}, v{vC4}, v{vC4+2}")
    c.e(f"v_mov_b32 v{vt}, v{vCS}")
    c.nop(2)
    c.e(f"v_permlane32_swap_b32 v{vCS}, v{vt}")
    c.nop(2)
    c.e(f"v_add_f32 v{vCS}, v{vCS}, v{vt}")
    c.e(f"v_cmp_gt_u32 vcc, 32, v0")
    c.nop(2)
    c.e(f"v_cndmask_b32 v{vCS}, 0, v{vCS}, vcc")
    c.e(f"v_mov_b32 v{vt}, 0")
    t2 = a.get(4, 4)
    build_Baug(c, fX[0], tmp, tmp+2, t2, t2+1, t2+2, t2+3)
    build_Aaug(c, fW[0], vCS, vt, t2, t2+1, t2+2)
    c.nop(2)
    kvb = f"s{sOUT}"
    if fh == 0:
        c.e(f"v_mfma_f32_32x32x16_bf16 v[{acc}:{acc+15}], v[{fW[0]}:{fW[0]+3}], v[{fX[0]}:{fX[0]+3}], v[{acc}:{acc+15}]")
        c.nop(16)
        for r in range(12):
            c.e(f"v_mul_f32 v{acc+r}, v{acc+r}, v{tmp+1}")
        for p in range(6):
            c.e(f"v_cvt_pk_bf16_f32 v{acc+p}, v{acc+2*p}, v{acc+2*p+1}")
        c.e(f"buffer_store_dwordx4 v[{acc}:{acc+3}], v{vL16}, s[{S_O}:{S_O+3}], {kvb} offen sc0 sc1")
        c.e(f"v_lshlrev_b32 v{vt}, 3, v0")
        c.e(f"v_cmp_gt_u32 vcc, 32, v0")
        c.e(f"s_and_saveexec_b64 s[4:5], vcc")
        c.e(f"buffer_store_dwordx2 v[{acc+4}:{acc+5}], v{vt}, s[{S_O}:{S_O+3}], {kvb} offen offset:1024 sc0 sc1")
        c.finish(0, sW, S_O)
    else:
        c.e(f"v_mfma_f32_32x32x16_bf16 v[{acc}:{acc+15}], v[{fX[0]}:{fX[0]+3}], v[{fW[0]}:{fW[0]+3}], v[{acc}:{acc+15}]")
        c.e(f"v_and_b32 v{vt}, 31, v0")
        c.e(f"s_lshl_b32 s{sT0}, s{sTW}, 5")
        c.e(f"v_add_u32 v{vt}, s{sT0}, v{vt}")
        c.e(f"v_lshlrev_b32 v{vt}, 2, v{vt}")
        c.e(f"v_add_u32 v{vt}, {RS}, v{vt}")
        c.lds(f"ds_write_b32 v{vt}, v{tmp+1}")
        c.wait_lg0()
        c.e(f"v_lshrrev_b32 v{vt}, 5, v0")
        c.e(f"v_lshlrev_b32 v{vt}, 4, v{vt}")
        c.e(f"s_lshl_b32 s{sT0}, s{sTW}, 7")
        c.e(f"v_add_u32 v{vt}, s{sT0}, v{vt}")
        c.e(f"v_add_u32 v{vt}, {RS}, v{vt}")
        rr = a.get(16, 4)
        for j in range(4):
            c.lds(f"ds_read_b128 v[{rr+4*j}:{rr+4*j+3}], v{vt} offset:{32*j}")
        c.wait_lg0()
        c.nop(16)
        for r in range(16):
            c.e(f"v_mul_f32 v{acc+r}, v{acc+r}, v{rr+r}")
        for p in range(8):
            c.e(f"v_cvt_pk_bf16_f32 v{acc+p}, v{acc+2*p}, v{acc+2*p+1}")
        c.e(f"v_and_b32 v{vt}, 31, v0")
        c.e(f"v_lshrrev_b32 v{vt2}, 5, v0")
        c.e(f"v_mul_u32_u24 v{vt2}, 20, v{vt2}")
        c.e(f"v_add_u32 v{vt2}, v{vt2}, v{vt}")
        c.e(f"v_lshlrev_b32 v{vt2}, 4, v{vt2}")
        c.e(f"v_cmp_gt_u32 vcc, 20, v{vt}")
        c.e(f"s_and_saveexec_b64 s[4:5], vcc")
        c.e(f"buffer_store_dwordx4 v[{acc}:{acc+3}], v{vt2}, s[{S_O}:{S_O+3}], {kvb} offen offset:1280 sc0 sc1")
        c.e(f"buffer_store_dwordx4 v[{acc+4}:{acc+7}], v{vt2}, s[{S_O}:{S_O+3}], {kvb} offen offset:1920 sc0 sc1")
        c.finish(0, sW, S_O)
    return a.hi


def k1_loader(c, kv):
    a = Alloc(1, 168)
    vt, vt2 = a.get(), a.get()
    vXa, vXb = a.get(), a.get()
    vL16 = a.get()
    if 'noprio' not in EXP: c.e("s_setprio 3")
    c.e(f"s_lshl_b32 s{sW2K}, s{sTW}, 12")
    c.e(f"s_mul_i32 s{sW1K}, s{sTW}, 5120")
    if kv or 'norot' in EXP:
        c.e(f"s_mov_b32 s{sCH}, 0")
    else:
        c.e(f"s_lshr_b32 s{sCH}, s2, 3")
        c.e(f"s_mul_i32 s{sT0}, s{sCH}, 26")
        c.e(f"s_lshr_b32 s{sT0}, s{sT0}, 8")
        c.e(f"s_mul_i32 s{sT0}, s{sT0}, 10")
        c.e(f"s_sub_u32 s{sCH}, s{sCH}, s{sT0}")
    x_dma_addr(c, vXa, vXb, vt)
    c.e(f"v_lshlrev_b32 v{vL16}, 4, v0")
    if not kv:
        vWd = [a.get() for _ in range(5)]
        c.e(f"s_lshl_b32 s{sT0}, s{sTW}, 4")
        c.e(f"s_mul_i32 s{sT0}, s{sT0}, s{sSTR}")
        for i, r in enumerate(vWd):
            c.e(f"v_add_u32 v{vt}, {64*i}, v0")
            c.e(f"v_mul_u32_u24 v{vt2}, 3277, v{vt}")
            c.e(f"v_lshrrev_b32 v{vt2}, 16, v{vt2}")
            c.e(f"v_mul_u32_u24 v{r}, 20, v{vt2}")
            c.e(f"v_sub_u32 v{vt}, v{vt}, v{r}")
            c.e(f"v_mul_u32_u24 v{r}, s{sSTR}, v{vt2}")
            c.e(f"v_lshl_add_u32 v{r}, v{vt}, 4, v{r}")
            c.e(f"v_add_u32 v{r}, s{sT0}, v{r}")
        def dma(chunk):
            slot = chunk % 4
            c.e(f"s_lshl_b32 s{sWOFF}, s{sCH}, 6")
            c.e(f"s_mul_i32 s{sWOFF}, s{sSTR}, s{sWOFF}")
            for i, r in enumerate(vWd):
                c.e(f"s_add_u32 m0, s{sW1K}, {slot*SLOT + 1024*i}")
                c.e("s_nop 0")
                c.vmem(f"buffer_load_dwordx4 v{r}, s[{S_W}:{S_W+3}], s{sWOFF} offen lds", f"ch{chunk}")
            x_dma(c, vXa, vXb, chunk, f"ch{chunk}")
        dma(0); dma(1)
        vSJ = a.get()
        tr_addr(c, vSJ, 1280, 4, vt)
        c.e(f"v_add_u32 v{vSJ}, {2*SLOT}, v{vSJ}")
        trace(c, 22, vt)
        c.wait_vm("ch0")
        trace(c, 0, vt)
        c.e("s_barrier")
        trace(c, 1, vt)
        dma(2); dma(3)
        for ch in range(9):
            if ch == 4: c.stamp(2)
            c.wait_vm([f"ch{ch+1}"] + (["sj"] if ch == 8 else []))
            if ch == 4: c.stamp(3)
            trace(c, 2 + 2*ch, vt)
            c.e("s_barrier")
            trace(c, 3 + 2*ch, vt)
            if ch == 4: c.stamp(4)
            if ch + 4 < 10: dma(ch + 4)
            if ch == 4: c.stamp(5)
            if ch == 6:
                for i in range(5):
                    c.e(f"s_add_u32 m0, s{sW1K}, {2*SLOT + 1024*i}")
                    c.e(f"s_mul_i32 s{sT0}, s{sSEG}, s{sTW}")
                    c.e(f"s_add_u32 s{sT0}, s{sT0}, {1024*i}")
                    c.vmem(f"buffer_load_dwordx4 v{vL16}, s[{S_SJ}:{S_SJ+3}], s{sT0} offen lds", "sj")
        sj = [a.get(4, 4) for _ in range(5)]
        c.e(f"s_mul_i32 s{sT0}, s{sTW}, 320")
        c.e(f"v_add_u32 v{vt}, s{sT0}, v{vSJ}")
        for i in range(5):
            c.lds(f"ds_read_b64_tr_b16 v[{sj[i]}:{sj[i]+1}], v{vt} offset:{64*i}", "sjr")
            c.lds(f"ds_read_b64_tr_b16 v[{sj[i]+2}:{sj[i]+3}], v{vt} offset:{64*i + 8*1280}", "sjr")
        c.wait_lg0()
        c.e("s_barrier")
        trace_dump(c, vt)
        c.e(f"s_mul_i32 s{sT1}, s{sTW}, s{sT2}")
        c.e(f"s_add_u32 s{sT1}, s{sT1}, s{sT3}")
        for i in range(5):
            c.e(f"s_add_u32 s{sT0}, s{sT1}, {1024*i}")
            c.vstore(f"buffer_store_dwordx4 v[{sj[i]}:{sj[i]+3}], v{vL16}, s[{S_SO}:{S_SO+3}], s{sT0} offen sc0 sc1")
    else:
        c.e(f"s_lshr_b32 s{sT0}, s{sTW}, 1")
        c.e(f"s_cmp_eq_u32 s{sT0}, 0")
        c.e(f"s_cselect_b32 s{S_W}, s28, s30")
        c.e(f"s_cselect_b32 s{S_W+1}, s29, s31")
        c.e(f"s_and_b32 s{S_W+1}, s{S_W+1}, 0xffff")
        c.e(f"s_mov_b32 s{S_W+2}, 25600")
        c.e(f"s_mov_b32 s{S_W+3}, 0x20000")
        c.e(f"s_and_b32 s{sT1}, s{sTW}, 1")
        c.e(f"s_mul_i32 s{sWOFF}, s{sT1}, 12800")
        c.e(f"s_mul_i32 s{sW1K}, s{sTW}, {SLOT}")
        x_dma(c, vXa, vXb, 0, "ch0")
        for i in range(13):
            c.e(f"s_add_u32 m0, s{sW1K}, {1024*i}")
            c.e(f"s_add_u32 s{sT0}, s{sWOFF}, {1024*i}")
            c.vmem(f"buffer_load_dwordx4 v{vL16}, s[{S_W}:{S_W+3}], s{sT0} offen lds", "ch0")
        x_dma(c, vXa, vXb, 1, "ch1")
        c.wait_vm("ch0")
        c.e("s_barrier")
        for ch in range(2, 4): x_dma(c, vXa, vXb, ch, f"ch{ch}")
        for ch in range(9):
            c.wait_vm(f"ch{ch+1}")
            c.e("s_barrier")
            if ch + 4 < 10: x_dma(c, vXa, vXb, ch + 4, f"ch{ch+4}")
        o_fill(c, a.get(4, 4), vt, "K")
    c.finish(0, sW, S_O)
    return a.hi

def gen_k1():
    c = Code()
    k1_prologue(c)
    c.e(f"s_mov_b32 s{sSEG}, 5120")
    c.e(f"s_sub_u32 s5, s2, 108")
    c.e(f"s_cmp_lt_u32 s5, 108")
    c.e(f"s_cselect_b32 s{sT0}, s40, s32")
    c.e(f"s_cselect_b32 s{sT1}, s41, s33")
    c.e(f"s_cselect_b32 s{sKB}, s5, 0")
    c.e(f"s_mov_b32 s{sT2}, {108*5120}")
    c.e(f"s_mov_b32 s{sT3}, {W2F}")
    c.e(f"s_mul_i32 s3, s{sKB}, {16*1280}")
    c.e(f"s_cbranch_scc1 K1_SJ1")
    c.e(f"s_mov_b32 s{sT2}, {40*5120}")
    c.e(f"s_mov_b32 s{sT3}, {WOF}")
    c.e(f"s_sub_u32 s{sKB}, s5, 108")
    c.e(f"s_mul_i32 s3, s{sKB}, 26")
    c.e(f"s_lshr_b32 s3, s3, 8")
    c.e(f"s_mul_i32 s4, s3, 10")
    c.e(f"s_sub_u32 s4, s{sKB}, s4")
    c.e(f"s_cmp_lt_u32 s4, 8")
    c.e(f"s_cbranch_scc0 K1_SJR")
    c.e(f"s_lshl_b32 s3, s3, 3")
    c.e(f"s_add_u32 s3, s3, s4")
    c.e(f"s_mul_i32 s3, s3, {20*1280}")
    c.e(f"s_branch K1_SJ1")
    c.label("K1_SJR")
    c.e(f"s_lshl_b32 s3, s3, 1")
    c.e(f"s_add_u32 s3, s3, s4")
    c.e(f"s_sub_u32 s3, s3, 8")
    c.e(f"s_mul_i32 s3, s3, {80*1280}")
    c.e(f"s_add_u32 s3, s3, {16*1280}")
    c.e(f"s_mov_b32 s{sSEG}, {20*1280}")
    c.label("K1_SJ1")
    c.e(f"s_add_u32 s{S_SJ}, s{sT0}, s3")
    c.e(f"s_addc_u32 s{S_SJ+1}, s{sT1}, 0")
    c.e(f"s_and_b32 s{S_SJ+1}, s{S_SJ+1}, 0xffff")
    c.e(f"s_mul_i32 s4, s{sSEG}, 3")
    c.e(f"s_add_u32 s4, s4, 5120")
    c.e(f"s_cmp_lt_u32 s5, 148")
    c.e(f"s_cselect_b32 s{S_SJ+2}, s4, 0")
    c.e(f"s_cselect_b32 s{S_SO+2}, {WS_USED}, 0")
    c.e(f"s_mov_b32 s{S_SJ+3}, 0x20000")
    c.e(f"s_mov_b32 s{S_SO}, s42")
    c.e(f"s_and_b32 s{S_SO+1}, s43, 0xffff")
    c.e(f"s_mov_b32 s{S_SO+3}, 0x20000")
    c.e(f"s_mul_i32 s3, s{sKB}, 5120")
    c.e(f"s_add_u32 s{sT3}, s{sT3}, s3")
    if 'notouch' not in EXP:
        c.e(f"s_cmp_lg_u32 s{sFH}, 1")
        c.e("s_cbranch_scc1 K1_NOTOUCH")
        c.e("s_getpc_b64 s[4:5]")
        c.label("K1_PC")
        c.e(f"s_sub_u32 s4, s4, K1_PC-k1_kernel")
        c.e(f"s_subb_u32 s5, s5, 0")
        c.e(f"s_and_b32 s{S_D2+1}, s5, 0xffff")
        c.e(f"s_mov_b32 s{S_D2+2}, CODE_END-k1_kernel")
        c.e(f"s_mov_b32 s{S_D2+3}, 0x20000")
        c.e(f"s_lshr_b32 s3, s2, 3")
        c.e(f"s_and_b32 s3, s3, 1")
        c.e(f"s_lshl_b32 s3, s3, 2")
        c.e(f"s_add_u32 s3, s3, s{sTW}")
        c.e(f"s_lshl_b32 s3, s3, 13")
        c.e("v_lshlrev_b32 v1, 7, v0")
        c.e(f"buffer_load_dword v167, v1, s[{S_D2}:{S_D2+3}], s3 offen")
        c.label("K1_NOTOUCH")
    c.e(f"s_cmp_eq_u32 s{sFT}, 15")
    c.e("s_cbranch_scc1 K1_KV")
    c.e(f"s_cmp_lt_u32 s{sFT}, 4")
    c.e("s_cbranch_scc0 K1_HSET")
    c.e(f"s_mul_i32 s3, s{sFT}, 320")
    c.e(f"s_add_u32 s{S_W}, s26, s3")
    c.e(f"s_addc_u32 s{S_W+1}, s27, 0")
    c.e(f"s_sub_u32 s{S_W+2}, {640*640*2}, s3")
    c.e(f"s_mov_b32 s{sSTR}, 1280")
    c.e(f"s_mov_b32 s{sISH}, 0")
    c.e(f"s_mov_b32 s{S_B}, s38")
    c.e(f"s_mov_b32 s{S_B+1}, s39")
    c.e(f"s_mov_b32 s{S_B+2}, 0")
    c.e(f"s_lshl_b32 s3, s{sTB}, 2")
    c.e(f"s_add_u32 s3, s3, s{sTW}")
    c.e(f"s_mul_i32 s3, s3, 40")
    c.e(f"s_mul_i32 s{sOUT}, s{sFT}, 10")
    c.e(f"s_add_u32 s{sOUT}, s{sOUT}, s3")
    c.e(f"s_lshl_b32 s{sOUT}, s{sOUT}, 10")
    c.e(f"s_add_u32 s{sOUT}, s{sOUT}, {QF}")
    c.e("s_branch K1_MAIN")
    c.label("K1_HSET")
    c.e(f"s_sub_u32 s{sISH}, s{sFT}, 4")
    c.e(f"s_mul_i32 s3, s{sISH}, 320")
    c.e(f"s_add_u32 s{S_W}, s36, s3")
    c.e(f"s_addc_u32 s{S_W+1}, s37, 0")
    c.e(f"s_sub_u32 s{S_W+2}, {640*1728*2}, s3")
    c.e(f"s_mov_b32 s{sSTR}, 3456")
    c.e(f"s_add_u32 s{S_B}, s38, s3")
    c.e(f"s_addc_u32 s{S_B+1}, s39, 0")
    c.e(f"s_sub_u32 s{S_B+2}, {1728*2}, s3")
    c.e(f"s_lshl_b32 s3, s{sTB}, 2")
    c.e(f"s_add_u32 s3, s3, s{sTW}")
    c.e(f"s_mul_i32 s3, s3, 108")
    c.e(f"s_mul_i32 s{sOUT}, s{sISH}, 10")
    c.e(f"s_add_u32 s{sOUT}, s{sOUT}, s3")
    c.e(f"s_lshl_b32 s{sOUT}, s{sOUT}, 10")
    c.e(f"s_add_u32 s{sOUT}, s{sOUT}, {HF}")
    c.e(f"s_mov_b32 s{sISH}, 1")
    c.label("K1_MAIN")
    c.e(f"s_and_b32 s{S_W+1}, s{S_W+1}, 0xffff")
    c.e(f"s_mov_b32 s{S_W+3}, 0x20000")
    c.e(f"s_and_b32 s{S_B+1}, s{S_B+1}, 0xffff")
    c.e(f"s_mov_b32 s{S_B+3}, 0x20000")
    c.e(f"s_cmp_eq_u32 s{sFH}, 2")
    c.e("s_cbranch_scc1 K1_LOADM")
    c.e(f"s_cmp_eq_u32 s{sFH}, 0")
    c.e("s_cbranch_scc0 K1_MAIN1")
    import copy
    hi = 0
    c0 = Code(); hi = max(hi, k1_compute(c0)); c.lines += c0.lines
    c.label("K1_MAIN1")
    c1 = Code(); hi = max(hi, k1_aux(c1)); c.lines += c1.lines
    c.label("K1_LOADM")
    cl = Code(); hi = max(hi, k1_loader(cl, False)); c.lines += cl.lines
    c.label("K1_KV")
    c.e(f"s_cmp_eq_u32 s{sFH}, 2")
    c.e("s_cbranch_scc1 K1_LOADKV")
    c.e(f"s_lshl_b32 s3, s{sTB}, 2")
    c.e(f"s_add_u32 s3, s3, s{sTW}")
    c.e(f"s_mul_i32 s{sOUT}, s3, 2560")
    c.e(f"s_add_u32 s{sOUT}, s{sOUT}, {KV}")
    c.e(f"s_cmp_eq_u32 s{sFH}, 0")
    c.e("s_cbranch_scc0 K1_KV1")
    c2 = Code(); hi = max(hi, k1_kv(c2, 0)); c.lines += c2.lines
    c.label("K1_KV1")
    c3 = Code(); hi = max(hi, k1_kv(c3, 1)); c.lines += c3.lines
    c.label("K1_LOADKV")
    cl = Code(); hi = max(hi, k1_loader(cl, True)); c.lines += cl.lines
    c.label("K1_END")
    c.e("s_endpgm")
    return c.text(), hi

if __name__ == "__main__":
    t, hi = gen_k1()
    print(t)
    import sys
    print("vgprs", hi, "lds", K1_LDS, file=sys.stderr)
```

```python
from core import *
import re
import k2 as K2old
from k2 import piece_addr
EXP = os.environ.get('EXP', '')

K2_LDS = 163840
S_WS, S_X, S_B2, S_OUT = 8, 12, 16, 20
sW, sTT, sHEAD, sT0, sT1, sT2, sIT, sGW, sFBK, sA, sB, sAS, sRB, sG, sFB, sTO, sSPIN, sPB = range(40, 58)
sVM = 58
K2old.sVM = sVM
NV = 168

def attn_tile(c, R, j):
    S = R['S'][j & 1]; N = R['S'][(j + 1) & 1]; P = R['P']; O = R['O']
    K0, K1, Va, Vb, Q0, Q1 = R['K0'], R['K1'], R['Va'], R['Vb'], R['Q0'], R['Q1']
    vK0, vK1, vV = R['vK0'], R['vK1'], R['vV']
    def ex(lo):
        c.e(f"v_exp_f32 v{S+lo}, v{S+lo}")
        c.e(f"v_exp_f32 v{S+lo+1}, v{S+lo+1}")
        c.e(f"v_exp_f32 v{S+lo+2}, v{S+lo+2}")
        c.e(f"v_cvt_pk_bf16_f32 v{P+lo//2}, v{S+lo}, v{S+lo+1}")
        c.e(f"v_exp_f32 v{S+lo+3}, v{S+lo+3}")
        R['pend'] = (P + lo//2 + 1, S + lo + 2, S + lo + 3)
    def flush():
        if R.get('pend'):
            d, a_, b_ = R['pend']; c.e(f"v_cvt_pk_bf16_f32 v{d}, v{a_}, v{b_}"); R['pend'] = None
    T = 2560
    import re
    m = re.search(r"pat=([0-9\-]+)", EXP); pat = m.group(1) if m else "2--1"
    def pr(k):
        if pat[k] != '-': c.e(f"s_setprio {pat[k]}")
    pr(0)
    c.e("s_waitcnt lgkmcnt(3)")
    flush()
    c.e(f"v_mfma_f32_32x32x16_bf16 v[{N}:{N+15}], v[{K0}:{K0+3}], v[{Q0}:{Q0+3}], 0")
    c.e(f"ds_read_b128 v[{K0}:{K0+3}], v{vK0} offset:{(j+2)*T}")
    ex(0)
    pr(1)
    c.e("s_waitcnt lgkmcnt(3)")
    flush()
    c.e(f"v_mfma_f32_32x32x16_bf16 v[{N}:{N+15}], v[{K1}:{K1+3}], v[{Q1}:{Q1+3}], v[{N}:{N+15}]")
    c.e(f"ds_read_b64 v[{K1}:{K1+1}], v{vK1} offset:{(j+2)*T}")
    ex(4)
    pr(2)
    c.e("s_waitcnt lgkmcnt(3)")
    flush()
    c.e(f"v_mfma_f32_32x32x16_bf16 v[{O}:{O+15}], v[{Vb}:{Vb+3}], v[{P+4}:{P+7}], v[{O}:{O+15}]")
    ex(8)
    pr(3)
    c.e("s_waitcnt lgkmcnt(2)")
    flush()
    c.e(f"v_mfma_f32_32x32x16_bf16 v[{O}:{O+15}], v[{Va}:{Va+3}], v[{P}:{P+3}], v[{O}:{O+15}]")
    c.e(f"s_mov_b64 exec, s[{sVM}:{sVM+1}]")
    c.e(f"ds_read_b128 v[{Vb}:{Vb+3}], v{vV} offset:{j*T + 640}")
    c.e(f"ds_read_b128 v[{Va}:{Va+3}], v{vV} offset:{(j+1)*T}")
    c.e("s_mov_b64 exec, -1")
    ex(12)

PSTR = 35840
S9 = 4*PSTR

PROW = 656

def final_prefetch(c, F):
    vo, vn, vq, vt = F['vo'], F['vn'], F['vq'], F['vt']
    c.e(f"s_lshl_b32 s{sT0}, s{sW}, 6")
    c.e(f"v_add_u32 v{vq}, s{sT0}, v0")
    c.e(f"v_mul_u32_u24 v{vn}, 3277, v{vq}")
    c.e(f"v_lshrrev_b32 v{vn}, 16, v{vn}")
    c.e(f"v_mul_u32_u24 v{vt}, 20, v{vn}")
    c.e(f"v_sub_u32 v{vq}, v{vq}, v{vt}")
    c.e(f"s_mul_i32 s{sT1}, s{sFBK}, 320")
    c.e(f"v_lshlrev_b32 v{vt}, 4, v{vq}")
    c.e(f"v_add_u32 v{vt}, s{sT1}, v{vt}")
    c.vmem(f"buffer_load_dwordx4 v[{F['br']}:{F['br']+3}], v{vt}, s[{S_B2}:{S_B2+3}], 0 offen", "fin")
    c.e(f"s_lshl_b32 s{sT2}, s{sTO}, 5")
    c.e(f"v_add_u32 v{vo}, s{sT2}, v{vn}")
    c.e(f"v_mul_u32_u24 v{vo}, 1280, v{vo}")
    c.e(f"v_add_u32 v{vo}, v{vo}, v{vt}")
    c.e(f"v_cmp_gt_u32 vcc, 32, v{vn}")
    c.e(f"v_mov_b32 v{vt}, 0x7ffffff0")
    c.nop(1)
    c.e(f"v_cndmask_b32 v{vo}, v{vt}, v{vo}, vcc")
    c.vmem(f"buffer_load_dwordx4 v[{F['xr']}:{F['xr']+3}], v{vo}, s[{S_X}:{S_X+3}], 0 offen", "fin")
    c.e(f"v_min_u32 v{vn}, 31, v{vn}")
    c.e(f"v_mul_u32_u24 v{vn}, {PROW}, v{vn}")
    c.e(f"v_lshl_add_u32 v{vn}, v{vq}, 5, v{vn}")

def final_regs(base):
    a = Alloc(base, NV)
    F = dict(vo=a.get(), vn=a.get(), vq=a.get(), vt=a.get(), xr=a.get(4, 4), br=a.get(4, 4), rd=[a.get(4, 4) for _ in range(8)])
    return F, a.hi

def final_epilogue(c, F):
    vn, vq, vt, rd = F['vn'], F['vq'], F['vt'], F['rd']
    c.e(f"v_add_u32 v{vq}, {2*PSTR}, v{vn}")
    for k in range(4):
        base = vn if k < 2 else vq
        c.e(f"ds_read_b128 v[{rd[2*k]}:{rd[2*k]+3}], v{base} offset:{(k&1)*PSTR}")
        c.e(f"ds_read_b128 v[{rd[2*k+1]}:{rd[2*k+1]+3}], v{base} offset:{(k&1)*PSTR + 16}")
    c.e("s_waitcnt vmcnt(0) lgkmcnt(0)")
    for hf in range(2):
        for r in range(4):
            c.e(f"v_add_f32 v{rd[hf]+r}, v{rd[hf]+r}, v{rd[2+hf]+r}")
            c.e(f"v_add_f32 v{rd[4+hf]+r}, v{rd[4+hf]+r}, v{rd[6+hf]+r}")
        for r in range(4): c.e(f"v_add_f32 v{rd[hf]+r}, v{rd[hf]+r}, v{rd[4+hf]+r}")
    for src in (F['xr'], F['br']):
        for k in range(8):
            d = rd[k >> 2] + (k & 3)
            if k & 1: c.e(f"v_and_b32 v{vt}, 0xffff0000, v{src+(k>>1)}")
            else: c.e(f"v_lshlrev_b32 v{vt}, 16, v{src+(k>>1)}")
            c.e(f"v_add_f32 v{d}, v{d}, v{vt}")
    o = rd[2]
    for p in range(4):
        d = rd[p >> 1] + 2*(p & 1)
        c.e(f"v_cvt_pk_bf16_f32 v{o+p}, v{d}, v{d+1}")
    c.e(f"buffer_store_dwordx4 v[{o}:{o+3}], v{F['vo']}, s[{S_OUT}:{S_OUT+3}], 0 offen")

def gen_attn(c):
    a = Alloc(1, NV)
    vt, vt2, vn, vk = a.get(), a.get(), a.get(), a.get()
    vA, vB, vC = a.get(), a.get(), a.get()
    vL16 = a.get()
    vK0, vK1, vV = a.get(), a.get(), a.get()
    R = dict(S=[a.get(16, 4), a.get(16, 4)], P=a.get(8, 4), O=a.get(16, 4), K0=a.get(4, 4), K1=a.get(4, 4),
             Va=a.get(4, 4), Vb=a.get(4, 4), Q0=a.get(4, 4), Q1=a.get(4, 4), vK0=vK0, vK1=vK1, vV=vV)
    Q0, Q1, O, P = R['Q0'], R['Q1'], R['O'], R['P']
    c.e(f"s_lshr_b32 s{sT2}, s{sW}, 2")
    c.e(f"s_lshl_b32 s{sTT}, s{sRB}, 1")
    c.e(f"s_add_u32 s{sTT}, s{sTT}, s{sT2}")
    c.e(f"s_and_b32 s{sT2}, s{sW}, 3")
    c.e(f"s_lshl_b32 s{sHEAD}, s{sG}, 2")
    c.e(f"s_add_u32 s{sHEAD}, s{sHEAD}, s{sT2}")
    c.e(f"v_and_b32 v{vn}, 31, v0")
    c.e(f"v_lshrrev_b32 v{vt2}, 5, v0")
    c.e(f"s_mul_i32 s{sT0}, s{sHEAD}, 20")
    c.e(f"s_mul_i32 s{sT1}, s{sTT}, {40*1024}")
    c.e(f"v_lshlrev_b32 v{vk}, 2, v{vt2}")
    c.e(f"v_add_u32 v{vk}, s{sT0}, v{vk}")
    piece_addr(c, vA, vk, vn, vt, sT1)
    c.e(f"v_add_u32 v{vk}, 8, v{vk}")
    piece_addr(c, vB, vk, vn, vt, sT1)
    c.e(f"v_mov_b32 v{vk}, s{sT0}")
    c.e(f"v_add_u32 v{vk}, 16, v{vk}")
    piece_addr(c, vC, vk, vn, vt, sT1)
    c.e(f"s_mov_b32 s{sT2}, {QF}")
    c.vmem(f"buffer_load_dwordx2 v[{Q0}:{Q0+1}], v{vA}, s[{S_WS}:{S_WS+3}], s{sT2} offen", "q")
    c.vmem(f"buffer_load_dwordx2 v[{Q0+2}:{Q0+3}], v{vB}, s[{S_WS}:{S_WS+3}], s{sT2} offen", "q")
    c.vmem(f"buffer_load_dwordx2 v[{Q1}:{Q1+1}], v{vC}, s[{S_WS}:{S_WS+3}], s{sT2} offen", "q")
    c.e(f"v_lshlrev_b32 v{vL16}, 4, v0")
    def base_addrs():
        c.e(f"v_mov_b32 v{vK0}, v{vL16}")
        c.e(f"v_lshlrev_b32 v{vK1}, 3, v{vn}")
        c.e(f"v_add_u32 v{vK1}, 1024, v{vK1}")
        c.e(f"v_lshrrev_b32 v{vt2}, 5, v0")
        c.e(f"v_mul_u32_u24 v{vV}, 20, v{vt2}")
        c.e(f"v_add_u32 v{vV}, v{vV}, v{vn}")
        c.e(f"v_lshlrev_b32 v{vV}, 4, v{vV}")
        c.e(f"v_add_u32 v{vV}, 1280, v{vV}")
        for r in range(16): c.e(f"v_mov_b32 v{O+r}, 0")
        for r in range(8): c.e(f"v_mov_b32 v{P+r}, 0")
    base_addrs()
    c.e(f"s_mov_b32 s{sVM}, 0x000fffff")
    c.e(f"s_mov_b32 s{sVM+1}, 0x000fffff")
    c.e(f"s_mov_b32 s{sFB}, 0")
    c.e(f"v_mov_b32 v{R['K1']+2}, 0x3f803f80")
    c.e(f"v_mov_b32 v{R['K1']+3}, 0x00003f80")
    c.e(f"v_cmp_eq_u32 vcc, 20, v{vn}")
    c.e(f"v_mov_b32 v{vt}, 0x3f803f80")
    c.nop(1)
    for r in range(4):
        c.e(f"v_cndmask_b32 v{R['Va']+r}, 0, v{vt}, vcc")
        c.e(f"v_cndmask_b32 v{R['Vb']+r}, 0, v{vt}, vcc")
    c.wait_vm("q")
    c.e(f"v_cmp_gt_u32 vcc, 32, v0")
    c.e(f"v_mov_b32 v{Q1+2}, 0")
    c.e(f"v_mov_b32 v{Q1+3}, 0")
    c.e(f"v_cndmask_b32 v{Q1}, 0, v{Q1}, vcc")
    c.e(f"v_cndmask_b32 v{Q1+1}, 0, v{Q1+1}, vcc")
    c.e("s_barrier")
    if 'clk' in EXP: c.stamp(2); c.stamp(3, real=True)
    elif 'tail' not in EXP: c.stamp(2)
    S0 = R['S'][0]
    c.e(f"ds_read_b128 v[{R['K0']}:{R['K0']+3}], v{vK0}")
    c.e(f"ds_read_b64 v[{R['K1']}:{R['K1']+1}], v{vK1}")
    c.e("s_waitcnt lgkmcnt(0)")
    c.e(f"v_mfma_f32_32x32x16_bf16 v[{S0}:{S0+15}], v[{R['K0']}:{R['K0']+3}], v[{Q0}:{Q0+3}], 0")
    c.e(f"v_mfma_f32_32x32x16_bf16 v[{S0}:{S0+15}], v[{R['K1']}:{R['K1']+3}], v[{Q1}:{Q1+3}], v[{S0}:{S0+15}]")
    c.e(f"ds_read_b128 v[{R['K0']}:{R['K0']+3}], v{vK0} offset:2560")
    c.e(f"ds_read_b64 v[{R['K1']}:{R['K1']+1}], v{vK1} offset:2560")
    c.e(f"s_mov_b64 exec, s[{sVM}:{sVM+1}]")
    c.e(f"ds_read_b128 v[{R['Vb']}:{R['Vb']+3}], v{vV}")
    c.e(f"ds_read_b128 v[{R['Va']}:{R['Va']+3}], v{vV}")
    c.e("s_mov_b64 exec, -1")
    c.e(f"s_mov_b32 s{sIT}, 0")
    c.nop(16)
    c.label("K2_LOOP")
    for j in range(4): attn_tile(c, R, j)
    c.e(f"v_add_u32 v{vK0}, {4*2560}, v{vK0}")
    d, a_, b_ = R['pend']; c.e(f"v_cvt_pk_bf16_f32 v{d}, v{a_}, v{b_}"); R['pend'] = None
    c.e(f"v_add_u32 v{vK1}, {4*2560}, v{vK1}")
    c.e(f"v_add_u32 v{vV}, {4*2560}, v{vV}")
    c.e(f"s_add_u32 s{sIT}, s{sIT}, 1")
    c.e(f"s_cmp_eq_u32 s{sIT}, 2")
    c.e("s_cbranch_scc1 K2_BAR")
    c.e(f"s_cmp_lg_u32 s{sIT}, 14")
    c.e("s_cbranch_scc1 K2_NOBAR")
    c.e("s_waitcnt lgkmcnt(0)")
    c.label("K2_BAR")
    c.e("s_barrier")
    c.label("K2_NOBAR")
    c.e(f"s_cmp_lt_u32 s{sIT}, 16")
    c.e("s_cbranch_scc1 K2_LOOP")
    c.e("s_waitcnt lgkmcnt(0)")
    c.nop(2)
    c.e(f"v_mfma_f32_32x32x16_bf16 v[{O}:{O+15}], v[{R['Vb']}:{R['Vb']+3}], v[{P+4}:{P+7}], v[{O}:{O+15}]")
    c.nop(16)
    if 'clk' in EXP: c.stamp(4); c.stamp(5, real=True)
    elif 'tail' not in EXP: c.stamp(3)
    c.label("K2_LEXT")
    c.e(f"v_mov_b32 v{vt}, v{O+8}")
    c.e(f"v_mov_b32 v{vt2}, v{O+8}")
    c.nop(2)
    c.e(f"v_permlane32_swap_b32 v{vt}, v{vt2}")
    c.nop(2)
    c.e(f"v_cmp_gt_u32 vcc, 32, v0")
    c.nop(2)
    c.e(f"v_cndmask_b32 v{vt}, v{O+8}, v{vt2}, vcc")
    c.e(f"s_cmp_lg_u32 s{sFB}, 0")
    c.e("s_cbranch_scc1 K2_NORM")
    c.e(f"v_mov_b32 v{vk}, {fhex(2.0**-60)}")
    c.e(f"v_cmp_ge_f32 s[4:5], v{vt}, v{vk}")
    c.e(f"v_mov_b32 v{vk}, {fhex(2.0**120)}")
    c.e(f"v_cmp_le_f32 s[6:7], v{vt}, v{vk}")
    c.e("s_and_b64 s[4:5], s[4:5], s[6:7]")
    c.e(f"v_mov_b32 v{vk}, 0x7f800000")
    for r in range(12):
        c.e(f"v_cmp_lt_f32 s[6:7], |v{O+r}|, v{vk}")
        c.e("s_and_b64 s[4:5], s[4:5], s[6:7]")
    if 'forcefb' in EXP: c.e("s_mov_b64 s[4:5], 0")
    c.e("s_cmp_eq_u64 s[4:5], -1")
    c.e("s_cbranch_scc1 K2_NORM")
    vM = vk
    K0, K1, Va, Vb = R['K0'], R['K1'], R['Va'], R['Vb']
    base_addrs()
    c.e(f"v_mov_b32 v{vM}, 0xff800000")
    c.e(f"s_mov_b32 s{sIT}, {KV}")
    def gl_k():
        c.e(f"buffer_load_dwordx4 v[{K0}:{K0+3}], v{vK0}, s[{S_WS}:{S_WS+3}], s{sIT} offen")
        c.e(f"buffer_load_dwordx2 v[{K1}:{K1+1}], v{vK1}, s[{S_WS}:{S_WS+3}], s{sIT} offen")
    def qk():
        c.e(f"v_mfma_f32_32x32x16_bf16 v[{S0}:{S0+15}], v[{K0}:{K0+3}], v[{Q0}:{Q0+3}], 0")
        c.e(f"v_mfma_f32_32x32x16_bf16 v[{S0}:{S0+15}], v[{K1}:{K1+3}], v[{Q1}:{Q1+3}], v[{S0}:{S0+15}]")
        c.nop(20)
    c.label("K2_FBL")
    gl_k()
    c.e("s_waitcnt vmcnt(0)")
    qk()
    for r in range(0, 16, 2):
        c.e(f"v_max3_f32 v{vM}, v{vM}, v{S0+r}, v{S0+r+1}")
    c.e(f"s_add_u32 s{sIT}, s{sIT}, 2560")
    c.e(f"s_cmp_lt_u32 s{sIT}, {KV + 64*2560}")
    c.e("s_cbranch_scc1 K2_FBL")
    c.e(f"v_mov_b32 v{vt}, v{vM}")
    c.nop(2)
    c.e(f"v_permlane32_swap_b32 v{vM}, v{vt}")
    c.nop(2)
    c.e(f"v_max_f32 v{vM}, v{vM}, v{vt}")
    t0, t1, t2 = R['S'][1], R['S'][1]+1, R['S'][1]+2
    c.e(f"v_sub_f32 v{vM}, 0, v{vM}")
    c.e(f"v_cvt_pk_bf16_f32 v{t0}, v{vM}, v{vM}")
    c.e(f"v_and_b32 v{t0}, 0xffff0000, v{t0}")
    c.e(f"v_sub_f32 v{vM}, v{vM}, v{t0}")
    c.e(f"v_cvt_pk_bf16_f32 v{t1}, v{vM}, v{vM}")
    c.e(f"v_and_b32 v{t1}, 0xffff0000, v{t1}")
    c.e(f"v_sub_f32 v{vM}, v{vM}, v{t1}")
    c.e(f"v_cvt_pk_bf16_f32 v{t0}, v{t0}, v{t1}")
    c.e(f"v_mov_b32 v{t2}, 0")
    c.e(f"v_cvt_pk_bf16_f32 v{t1}, v{vM}, v{t2}")
    c.e(f"v_cmp_gt_u32 vcc, 32, v0")
    c.nop(2)
    c.e(f"v_cndmask_b32 v{Q1+2}, 0, v{t0}, vcc")
    c.e(f"v_cndmask_b32 v{Q1+3}, 0, v{t1}, vcc")
    c.e(f"s_mov_b32 s{sIT}, {KV}")
    c.label("K2_FB2")
    gl_k()
    c.e(f"s_mov_b64 exec, s[{sVM}:{sVM+1}]")
    c.e(f"buffer_load_dwordx4 v[{Va}:{Va+3}], v{vV}, s[{S_WS}:{S_WS+3}], s{sIT} offen")
    c.e(f"buffer_load_dwordx4 v[{Vb}:{Vb+3}], v{vV}, s[{S_WS}:{S_WS+3}], s{sIT} offen offset:640")
    c.e("s_mov_b64 exec, -1")
    c.e("s_waitcnt vmcnt(0)")
    qk()
    for r in range(16): c.e(f"v_exp_f32 v{S0+r}, v{S0+r}")
    c.nop(2)
    for p in range(8): c.e(f"v_cvt_pk_bf16_f32 v{P+p}, v{S0+2*p}, v{S0+2*p+1}")
    c.nop(2)
    c.e(f"v_mfma_f32_32x32x16_bf16 v[{O}:{O+15}], v[{Va}:{Va+3}], v[{P}:{P+3}], v[{O}:{O+15}]")
    c.e(f"v_mfma_f32_32x32x16_bf16 v[{O}:{O+15}], v[{Vb}:{Vb+3}], v[{P+4}:{P+7}], v[{O}:{O+15}]")
    c.e(f"s_add_u32 s{sIT}, s{sIT}, 2560")
    c.e(f"s_cmp_lt_u32 s{sIT}, {KV + 64*2560}")
    c.e("s_cbranch_scc1 K2_FB2")
    c.nop(20)
    c.e(f"s_mov_b32 s{sFB}, 1")
    c.e("s_branch K2_LEXT")
    c.label("K2_NORM")
    c.e(f"v_rcp_f32 v{vt}, v{vt}")
    c.e(f"v_cmp_gt_u32 vcc, 32, v0")
    for r in range(12): c.e(f"v_mul_f32 v{O+r}, v{O+r}, v{vt}")
    for p in range(6): c.e(f"v_cvt_pk_bf16_f32 v{O+p}, v{O+2*p}, v{O+2*p+1}")
    c.e(f"s_mul_i32 s{sT2}, s{sTT}, {40*1024}")
    c.e(f"s_add_u32 s{sT2}, s{sT2}, {OF}")
    c.e(f"s_lshl_b32 s{sT0}, s{sHEAD}, 10")
    c.e(f"s_add_u32 s{sT0}, s{sT0}, s{sT2}")
    c.e(f"buffer_store_dwordx4 v[{O}:{O+3}], v{vL16}, s[{S_WS}:{S_WS+3}], s{sT0} offen sc1")
    c.e(f"s_lshl_b32 s{sT0}, s{sHEAD}, 8")
    c.e(f"s_add_u32 s{sT0}, s{sT0}, s{sT2}")
    c.e(f"s_add_u32 s{sT0}, s{sT0}, 32768")
    c.e(f"v_lshlrev_b32 v{vt}, 3, v0")
    c.e("s_and_saveexec_b64 s[4:5], vcc")
    c.e(f"buffer_store_dwordx2 v[{O+4}:{O+5}], v{vt}, s[{S_WS}:{S_WS+3}], s{sT0} offen sc1")
    c.e("s_mov_b64 exec, -1")
    if 'waitst' in EXP: c.e("s_waitcnt vmcnt(0)")
    c.e("s_barrier")
    if 'clk' not in EXP: c.stamp(4)
    c.e("s_setprio 0")
    final_prefetch(c, FIN)
    c.e("s_barrier")
    if 'tail' in EXP and 'clk' not in EXP: c.stamp(2)
    c.e("s_branch K2_FINAL")
    return a.hi

def gen_gemm(c):
    a = Alloc(1, NV)
    vt, vL16, vF = a.get(), a.get(), a.get()
    acc = [a.get(16, 4) for _ in range(5)]
    fA = [[a.get(4, 4) for _ in range(5)] for _ in range(2)]
    oB = [a.get(4, 4) for _ in range(10)]
    fB = oB[:2]
    c.e("s_setprio 3")
    c.e(f"v_lshlrev_b32 v{vL16}, 4, v0")
    c.e(f"s_lshl_b32 s{sT1}, s{sGW}, 10")
    def kv(i):
        c.e(f"s_add_u32 m0, s{sT1}, {4096*i}")
        c.e(f"s_add_u32 s{sT2}, s{sT1}, {KV + 4096*i}")
        c.vmem(f"buffer_load_dwordx4 v{vL16}, s[{S_WS}:{S_WS+3}], s{sT2} offen lds", f"kv{i}")
    for i in range(16): kv(i)
    for t in range(5):
        for r in range(16): c.e(f"v_mov_b32 v{acc[t]+r}, 0")
    c.wait_vm("kv6")
    c.e("s_barrier")
    for i in range(16, 40): kv(i)
    c.wait_vm0()
    c.e("s_barrier")
    c.e("s_setprio 0")
    if 'tail' not in EXP: c.stamp(2)
    def loads(b, tag, nb=True, sc=""):
        if nb: c.vmem(f"buffer_load_dwordx4 v[{fB[b]}:{fB[b]+3}], v{vL16}, s[{S_WS}:{S_WS+3}], s{sB} offen", tag)
        for t in range(5):
            if t < 4: c.vmem(f"buffer_load_dwordx4 v[{fA[b][t]}:{fA[b][t]+3}], v{vL16}, s[{S_WS}:{S_WS+3}], s{sA} offen offset:{1024*t}", tag)
            else:
                c.e(f"s_add_u32 s{sAS}, s{sA}, 4096")
                c.vmem(f"buffer_load_dwordx4 v[{fA[b][t]}:{fA[b][t]+3}], v{vL16}, s[{S_WS}:{S_WS+3}], s{sAS} offen", tag)
        c.e(f"s_add_u32 s{sA}, s{sA}, 5120")
        if nb: c.e(f"s_add_u32 s{sB}, s{sB}, 1024")
    def mfmas(b, B=None):
        B = fB[b] if B is None else B
        for t in range(5):
            c.e(f"v_mfma_f32_32x32x16_bf16 v[{acc[t]}:{acc[t]+15}], v[{fA[b][t]}:{fA[b][t]+3}], v[{B}:{B+3}], v[{acc[t]}:{acc[t]+15}]")
    c.e(f"s_mul_i32 s{sA}, s{sFBK}, {108*5120}")
    c.e(f"s_mul_i32 s{sT0}, s{sGW}, {27*5120}")
    c.e(f"s_add_u32 s{sA}, s{sA}, s{sT0}")
    c.e(f"s_add_u32 s{sA}, s{sA}, {W2F}")
    c.e(f"s_mul_i32 s{sB}, s{sTO}, {108*1024}")
    c.e(f"s_mul_i32 s{sT0}, s{sGW}, {27*1024}")
    c.e(f"s_add_u32 s{sB}, s{sB}, s{sT0}")
    c.e(f"s_add_u32 s{sB}, s{sB}, {HF}")
    loads(0, "p")
    c.e(f"s_mov_b32 s{sIT}, 0")
    c.label("K2_GL")
    c.vm = ["a"]*6
    loads(1, "b"); c.wait_vm("a"); mfmas(0)
    loads(0, "a"); c.wait_vm("b"); mfmas(1)
    c.e(f"s_add_u32 s{sIT}, s{sIT}, 1")
    c.e(f"s_cmp_lt_u32 s{sIT}, 13")
    c.e("s_cbranch_scc1 K2_GL")
    c.wait_vm0(); mfmas(0)
    if 'tail' not in EXP: c.stamp(3)
    c.e(f"s_mul_i32 s{sA}, s{sFBK}, {40*5120}")
    c.e(f"s_mul_i32 s{sT0}, s{sGW}, {10*5120}")
    c.e(f"s_add_u32 s{sA}, s{sA}, s{sT0}")
    c.e(f"s_add_u32 s{sA}, s{sA}, {WOF}")
    loads(0, "w0", nb=False); loads(1, "w1", nb=False)
    c.e(f"v_lshlrev_b32 v{vt}, 7, v0")
    for i in range(5):
        c.e(f"s_add_u32 s{sAS}, s{sA}, {8192*i}")
        c.vmem(f"buffer_load_dword v{oB[2]+i}, v{vt}, s[{S_WS}:{S_WS+3}], s{sAS} offen", "warm")
    c.e(f"s_mul_i32 s{sPB}, s{sTO}, {40*1024}")
    c.e(f"s_add_u32 s{sPB}, s{sPB}, {OF}")
    c.e(f"s_lshl_b32 s{sT0}, s{sGW}, 13")
    c.e(f"s_add_u32 s{sB}, s{sPB}, s{sT0}")
    c.e(f"s_lshl_b32 s{sT0}, s{sGW}, 11")
    c.e(f"s_add_u32 s{sPB}, s{sPB}, s{sT0}")
    c.e(f"s_add_u32 s{sPB}, s{sPB}, 32768")
    c.e(f"s_mul_i32 s{sT1}, s{sGW}, {PSTR}")
    c.e(f"v_add_u32 v{vF}, s{sT1}, v{vL16}")
    vP = a.get(); vR = a.get(); vF9 = a.get()
    c.e(f"v_and_b32 v{vR}, 31, v0")
    c.e(f"v_lshlrev_b32 v{vR}, 3, v{vR}")
    c.e(f"v_lshrrev_b32 v{vP}, 5, v0")
    c.e(f"v_lshl_add_u32 v{vR}, v{vP}, 8, v{vR}")
    c.e(f"v_and_b32 v{vP}, 7, v0")
    c.e(f"v_lshlrev_b32 v{vP}, 8, v{vP}")
    c.e(f"v_lshrrev_b32 v{vt}, 3, v0")
    c.e(f"v_lshl_add_u32 v{vP}, v{vt}, 5, v{vP}")
    c.e("s_barrier")
    def wdma(i, dst, tag):
        c.e(f"s_add_u32 m0, s{sT1}, {dst}")
        c.e(f"s_add_u32 s{sT2}, s{sA}, {1024*i}")
        c.vmem(f"buffer_load_dwordx4 v{vL16}, s[{S_WS}:{S_WS+3}], s{sT2} offen lds", tag)
    for i in range(35): wdma(i, 1024*i, f"d{i//5 + 2}")
    if 'tail' in EXP: c.stamp(2)
    c.e("s_barrier")
    c.stamp(4)
    c.e("s_setprio 3")
    c.e(f"s_mul_i32 s{sT1}, s{sGW}, 5120")
    for i in range(35, 40): wdma(i, S9 + 1024*(i-35), "d9")
    c.e(f"v_add_u32 v{vF9}, s{sT1}, v{vL16}")
    c.e(f"v_add_u32 v{vF9}, {S9}, v{vF9}")
    def oloads():
        for i in range(8):
            q, r_ = divmod(i, 4)
            if r_ == 0 and q: c.e(f"s_add_u32 s{sAS}, s{sB}, 4096")
            sb = sB if q == 0 else sAS
            c.vmem(f"buffer_load_dwordx4 v[{oB[i]}:{oB[i]+3}], v{vL16}, s[{S_WS}:{S_WS+3}], s{sb} offen offset:{r_*1024} sc1", "o")
        for i in range(2):
            c.vmem(f"buffer_load_dwordx2 v[{oB[8+i]}:{oB[8+i]+1}], v{vR}, s[{S_WS}:{S_WS+3}], s{sPB} offen offset:{i*1024} sc1", "o")
            c.vmem(f"buffer_load_dwordx2 v[{oB[8+i]+2}:{oB[8+i]+3}], v{vR}, s[{S_WS}:{S_WS+3}], s{sPB} offen offset:{i*1024+512} sc1", "o")
    def ocheck():
        c.e(f"v_max_u32 v{vt}, v{oB[0]}, v{oB[0]+1}")
        regs = [oB[0]+2, oB[0]+3] + [oB[i]+r for i in range(1, 10) for r in range(4)]
        for k in range(0, len(regs), 2):
            c.e(f"v_max3_u32 v{vt}, v{vt}, v{regs[k]}, v{regs[k+1]}")
        c.e(f"v_cmp_eq_u32 vcc, -1, v{vt}")
        c.e("s_nop 1")
        c.e("s_cmp_eq_u64 vcc, 0")
    c.e(f"s_mov_b32 s{sSPIN}, 0")
    c.e("s_sleep %d" % int(re.search(r"slp=(\d+)", EXP).group(1) if 'slp=' in EXP else 8))
    c.label("K2_POLL")
    oloads()
    c.e("s_waitcnt vmcnt(0)")
    ocheck()
    c.e("s_cbranch_scc1 K2_GOT")
    c.e(f"s_add_u32 s{sSPIN}, s{sSPIN}, 1")
    c.e("s_sleep 2")
    c.e(f"s_cmp_lt_u32 s{sSPIN}, 0x40000")
    c.e("s_cbranch_scc1 K2_POLL")
    c.label("K2_GOT")
    c.vm = []
    c.stamp(5)
    def lreads(step):
        b = step & 1
        for t in range(5):
            if step < 9: c.lds(f"ds_read_b128 v[{fA[b][t]}:{fA[b][t]+3}], v{vF} offset:{((step-2)*5 + t)*1024}", f"r{step}")
            else: c.lds(f"ds_read_b128 v[{fA[b][t]}:{fA[b][t]+3}], v{vF9} offset:{t*1024}", f"r{step}")
    mfmas(0, oB[0]); lreads(2)
    mfmas(1, oB[1]); lreads(3)
    for i in range(2, 10):
        c.wait_lg(f"r{i}")
        mfmas(i & 1, oB[i])
        if i + 2 < 10: lreads(i + 2)
    if 'tail' in EXP: c.stamp(3)
    final_prefetch(c, FING)
    c.nop(12)
    c.e(f"v_and_b32 v{vP}, 31, v0")
    c.e(f"v_mul_u32_u24 v{vP}, {PROW}, v{vP}")
    c.e(f"v_lshrrev_b32 v{vR}, 5, v0")
    c.e(f"v_lshl_add_u32 v{vP}, v{vR}, 4, v{vP}")
    c.e(f"s_mul_i32 s{sT0}, s{sGW}, {PSTR}")
    c.e(f"v_add_u32 v{vP}, s{sT0}, v{vP}")
    for t in range(5):
        for j in range(4):
            c.e(f"ds_write_b128 v{vP}, v[{acc[t]+4*j}:{acc[t]+4*j+3}] offset:{(32*t + 8*j)*4}")
    c.e("s_waitcnt lgkmcnt(0)")
    c.e("s_barrier")
    return a.hi

FIN, FINHI = final_regs(100)
FING = FIN

def gen_k2f():
    c = Code()
    c.e("s_cmp_ge_u32 s2, 256")
    c.e("s_cbranch_scc1 K2_END")
    c.e("s_load_dwordx2 s[4:5], s[0:1], 96")
    c.e("s_load_dwordx2 s[6:7], s[0:1], 0")
    c.e("s_load_dwordx4 s[24:27], s[0:1], 72")
    c.e("v_lshrrev_b32 v1, 6, v0")
    c.e("v_and_b32 v0, 63, v0")
    c.e(f"v_readfirstlane_b32 s{sW}, v1")
    c.e(f"s_and_b32 s{sRB}, s2, 31")
    c.e(f"s_lshr_b32 s{sG}, s2, 5")
    c.e(f"s_lshr_b32 s{sT0}, s{sG}, 2")
    c.e(f"s_lshl_b32 s{sTO}, s{sRB}, 1")
    c.e(f"s_add_u32 s{sTO}, s{sTO}, s{sT0}")
    c.e(f"s_and_b32 s{sFBK}, s{sG}, 3")
    c.e(f"s_sub_u32 s{sGW}, s{sW}, 8")
    c.e("s_waitcnt lgkmcnt(0)")
    c.stamp(0, real=True); c.stamp(1)
    srd(c, S_WS, 4, 5, WS_USED)
    srd(c, S_X, 6, 7, M*D*2)
    srd(c, S_B2, 24, 25, D*2)
    srd(c, S_OUT, 26, 27, M*D*2)
    c.e(f"s_cmp_ge_u32 s{sW}, 8")
    c.e("s_cbranch_scc1 K2_GEMM")
    ca = Code(); h1 = gen_attn(ca); c.lines += ca.lines
    c.label("K2_GEMM")
    cg = Code(); h2 = gen_gemm(cg); c.lines += cg.lines
    c.label("K2_FINAL")
    final_epilogue(c, FIN)
    c.label("K2_DONE")
    c.finish(1, sW, S_WS)
    c.label("K2_END")
    c.e("s_endpgm")
    return c.text(), max(h1, h2, FINHI), K2_LDS
```

```python
from core import *
EXP = os.environ.get('EXP', '')

def trace(c, idx, vt):
    if 'trace' not in EXP: return
    c.e('s_memtime s[76:77]'); c.e('s_waitcnt lgkmcnt(0)'); c.lg = []
    c.e(f's_lshl_b32 s78, s{sW}, 7'); c.e(f's_add_u32 s78, s78, {TRC + 4*idx}')
    c.e(f'v_mov_b32 v{vt}, s78'); c.e(f'v_mov_b32 v{vt+1}, s76'); c.lds(f'ds_write_b32 v{vt}, v{vt+1}')

def trace_dyn(c, idx0, sreg, vt):
    if 'trace' not in EXP: return
    c.e('s_memtime s[76:77]'); c.e('s_waitcnt lgkmcnt(0)'); c.lg = []
    c.e(f's_lshl_b32 s78, s{sW}, 7'); c.e(f's_lshl_b32 s79, s{sreg}, 3'); c.e('s_add_u32 s78, s78, s79'); c.e(f's_add_u32 s78, s78, {TRC + 4*idx0}')
    c.e(f'v_mov_b32 v{vt}, s78'); c.e(f'v_mov_b32 v{vt+1}, s76'); c.e(f'ds_write_b32 v{vt}, v{vt+1}')

def trace_dump(c, vt):
    if 'trace' not in EXP: return
    c.e('s_waitcnt lgkmcnt(0)')
    c.e(f's_lshl_b32 s78, s{sW}, 7'); c.e(f'v_lshlrev_b32 v{vt}, 2, v0'); c.e(f'v_add_u32 v{vt+1}, s78, v{vt}'); c.e(f'v_add_u32 v{vt+1}, {TRC}, v{vt+1}')
    c.e(f'ds_read_b32 v{vt+1}, v{vt+1}'); c.e('s_waitcnt lgkmcnt(0)')
    c.e(f's_lshl_b32 s79, s2, 4'); c.e(f's_add_u32 s79, s79, s{sW}'); c.e('s_lshl_b32 s79, s79, 7'); c.e(f's_add_u32 s79, s79, {STAMP + 2*262144}')
    c.e('s_mov_b64 exec, 0xffffffff'); c.e(f'buffer_store_dword v{vt+1}, v{vt}, s[{S_O}:{S_O+3}], s79 offen'); c.e('s_mov_b64 exec, -1')

PRIO_C = int(os.environ.get('PC', '2')); PRIO_X = int(os.environ.get('PX', '0'))
SLOT = 36864
XOFF = 20480
CSP  = 4*SLOT
ST   = CSP + 5120
RS   = ST + 2048
TRC  = RS + 512
K1_LDS = RS + 512 + (2048 if 'trace' in EXP else 0)
EPS = 1e-5
QSCALE = (20 ** -0.5) * math.log2(math.e)

S_X, S_W, S_O, S_B, S_SJ, S_SO, S_D, S_D2 = 8, 12, 16, 20, 44, 48, 96, 4
sW, sTW, sFH, sTB, sFT, sSTR, sWOFF, sXOFF, sW1K, sW2K, sOUT, sISH, sT0, sT1, sT2, sT3, sKB, sCH, sXB, sMASK, sSEG, sSLD, sKB2, sCOL = range(52, 76)

def k1_prologue(c):
    c.e("s_cmp_ge_u32 s2, 256")
    c.e("s_cbranch_scc1 K1_END")
    if 'notouch' not in EXP:
        c.e("s_getpc_b64 s[4:5]")
        c.label("K1_PC")
        c.e("v_lshlrev_b32 v1, 7, v0")
        c.e(f"s_sub_u32 s4, s4, K1_PC-k1_kernel")
        c.e(f"s_subb_u32 s5, s5, 0")
        c.e(f"s_and_b32 s5, s5, 0xffff")
        c.e(f"s_mov_b32 s6, CODE_END-k1_kernel")
        c.e(f"s_mov_b32 s7, 0x20000")
        c.e(f"buffer_load_dword v167, v1, s[4:7], 0 offen")
    c.e("s_load_dwordx4 s[24:27], s[0:1], 0")
    c.e("s_load_dwordx4 s[36:39], s[0:1], 48")
    c.e("s_load_dwordx4 s[28:31], s[0:1], 16")
    c.e("s_load_dwordx2 s[32:33], s[0:1], 32")
    c.e("s_load_dwordx2 s[40:41], s[0:1], 64")
    c.e("s_load_dwordx4 s[76:79], s[0:1], 88")
    c.e("v_lshrrev_b32 v1, 6, v0")
    c.e("v_and_b32 v0, 63, v0")
    c.e(f"v_readfirstlane_b32 s{sW}, v1")
    c.e("s_and_b32 s3, s2, 7")
    c.e(f"s_lshr_b32 s{sT0}, s2, 3")
    c.e(f"s_and_b32 s{sTB}, s3, 1")
    c.e(f"s_lshl_b32 s{sTB}, s{sTB}, 3")
    c.e(f"s_and_b32 s{sT1}, s{sT0}, 7")
    c.e(f"s_add_u32 s{sTB}, s{sTB}, s{sT1}")
    c.e(f"s_lshr_b32 s{sFT}, s3, 1")
    c.e(f"s_lshl_b32 s{sFT}, s{sFT}, 2")
    c.e(f"s_lshr_b32 s{sT1}, s{sT0}, 3")
    c.e(f"s_add_u32 s{sFT}, s{sFT}, s{sT1}")
    c.e(f"s_sub_u32 s{sFT}, s{sFT}, 1")
    c.e(f"s_min_u32 s{sFT}, s{sFT}, 15")
    c.e(f"s_and_b32 s{sTW}, s{sW}, 3")
    c.e(f"s_lshr_b32 s{sFH}, s{sW}, 2")
    c.e(f"s_cmp_lt_u32 s{sFT}, 4")
    c.e(f"s_cselect_b32 s{sISH}, 0, 1")
    c.e(f"s_cselect_b32 s{sCOL}, 0, 4")
    c.e(f"s_movk_i32 s{sSTR}, 3456")
    c.e(f"s_cselect_b32 s{sSTR}, 1280, s{sSTR}")
    c.e(f"s_sub_u32 s{sCOL}, s{sFT}, s{sCOL}")
    c.e(f"s_mul_i32 s{sKB2}, s{sCOL}, 10")
    c.e(f"s_mul_i32 s{sCOL}, s{sCOL}, 320")

def wait_args(c):
    c.e("s_waitcnt lgkmcnt(0)")
    c.e("s_mov_b32 s42, s78"); c.e("s_mov_b32 s43, s79")
    c.e("s_mov_b32 s6, s76"); c.e("s_mov_b32 s7, s77")
    c.stamp(0, real=True)
    c.stamp(1)

def srd_w(c):
    c.e(f"s_cmp_eq_u32 s{sISH}, 0")
    c.e(f"s_cselect_b32 s{S_W}, s26, s36")
    c.e(f"s_cselect_b32 s{S_W+1}, s27, s37")
    c.e(f"s_mov_b32 s{S_W+2}, {640*1728*2}")
    c.e(f"s_cselect_b32 s{S_W+2}, {640*640*2}, s{S_W+2}")
    c.e(f"s_add_u32 s{S_W}, s{S_W}, s{sCOL}")
    c.e(f"s_addc_u32 s{S_W+1}, s{S_W+1}, 0")
    c.e(f"s_and_b32 s{S_W+1}, s{S_W+1}, 0xffff")
    c.e(f"s_sub_u32 s{S_W+2}, s{S_W+2}, s{sCOL}")
    c.e(f"s_mov_b32 s{S_W+3}, 0x20000")

def side_job_setup(c):
    c.e(f"s_mov_b32 s{sSEG}, 5120")
    c.e(f"s_sub_u32 s5, s2, 108")
    c.e(f"s_cmp_lt_u32 s5, 108")
    c.e(f"s_cselect_b32 s{sT0}, s40, s32")
    c.e(f"s_cselect_b32 s{sT1}, s41, s33")
    c.e(f"s_cselect_b32 s{sKB}, s5, 0")
    c.e(f"s_mov_b32 s{sT2}, {108*5120}")
    c.e(f"s_mov_b32 s{sT3}, {W2F}")
    c.e(f"s_mul_i32 s3, s{sKB}, {16*1280}")
    c.e(f"s_cbranch_scc1 K1_SJ1")
    c.e(f"s_mov_b32 s{sT2}, {40*5120}")
    c.e(f"s_mov_b32 s{sT3}, {WOF}")
    c.e(f"s_sub_u32 s{sKB}, s5, 108")
    c.e(f"s_mul_i32 s3, s{sKB}, 26")
    c.e(f"s_lshr_b32 s3, s3, 8")
    c.e(f"s_mul_i32 s4, s3, 10")
    c.e(f"s_sub_u32 s4, s{sKB}, s4")
    c.e(f"s_cmp_lt_u32 s4, 8")
    c.e(f"s_cbranch_scc0 K1_SJR")
    c.e(f"s_lshl_b32 s3, s3, 3")
    c.e(f"s_add_u32 s3, s3, s4")
    c.e(f"s_mul_i32 s3, s3, {20*1280}")
    c.e(f"s_branch K1_SJ1")
    c.label("K1_SJR")
    c.e(f"s_lshl_b32 s3, s3, 1")
    c.e(f"s_add_u32 s3, s3, s4")
    c.e(f"s_sub_u32 s3, s3, 8")
    c.e(f"s_mul_i32 s3, s3, {80*1280}")
    c.e(f"s_add_u32 s3, s3, {16*1280}")
    c.e(f"s_mov_b32 s{sSEG}, {20*1280}")
    c.label("K1_SJ1")
    c.e(f"s_add_u32 s{S_SJ}, s{sT0}, s3")
    c.e(f"s_addc_u32 s{S_SJ+1}, s{sT1}, 0")
    c.e(f"s_and_b32 s{S_SJ+1}, s{S_SJ+1}, 0xffff")
    c.e(f"s_mul_i32 s4, s{sSEG}, 3")
    c.e(f"s_add_u32 s4, s4, 5120")
    c.e(f"s_cmp_lt_u32 s5, 148")
    c.e(f"s_cselect_b32 s{S_SJ+2}, s4, 0")
    c.e(f"s_cselect_b32 s{S_SO+2}, {WS_USED}, 0")
    c.e(f"s_mov_b32 s{S_SJ+3}, 0x20000")
    c.e(f"s_mov_b32 s{S_SO}, s42")
    c.e(f"s_and_b32 s{S_SO+1}, s43, 0xffff")
    c.e(f"s_mov_b32 s{S_SO+3}, 0x20000")
    c.e(f"s_mul_i32 s3, s{sKB}, 5120")
    c.e(f"s_add_u32 s{sT3}, s{sT3}, s3")

def x_dma_addr(c, vXa, vXb, vt):
    c.e(f"s_lshl_b32 s{sT0}, s{sTB}, 7")
    c.e(f"s_lshl_b32 s{sT1}, s{sTW}, 5")
    c.e(f"s_add_u32 s{sT0}, s{sT0}, s{sT1}")
    c.e(f"v_lshrrev_b32 v{vt}, 3, v0")
    c.e(f"v_add_u32 v{vt}, s{sT0}, v{vt}")
    c.e(f"v_mul_u32_u24 v{vXa}, 1280, v{vt}")
    c.e(f"v_and_b32 v{vt}, 7, v0")
    c.e(f"v_lshrrev_b32 v{vXb}, 4, v0")
    c.e(f"v_xor_b32 v{vt}, v{vt}, v{vXb}")
    c.e(f"v_lshlrev_b32 v{vt}, 4, v{vt}")
    c.e(f"v_xor_b32 v{vXb}, 64, v{vt}")
    c.e(f"v_add_u32 v{vXb}, v{vXa}, v{vXb}")
    c.e(f"v_add_u32 v{vXb}, 10240, v{vXb}")
    c.e(f"v_add_u32 v{vXa}, v{vXa}, v{vt}")

def x_read_addr(c, vRX, vt, vt2):
    c.e(f"v_and_b32 v{vt}, 31, v0")
    c.e(f"v_bfe_u32 v{vt2}, v0, 1, 3")
    c.e(f"v_lshrrev_b32 v{vRX}, 5, v0")
    c.e(f"v_xor_b32 v{vt2}, v{vt2}, v{vRX}")
    c.e(f"v_lshlrev_b32 v{vt2}, 4, v{vt2}")
    c.e(f"s_lshl_b32 s{sT0}, s{sTW}, 5")
    c.e(f"v_add_u32 v{vt}, s{sT0}, v{vt}")
    c.e(f"v_lshlrev_b32 v{vt}, 7, v{vt}")
    c.e(f"v_add_u32 v{vt}, v{vt}, v{vt2}")
    c.e(f"v_add_u32 v{vRX}, {XOFF}, v{vt}")
    for k in range(1, 4):
        c.e(f"v_xor_b32 v{vRX+k}, {32*k}, v{vRX}")
    for k in range(4):
        c.e(f"v_add_u32 v{vRX+4+k}, {2*SLOT}, v{vRX+k}")

def tr_addr(c, vd, rowstride, hmul, vt):
    c.e(f"v_lshrrev_b32 v{vd}, 5, v0")
    c.e(f"v_mul_u32_u24 v{vd}, {hmul}, v{vd}")
    c.e(f"v_bfe_u32 v{vt}, v0, 2, 2")
    c.e(f"v_add_u32 v{vd}, v{vd}, v{vt}")
    c.e(f"v_mul_u32_u24 v{vd}, {rowstride}, v{vd}")
    c.e(f"v_bfe_u32 v{vt}, v0, 4, 1")
    c.e(f"v_lshl_add_u32 v{vd}, v{vt}, 5, v{vd}")
    c.e(f"v_and_b32 v{vt}, 3, v0")
    c.e(f"v_lshl_add_u32 v{vd}, v{vt}, 3, v{vd}")

def x_dma(c, vXa, vXb, chunk, tag):
    slot = chunk % 4
    c.e(f"s_lshl_b32 s{sXB}, s{sCH}, 7")
    for i in range(4):
        c.e(f"s_add_u32 m0, s{sW2K}, {slot*SLOT + XOFF + 1024*i}")
        c.e(f"s_add_u32 s{sXOFF}, s{sXB}, {(i >> 1)*16*1280}")
        c.vmem(f"buffer_load_dwordx4 v{vXb if i & 1 else vXa}, s[{S_X}:{S_X+3}], s{sXOFF} offen lds", tag)
    c.e(f"s_add_u32 s{sCH}, s{sCH}, 1")
    c.e(f"s_cmp_eq_u32 s{sCH}, 10")
    c.e(f"s_cselect_b32 s{sCH}, 0, s{sCH}")

def split_hi_lo(c, val, hi, lo, tmp):
    c.e(f"v_cvt_pk_bf16_f32 v{tmp}, v{val}, v{val}")
    c.e(f"v_and_b32 v{hi}, 0xffff0000, v{tmp}")
    c.e(f"v_sub_f32 v{lo}, v{val}, v{hi}")

def token_stats(c, vS, vQ, va, vb, vc_, vd):
    c.e(f"v_add_f32 v{vS}, v{vS}, v{vS+1}")
    c.e(f"v_add_f32 v{vQ}, v{vQ}, v{vQ+1}")
    c.e(f"v_mov_b32 v{va}, v{vS}")
    c.e(f"v_mov_b32 v{vb}, v{vQ}")
    c.nop(2)
    c.e(f"v_permlane32_swap_b32 v{vS}, v{va}")
    c.e(f"v_permlane32_swap_b32 v{vQ}, v{vb}")
    c.nop(2)
    c.e(f"v_add_f32 v{vS}, v{vS}, v{va}")
    c.e(f"v_add_f32 v{vQ}, v{vQ}, v{vb}")
    c.e(f"v_mul_f32 v{va}, {fhex(1.0/640)}, v{vS}")
    c.e(f"v_mul_f32 v{vQ}, {fhex(1.0/640)}, v{vQ}")
    c.e(f"v_fma_f32 v{vQ}, -v{va}, v{va}, v{vQ}")
    c.e(f"v_max_f32 v{vQ}, 0, v{vQ}")
    c.e(f"v_add_f32 v{vQ}, {fhex(EPS)}, v{vQ}")
    c.e(f"v_rsq_f32 v{vb}, v{vQ}")
    c.nop(1)
    c.e(f"v_mul_f32 v{vc_}, v{vQ}, v{vb}")

def build_Baug(c, vB, vmean, vstd, t0, t1, t2, t3):
    c.e(f"v_sub_f32 v{t0}, 0, v{vmean}")
    split_hi_lo(c, t0, t1, t2, t3)
    c.e(f"v_cvt_pk_bf16_f32 v{vB}, v{t1}, v{t2}")
    split_hi_lo(c, vstd, t0, t2, t3)
    c.e(f"v_cvt_pk_bf16_f32 v{vB+1}, v{t1}, v{t0}")
    c.e(f"v_mov_b32 v{vB+3}, 0")
    c.e(f"v_cvt_pk_bf16_f32 v{vB+2}, v{t2}, v{vB+3}")

def build_Aaug(c, vA, vcs, vbias, t0, t1, t2):
    c.e(f"v_cvt_pk_bf16_f32 v{vA}, v{vcs}, v{vcs}")
    c.e(f"v_and_b32 v{t0}, 0xffff0000, v{vA}")
    c.e(f"v_sub_f32 v{t1}, v{vcs}, v{t0}")
    c.e(f"v_cvt_pk_bf16_f32 v{vA+1}, v{t1}, v{vbias}")
    c.e(f"v_mov_b32 v{vA+3}, 0")
    c.e(f"v_cvt_pk_bf16_f32 v{vA+2}, v{vbias}, v{vA+3}")

def o_fill(c, r4, vaddr, tag):
    c.e(f"s_mul_i32 s{sT0}, s2, 10240")
    c.e(f"s_lshl_b32 s{sT1}, s{sTW}, 10")
    c.e(f"s_add_u32 s{sT0}, s{sT0}, s{sT1}")
    c.e(f"s_add_u32 s{sT0}, s{sT0}, {OF}")
    for r in range(4): c.e(f"v_mov_b32 v{r4+r}, -1")
    c.e(f"v_lshlrev_b32 v{vaddr}, 4, v0")
    c.e(f"buffer_store_dwordx4 v[{r4}:{r4+3}], v{vaddr}, s[{S_O}:{S_O+3}], s{sT0} offen sc0 sc1")
    c.e(f"s_add_u32 s{sT0}, s{sT0}, 4096")
    c.e(f"buffer_store_dwordx4 v[{r4}:{r4+3}], v{vaddr}, s[{S_O}:{S_O+3}], s{sT0} offen sc0 sc1")
    c.e(f"s_cmp_ge_u32 s{sTW}, 2")
    c.e(f"s_cbranch_scc1 K1_NF{tag}")
    c.e(f"s_add_u32 s{sT0}, s{sT0}, 4096")
    c.e(f"buffer_store_dwordx4 v[{r4}:{r4+3}], v{vaddr}, s[{S_O}:{S_O+3}], s{sT0} offen sc0 sc1")
    c.label(f"K1_NF{tag}")

def k1_compute(c):
    tiles = [0, 1, 2, 3, 4]; nt = 5
    L = "K1C"
    a = Alloc(1, 168)
    vt, vt2 = a.get(), a.get()
    vRW = a.get(2)
    vRX = a.get(8)
    vL16 = a.get()
    vCS = [a.get() for _ in range(nt)]
    vBias = [a.get() for _ in range(nt)]
    acc = [a.get(16, 4) for _ in range(nt)]
    fW = [[a.get(4, 4) for _ in range(nt)] for _ in range(2)]
    fX = [a.get(4, 4) for _ in range(2)]
    c.e(f"s_setprio {PRIO_C}")
    wait_args(c)
    srd(c, S_O, 42, 43, WS_USED)
    c.e(f"s_add_u32 s{S_B}, s38, s{sCOL}")
    c.e(f"s_addc_u32 s{S_B+1}, s39, 0")
    c.e(f"s_and_b32 s{S_B+1}, s{S_B+1}, 0xffff")
    c.e(f"s_sub_u32 s{S_B+2}, {1728*2}, s{sCOL}")
    c.e(f"s_cmp_eq_u32 s{sISH}, 0")
    c.e(f"s_cselect_b32 s{S_B+2}, 0, s{S_B+2}")
    c.e(f"s_mov_b32 s{S_B+3}, 0x20000")
    c.e(f"s_cselect_b32 s{sT0}, 40, 108")
    c.e(f"s_mov_b32 s{sT1}, {HF}")
    c.e(f"s_cselect_b32 s{sT1}, {QF}, s{sT1}")
    c.e(f"s_lshl_b32 s3, s{sTB}, 2")
    c.e(f"s_add_u32 s3, s3, s{sTW}")
    c.e(f"s_mul_i32 s3, s3, s{sT0}")
    c.e(f"s_add_u32 s{sOUT}, s{sKB2}, s3")
    c.e(f"s_lshl_b32 s{sOUT}, s{sOUT}, 10")
    c.e(f"s_add_u32 s{sOUT}, s{sOUT}, s{sT1}")
    c.e(f"v_lshlrev_b32 v{vL16}, 4, v0")
    c.e(f"v_and_b32 v{vt}, 31, v0")
    c.e(f"v_lshlrev_b32 v{vt}, 1, v{vt}")
    for i, t in enumerate(tiles):
        c.vmem(f"buffer_load_ushort v{vBias[i]}, v{vt}, s[{S_B}:{S_B+3}], 0 offen offset:{64*t}", "bias")
    tr_addr(c, vRW, 320, 8, vt)
    x_read_addr(c, vRX, vt, vt2)
    vN = a.get(2)
    c.e(f"v_mov_b32 v{vRW+1}, v{vRW}")
    for k in range(4): c.e(f"v_mov_b32 v{vRX+4+k}, v{vRX+k}")
    for t in range(nt):
        for i in range(16): c.e(f"v_mov_b32 v{acc[t]+i}, 0")
    def rd_list(sp, b, nxt=False):
        aw = vN if nxt else vRW+1
        ax = vN+1 if nxt else vRX+4+sp
        L_ = [f"ds_read_b128 v[{fX[b]}:{fX[b]+3}], v{ax}"]
        for i, t in enumerate(tiles):
            off = sp*5120 + 64*t
            L_.append(f"ds_read_b64_tr_b16 v[{fW[b][i]}:{fW[b][i]+1}], v{aw} offset:{off}")
            L_.append(f"ds_read_b64_tr_b16 v[{fW[b][i]+2}:{fW[b][i]+3}], v{aw} offset:{off+1280}")
        return L_
    def kstep(sp, rd, barrier=False, extra=()):
        b = sp & 1
        c.e("s_waitcnt lgkmcnt(0)")
        if barrier:
            trace_dyn(c, 2, sCH, vt)
            c.e("s_barrier")
            trace_dyn(c, 3, sCH, vt)
        cnt = [4, 4, 3, 0, 0]; extra = list(extra)
        for i in range(nt):
            c.e(f"v_mfma_f32_32x32x16_bf16 v[{acc[i]}:{acc[i]+15}], v[{fW[b][i]}:{fW[b][i]+3}], v[{fX[b]}:{fX[b]+3}], v[{acc[i]}:{acc[i]+15}]")
            for r_ in rd[:cnt[i]]: c.e(r_)
            rd = rd[cnt[i]:]
            if i == 3:
                for e_ in extra: c.e(e_)
    c.e(f"s_mov_b32 s{sWOFF}, {SLOT}")
    c.e(f"s_mov_b32 s{sCH}, 0")
    trace(c, 0, vt)
    c.e("s_barrier")
    trace(c, 1, vt)
    c.stamp(2)
    for r_ in rd_list(0, 0): c.e(r_)
    c.label("K1C_LOOP")
    kstep(0, rd_list(1, 1), extra=[f"v_add_u32 v{vN}, s{sWOFF}, v{vRW}", f"v_add_u32 v{vN+1}, s{sWOFF}, v{vRX}"])
    kstep(1, rd_list(2, 0))
    kstep(2, rd_list(3, 1))
    kstep(3, rd_list(0, 0, nxt=True), barrier=True,
          extra=[f"v_add_u32 v{vRW+1}, s{sWOFF}, v{vRW}"] + [f"v_add_u32 v{vRX+4+k}, s{sWOFF}, v{vRX+k}" for k in range(4)])
    c.e(f"s_add_u32 s{sWOFF}, s{sWOFF}, {SLOT}")
    c.e(f"s_cmp_eq_u32 s{sWOFF}, {4*SLOT}")
    c.e(f"s_cselect_b32 s{sWOFF}, 0, s{sWOFF}")
    c.e(f"s_add_u32 s{sCH}, s{sCH}, 1")
    c.e(f"s_cmp_lt_u32 s{sCH}, 9")
    c.e("s_cbranch_scc1 K1C_LOOP")
    kstep(0, rd_list(1, 1)); kstep(1, rd_list(2, 0)); kstep(2, rd_list(3, 1)); kstep(3, [])
    c.lg = []
    c.wait_vm("bias")
    c.stamp(3)
    trace(c, 20, vt)
    tmp = a.get(8, 4)
    c.e("s_barrier")
    trace(c, 21, vt)
    trace_dump(c, vt)
    c.e(f"v_and_b32 v{vt}, 31, v0")
    c.e(f"s_lshl_b32 s{sT0}, s{sTW}, 5")
    c.e(f"v_add_u32 v{vt2}, s{sT0}, v{vt}")
    c.e(f"v_lshlrev_b32 v{vt2}, 4, v{vt2}")
    c.e(f"v_add_u32 v{vt2}, {ST}, v{vt2}")
    stt = a.get(4, 4)
    c.lds(f"ds_read_b128 v[{stt}:{stt+3}], v{vt2}")
    c.e(f"v_lshlrev_b32 v{vt}, 5, v{vt}")
    c.e(f"v_add_u32 v{vt}, {CSP}, v{vt}")
    for i, t in enumerate(tiles):
        c.lds(f"ds_read_b128 v[{fW[0][i]}:{fW[0][i]+3}], v{vt} offset:{t*1024}")
        c.lds(f"ds_read_b128 v[{fW[1][i]}:{fW[1][i]+3}], v{vt} offset:{t*1024+16}")
    c.wait_lg0()
    c.e(f"v_cmp_gt_u32 vcc, 32, v0")
    for i in range(nt):
        A, B = fW[0][i], fW[1][i]
        c.e(f"v_add_f32 v{A}, v{A}, v{A+1}"); c.e(f"v_add_f32 v{A+2}, v{A+2}, v{A+3}")
        c.e(f"v_add_f32 v{B}, v{B}, v{B+1}"); c.e(f"v_add_f32 v{B+2}, v{B+2}, v{B+3}")
        c.e(f"v_add_f32 v{A}, v{A}, v{A+2}"); c.e(f"v_add_f32 v{B}, v{B}, v{B+2}")
        c.e(f"v_add_f32 v{A}, v{A}, v{B}")
        c.e(f"v_cndmask_b32 v{vCS[i]}, 0, v{A}, vcc")
        c.e(f"v_lshlrev_b32 v{vBias[i]}, 16, v{vBias[i]}")
        c.e(f"v_cndmask_b32 v{vBias[i]}, 0, v{vBias[i]}, vcc")
    vB = fX[0]
    build_Baug(c, vB, stt, stt+2, tmp, tmp+1, tmp+2, tmp+3)
    for i in range(nt):
        build_Aaug(c, fW[0][i], vCS[i], vBias[i], tmp, tmp+1, tmp+2)
    c.nop(2)
    for i in range(nt):
        c.e(f"v_mfma_f32_32x32x16_bf16 v[{acc[i]}:{acc[i]+15}], v[{fW[0][i]}:{fW[0][i]+3}], v[{vB}:{vB+3}], v[{acc[i]}:{acc[i]+15}]")
    F1 = fW[1]
    rs = F1[0]; sd = F1[0] + 2; k1p = F1[1]; k2p = F1[1] + 2
    c1 = -2*math.sqrt(2/math.pi)*math.log2(math.e); c2 = c1*0.044715
    c.e(f"s_cmp_eq_u32 s{sISH}, 0")
    c.e(f"s_cbranch_scc0 {L}_H")
    c.e(f"v_mul_f32 v{rs}, {fhex(QSCALE)}, v{stt+1}")
    c.e(f"v_mov_b32 v{rs+1}, v{rs}")
    c.nop(12)
    for i, t in enumerate(tiles):
        A = acc[i]
        for p in range(8):
            c.e(f"v_pk_mul_f32 v[{A+2*p}:{A+2*p+1}], v[{A+2*p}:{A+2*p+1}], v[{rs}:{rs+1}]")
        for p in range(8):
            c.e(f"v_cvt_pk_bf16_f32 v{A+p}, v{A+2*p}, v{A+2*p+1}")
        c.e(f"s_add_u32 s{sT0}, s{sOUT}, {2048*t}")
        c.e(f"buffer_store_dwordx4 v[{A}:{A+3}], v{vL16}, s[{S_O}:{S_O+3}], s{sT0} offen sc0 sc1")
        c.e(f"buffer_store_dwordx4 v[{A+4}:{A+7}], v{vL16}, s[{S_O}:{S_O+3}], s{sT0} offen offset:1024 sc0 sc1")
    c.stamp(4)
    c.finish(0, sW, S_O)
    c.label(f"{L}_H")
    r_ = stt + 1
    c.e(f"v_mul_f32 v{k1p}, {fhex(c1)}, v{r_}")
    c.e(f"v_mul_f32 v{k2p}, v{r_}, v{r_}")
    c.e(f"v_mul_f32 v{k2p}, v{k2p}, v{r_}")
    c.e(f"v_mul_f32 v{k2p}, {fhex(c2)}, v{k2p}")
    c.e(f"v_mov_b32 v{k1p+1}, v{k1p}")
    c.e(f"v_mov_b32 v{k2p+1}, v{k2p}")
    c.e(f"v_mov_b32 v{sd}, v{stt+2}")
    c.e(f"v_mov_b32 v{sd+1}, v{stt+2}")
    c.nop(8)
    g = [F1[2], F1[3]]
    def gelu_stage(A, q, G):
        P = [A+4*q, A+4*q+2]
        return [[f"v_pk_mul_f32 v[{G+2*u}:{G+2*u+1}], v[{z}:{z+1}], v[{z}:{z+1}]" for u, z in enumerate(P)],
                [f"v_pk_fma_f32 v[{G+2*u}:{G+2*u+1}], v[{G+2*u}:{G+2*u+1}], v[{k2p}:{k2p+1}], v[{k1p}:{k1p+1}]" for u, z in enumerate(P)],
                [f"v_pk_mul_f32 v[{G+2*u}:{G+2*u+1}], v[{G+2*u}:{G+2*u+1}], v[{z}:{z+1}]" for u, z in enumerate(P)],
                [f"v_exp_f32 v{G+u}, v{G+u}" for u in range(4)],
                [f"v_pk_fma_f32 v[{G+2*u}:{G+2*u+1}], v[{G+2*u}:{G+2*u+1}], v[{sd}:{sd+1}], v[{sd}:{sd+1}]" for u in range(2)],
                [f"v_rcp_f32 v{G+u}, v{G+u}" for u in range(4)],
                [f"v_pk_mul_f32 v[{z}:{z+1}], v[{z}:{z+1}], v[{G+2*u}:{G+2*u+1}]" for u, z in enumerate(P)],
                [f"v_cvt_pk_bf16_f32 v{A+2*q+u}, v{z}, v{z+1}" for u, z in enumerate(P)]]
    for i, t in enumerate(tiles):
        A = acc[i]
        if t == 4:
            c.e(f"s_cmp_eq_u32 s{sFT}, 14")
            c.e(f"s_cbranch_scc1 {L}_done")
        for q2 in range(2):
            X = gelu_stage(A, 2*q2, g[0]); Y = gelu_stage(A, 2*q2+1, g[1])
            for st in range(8):
                for x_ in X[st]: c.e(x_)
                for y_ in Y[st]: c.e(y_)
        c.e(f"s_add_u32 s{sT0}, s{sOUT}, {2048*t}")
        c.e(f"buffer_store_dwordx4 v[{A}:{A+3}], v{vL16}, s[{S_O}:{S_O+3}], s{sT0} offen sc0 sc1")
        c.e(f"buffer_store_dwordx4 v[{A+4}:{A+7}], v{vL16}, s[{S_O}:{S_O+3}], s{sT0} offen offset:1024 sc0 sc1")
    c.label(f"{L}_done")
    c.stamp(4)
    c.finish(0, sW, S_O)
    return a.hi

CHK = int(os.environ.get('CHK', '8'))
def k1_aux(c):
    a = Alloc(1, 168)
    vt, vt2 = a.get(), a.get()
    vRW = a.get(2)
    vU = a.get(10); vZ = a.get(); vA = a.get(); vG = a.get()
    vCS = [a.get() for _ in range(5)]; vC2 = [a.get() for _ in range(5)]
    stt = a.get(8, 4)
    fW = [a.get(4, 4) for _ in range(5)]
    c.e(f"s_mov_b32 s{sMASK}, 0xffff0000")
    c.e(f"s_setprio {PRIO_X}")
    wait_args(c)
    srd(c, S_O, 42, 43, WS_USED)
    srd(c, S_D, 6, 7, 256)
    tr_addr(c, vRW, 320, 8, vt)
    c.e(f"s_mul_i32 s{sT0}, s{sTW}, 5120")
    c.e(f"v_add_u32 v{vRW}, s{sT0}, v{vRW}")
    for r in vCS + vC2: c.e(f"v_mov_b32 v{r}, 0")
    def work():
        c.e(f"v_add_u32 v{vRW+1}, s{sWOFF}, v{vRW}")
        for t in range(5):
            c.e(f"ds_read_b64_tr_b16 v[{fW[t]}:{fW[t]+1}], v{vRW+1} offset:{64*t}")
            c.e(f"ds_read_b64_tr_b16 v[{fW[t]+2}:{fW[t]+3}], v{vRW+1} offset:{64*t+1280}")
        c.e("s_waitcnt lgkmcnt(0)")
        if 'nocs' in EXP: return
        for r in range(4):
            for t in range(5):
                c.e(f"v_lshlrev_b32 v{vU+2*t}, 16, v{fW[t]+r}")
                c.e(f"v_and_b32 v{vU+2*t+1}, s{sMASK}, v{fW[t]+r}")
            for t in range(5):
                c.e(f"v_add_f32 v{vCS[t]}, v{vCS[t]}, v{vU+2*t}")
                c.e(f"v_add_f32 v{vC2[t]}, v{vC2[t]}, v{vU+2*t+1}")
    c.e(f"s_lshl_b32 s{sT2}, s{sTB}, 4")
    c.e(f"s_lshl_b32 s{sT3}, s{sTB}, 11")
    c.e(f"s_add_u32 s{sT3}, s{sT3}, {STATS}")
    c.e(f"v_and_b32 v{vZ}, 3, v0")
    c.e(f"v_lshlrev_b32 v{vZ}, 2, v{vZ}")
    c.e(f"v_lshlrev_b32 v{vA}, 4, v0")
    c.e(f"s_mov_b32 s{sWOFF}, 0")
    c.e(f"s_mov_b32 s{sCH}, 0")
    c.e(f"s_cmp_eq_u32 s{sTW}, 0")
    c.e(f"s_cselect_b32 s{sXB}, {CHK}, 99")
    c.e("s_barrier")
    c.label("K1A_LOOP")
    c.e(f"s_cmp_lg_u32 s{sCH}, s{sXB}")
    c.e("s_cbranch_scc1 K1_AX0")
    c.e(f"buffer_load_dword v{vG}, v{vZ}, s[{S_D}:{S_D+3}], s{sT2} offen sc1")
    c.label("K1_AX0")
    work()
    c.e(f"s_cmp_lg_u32 s{sCH}, s{sXB}")
    c.e("s_cbranch_scc1 K1_AX1")
    c.e(f"s_mov_b32 s{sKB}, 0")
    c.label("K1_AXP")
    c.e("s_waitcnt vmcnt(0)")
    c.e(f"v_cmp_eq_u32 vcc, 1, v{vG}")
    c.e(f"s_add_u32 s{sKB}, s{sKB}, 1")
    c.e("s_cmp_eq_u64 vcc, -1")
    c.e("s_cbranch_scc1 K1_AXG")
    c.e("s_sleep 12")
    c.e(f"buffer_load_dword v{vG}, v{vZ}, s[{S_D}:{S_D+3}], s{sT2} offen sc1")
    c.e(f"s_cmp_lt_u32 s{sKB}, 0x10000")
    c.e("s_cbranch_scc1 K1_AXP")
    c.label("K1_AXG")
    c.e(f"buffer_load_dwordx4 v[{stt}:{stt+3}], v{vA}, s[{S_O}:{S_O+3}], s{sT3} offen sc1")
    c.e(f"buffer_load_dwordx4 v[{stt+4}:{stt+7}], v{vA}, s[{S_O}:{S_O+3}], s{sT3} offen offset:1024 sc1")
    c.label("K1_AX1")
    c.e(f"s_add_u32 s{sWOFF}, s{sWOFF}, {SLOT}")
    c.e(f"s_cmp_eq_u32 s{sWOFF}, {4*SLOT}")
    c.e(f"s_cselect_b32 s{sWOFF}, 0, s{sWOFF}")
    c.e(f"s_add_u32 s{sCH}, s{sCH}, 1")
    c.e(f"s_cmp_eq_u32 s{sCH}, 10")
    c.e("s_cbranch_scc1 K1A_END")
    trace_dyn(c, 0, sCH, vt)
    c.e("s_barrier")
    trace_dyn(c, 1, sCH, vt)
    c.e("s_branch K1A_LOOP")
    c.label("K1A_END")
    trace(c, 20, vt)
    for t in range(5): c.e(f"v_add_f32 v{vCS[t]}, v{vCS[t]}, v{vC2[t]}")
    c.nop(4)
    c.e(f"v_and_b32 v{vt}, 31, v0")
    c.e(f"v_lshlrev_b32 v{vt}, 5, v{vt}")
    c.e(f"v_lshrrev_b32 v{vt2}, 5, v0")
    c.e(f"v_lshl_add_u32 v{vt}, v{vt2}, 2, v{vt}")
    c.e(f"s_lshl_b32 s{sT0}, s{sTW}, 3")
    c.e(f"v_add_u32 v{vt}, s{sT0}, v{vt}")
    c.e(f"v_add_u32 v{vt}, {CSP}, v{vt}")
    for t in range(5):
        c.lds(f"ds_write_b32 v{vt}, v{vCS[t]} offset:{t*1024}")
    c.e(f"s_cmp_lg_u32 s{sTW}, 0")
    c.e("s_cbranch_scc1 K1_AX2")
    c.e("s_waitcnt vmcnt(0)")
    c.e(f"v_add_u32 v{vt}, {ST}, v{vA}")
    c.e(f"ds_write_b128 v{vt}, v[{stt}:{stt+3}]")
    c.e(f"ds_write_b128 v{vt}, v[{stt+4}:{stt+7}] offset:1024")
    c.label("K1_AX2")
    c.wait_lg0()
    trace(c, 21, vt)
    c.e("s_barrier")
    trace_dump(c, vt)
    o_fill(c, fW[0], vt, "A")
    c.finish(0, sW, S_O)
    return a.hi

def k1_kv(c, fh):
    L = f"K1KV{fh}"
    a = Alloc(1, 168)
    vt, vt2 = a.get(), a.get()
    vRW = a.get()
    vRX = a.get(8)
    vL16 = a.get()
    vOnes = a.get()
    vS = a.get(2); vQ = a.get(2); vCS = a.get(); vC4 = a.get(4)
    acc = a.get(16, 4)
    fW = [a.get(4, 4) for _ in range(2)]
    fX = [a.get(4, 4) for _ in range(2)]
    wait_args(c)
    srd(c, S_X, 24, 25, M*D*2)
    srd(c, S_O, 42, 43, WS_USED)
    srd(c, S_D, 6, 7, 256)
    c.e(f"s_lshl_b32 s3, s{sTB}, 2")
    c.e(f"s_add_u32 s3, s3, s{sTW}")
    c.e(f"s_mul_i32 s{sOUT}, s3, 2560")
    c.e(f"s_add_u32 s{sOUT}, s{sOUT}, {KV}")
    c.e(f"v_lshlrev_b32 v{vL16}, 4, v0")
    tr_addr(c, vRW, 40, 8, vt)
    c.e(f"v_add_u32 v{vRW}, {2*fh*SLOT}, v{vRW}")
    x_read_addr(c, vRX, vt, vt2)
    c.e(f"v_mov_b32 v{vOnes}, 0x3f803f80")
    for r in (vS, vS+1, vQ, vQ+1, vCS, vC4, vC4+1, vC4+2, vC4+3): c.e(f"v_mov_b32 v{r}, 0")
    for i in range(16): c.e(f"v_mov_b32 v{acc+i}, 0")
    def reads(n):
        ch, sp = divmod(n, 4); slot = ch % 4; b = n & 1
        hi = slot >> 1; base = (slot & 1) * SLOT
        c.lds(f"ds_read_b128 v[{fX[b]}:{fX[b]+3}], v{vRX+4*hi+sp} offset:{base}", n)
        hf = n // 20; k0 = (n % 20) * 16
        off = hf*SLOT + k0*40
        c.lds(f"ds_read_b64_tr_b16 v[{fW[b]}:{fW[b]+1}], v{vRW} offset:{off}", n)
        c.lds(f"ds_read_b64_tr_b16 v[{fW[b]+2}:{fW[b]+3}], v{vRW} offset:{off+160}", n)
    tmp = a.get(8, 4)
    if fh == 0:
        c.e("s_setprio 3")
        m0_ = a.mark()
        xb = [a.get(40, 4), a.get(40, 4)]
        vG = a.get(); SQ = a.get(8)
        c.e(f"s_lshl_b32 s{sT0}, s{sTB}, 7")
        c.e(f"s_lshl_b32 s{sT1}, s{sTW}, 5")
        c.e(f"s_add_u32 s{sT0}, s{sT0}, s{sT1}")
        c.e(f"v_lshrrev_b32 v{vG}, 3, v0")
        c.e(f"v_add_u32 v{vG}, s{sT0}, v{vG}")
        c.e(f"v_mul_u32_u24 v{vG}, 1280, v{vG}")
        c.e(f"v_and_b32 v{vt}, 7, v0")
        c.e(f"v_lshl_add_u32 v{vG}, v{vt}, 4, v{vG}")
        def xload(g):
            for ch in range(10):
                c.e(f"s_mov_b32 s{sT1}, {g*10240 + ch*128}")
                c.vmem(f"buffer_load_dwordx4 v[{xb[g&1]+4*ch}:{xb[g&1]+4*ch+3}], v{vG}, s[{S_X}:{S_X+3}], s{sT1} offen", f"xs{g}")
        xload(0); xload(1)
        for r in range(8): c.e(f"v_mov_b32 v{SQ+r}, 0")
        for g in range(4):
            c.wait_vm(f"xs{g}")
            for r in range(40):
                c.e(f"v_dot2_f32_bf16 v{SQ+2*g}, v{xb[g&1]+r}, v{vOnes}, v{SQ+2*g}")
                c.e(f"v_dot2_f32_bf16 v{SQ+2*g+1}, v{xb[g&1]+r}, v{xb[g&1]+r}, v{SQ+2*g+1}")
            if g + 2 < 4: xload(g + 2)
        c.nop(4)
        for ctl in ("quad_perm:[1,0,3,2]", "quad_perm:[2,3,0,1]", "row_half_mirror"):
            for r in range(8):
                c.e(f"v_add_f32_dpp v{SQ+r}, v{SQ+r}, v{SQ+r} {ctl} row_mask:0xf bank_mask:0xf")
            c.nop(2)
        c.e(f"v_and_b32 v{vt}, 7, v0")
        for g in range(1, 4):
            c.e(f"v_cmp_eq_u32 vcc, {g}, v{vt}")
            c.nop(2)
            c.e(f"v_cndmask_b32 v{SQ}, v{SQ}, v{SQ+2*g}, vcc")
            c.e(f"v_cndmask_b32 v{SQ+1}, v{SQ+1}, v{SQ+2*g+1}, vcc")
        c.e(f"v_mul_f32 v{tmp}, {fhex(1.0/640)}, v{SQ}")
        c.e(f"v_mul_f32 v{SQ+1}, {fhex(1.0/640)}, v{SQ+1}")
        c.e(f"v_fma_f32 v{SQ+1}, -v{tmp}, v{tmp}, v{SQ+1}")
        c.e(f"v_max_f32 v{SQ+1}, 0, v{SQ+1}")
        c.e(f"v_add_f32 v{SQ+1}, {fhex(EPS)}, v{SQ+1}")
        c.e(f"v_rsq_f32 v{tmp+1}, v{SQ+1}")
        c.nop(1)
        c.e(f"v_mul_f32 v{tmp+2}, v{SQ+1}, v{tmp+1}")
        c.e(f"v_mov_b32 v{tmp+3}, 0")
        c.e(f"v_lshlrev_b32 v{vt2}, 3, v{vt}")
        c.e(f"v_lshrrev_b32 v{vG}, 3, v0")
        c.e(f"v_add_u32 v{vt2}, v{vt2}, v{vG}")
        c.e(f"v_lshlrev_b32 v{vt2}, 4, v{vt2}")
        c.e(f"s_lshl_b32 s{sT0}, s{sTB}, 2")
        c.e(f"s_add_u32 s{sT0}, s{sT0}, s{sTW}")
        c.e(f"s_lshl_b32 s{sT1}, s{sT0}, 9")
        c.e(f"s_add_u32 s{sT1}, s{sT1}, {STATS}")
        c.e(f"v_cmp_gt_u32 vcc, 4, v{vt}")
        c.e(f"s_and_saveexec_b64 s[4:5], vcc")
        c.e(f"buffer_store_dwordx4 v[{tmp}:{tmp+3}], v{vt2}, s[{S_O}:{S_O+3}], s{sT1} offen sc0 sc1")
        c.e(f"s_lshl_b32 s{sT1}, s{sTW}, 9")
        c.e(f"v_add_u32 v{vt2}, s{sT1}, v{vt2}")
        c.e(f"v_add_u32 v{vt2}, {ST}, v{vt2}")
        c.e(f"ds_write_b128 v{vt2}, v[{tmp}:{tmp+3}]")
        c.e("s_mov_b64 exec, -1")
        c.e("s_waitcnt vmcnt(0) lgkmcnt(0)")
        c.vm = []
        c.e(f"s_lshl_b32 s{sT0}, s{sT0}, 2")
        c.e(f"v_mov_b32 v{vt}, 1")
        c.e(f"v_mov_b32 v{vt2}, 0")
        c.e("s_mov_b64 exec, 1")
        c.e(f"buffer_store_dword v{vt}, v{vt2}, s[{S_D}:{S_D+3}], s{sT0} offen sc0 sc1")
        c.e("s_mov_b64 exec, -1")
        c.e("s_setprio 0")
        a.release(m0_)
    c.e("s_barrier")
    reads(0)
    for n in range(40):
        ch, sp = divmod(n, 4); b = n & 1
        c.wait_lg(n)
        if sp == 3 and ch + 1 < 10:
            c.e("s_barrier")
        if n + 1 < 40: reads(n + 1)
        if fh == 0:
            c.e(f"v_mfma_f32_32x32x16_bf16 v[{acc}:{acc+15}], v[{fW[b]}:{fW[b]+3}], v[{fX[b]}:{fX[b]+3}], v[{acc}:{acc+15}]")
        else:
            c.e(f"v_mfma_f32_32x32x16_bf16 v[{acc}:{acc+15}], v[{fX[b]}:{fX[b]+3}], v[{fW[b]}:{fW[b]+3}], v[{acc}:{acc+15}]")
    c.e(f"v_and_b32 v{vt}, 31, v0")
    c.e(f"s_lshl_b32 s{sT0}, s{sTW}, 5")
    c.e(f"v_add_u32 v{vt}, s{sT0}, v{vt}")
    c.e(f"v_lshlrev_b32 v{vt}, 4, v{vt}")
    c.e(f"v_add_u32 v{vt}, {ST}, v{vt}")
    c.lds(f"ds_read_b128 v[{tmp}:{tmp+3}], v{vt}")
    csb = [a.get(4, 4) for _ in range(4)]
    for n0 in range(0, 40, 4):
        for u in range(4):
            n = n0 + u; hf = n // 20; k0 = (n % 20) * 16; off = hf*SLOT + k0*40
            c.lds(f"ds_read_b64_tr_b16 v[{csb[u]}:{csb[u]+1}], v{vRW} offset:{off}", "cs")
            c.lds(f"ds_read_b64_tr_b16 v[{csb[u]+2}:{csb[u]+3}], v{vRW} offset:{off+160}", "cs")
        c.wait_lg0()
        for r in range(4):
            for u in range(4):
                c.e(f"v_dot2_f32_bf16 v{vC4+u}, v{csb[u]+r}, v{vOnes}, v{vC4+u}")
    c.nop(4)
    c.e(f"v_add_f32 v{vC4}, v{vC4}, v{vC4+1}")
    c.e(f"v_add_f32 v{vC4+2}, v{vC4+2}, v{vC4+3}")
    c.e(f"v_add_f32 v{vCS}, v{vC4}, v{vC4+2}")
    c.e(f"v_mov_b32 v{vt}, v{vCS}")
    c.nop(2)
    c.e(f"v_permlane32_swap_b32 v{vCS}, v{vt}")
    c.nop(2)
    c.e(f"v_add_f32 v{vCS}, v{vCS}, v{vt}")
    c.e(f"v_cmp_gt_u32 vcc, 32, v0")
    c.nop(2)
    c.e(f"v_cndmask_b32 v{vCS}, 0, v{vCS}, vcc")
    c.e(f"v_mov_b32 v{vt}, 0")
    t2 = a.get(4, 4)
    build_Baug(c, fX[0], tmp, tmp+2, t2, t2+1, t2+2, t2+3)
    build_Aaug(c, fW[0], vCS, vt, t2, t2+1, t2+2)
    c.nop(2)
    kvb = f"s{sOUT}"
    if fh == 0:
        c.e(f"v_mfma_f32_32x32x16_bf16 v[{acc}:{acc+15}], v[{fW[0]}:{fW[0]+3}], v[{fX[0]}:{fX[0]+3}], v[{acc}:{acc+15}]")
        c.nop(16)
        for r in range(12):
            c.e(f"v_mul_f32 v{acc+r}, v{acc+r}, v{tmp+1}")
        for p in range(6):
            c.e(f"v_cvt_pk_bf16_f32 v{acc+p}, v{acc+2*p}, v{acc+2*p+1}")
        c.e(f"buffer_store_dwordx4 v[{acc}:{acc+3}], v{vL16}, s[{S_O}:{S_O+3}], {kvb} offen sc0 sc1")
        c.e(f"v_lshlrev_b32 v{vt}, 3, v0")
        c.e(f"v_cmp_gt_u32 vcc, 32, v0")
        c.e(f"s_and_saveexec_b64 s[4:5], vcc")
        c.e(f"buffer_store_dwordx2 v[{acc+4}:{acc+5}], v{vt}, s[{S_O}:{S_O+3}], {kvb} offen offset:1024 sc0 sc1")
        c.finish(0, sW, S_O)
    else:
        c.e(f"v_mfma_f32_32x32x16_bf16 v[{acc}:{acc+15}], v[{fX[0]}:{fX[0]+3}], v[{fW[0]}:{fW[0]+3}], v[{acc}:{acc+15}]")
        c.e(f"v_and_b32 v{vt}, 31, v0")
        c.e(f"s_lshl_b32 s{sT0}, s{sTW}, 5")
        c.e(f"v_add_u32 v{vt}, s{sT0}, v{vt}")
        c.e(f"v_lshlrev_b32 v{vt}, 2, v{vt}")
        c.e(f"v_add_u32 v{vt}, {RS}, v{vt}")
        c.lds(f"ds_write_b32 v{vt}, v{tmp+1}")
        c.wait_lg0()
        c.e(f"v_lshrrev_b32 v{vt}, 5, v0")
        c.e(f"v_lshlrev_b32 v{vt}, 4, v{vt}")
        c.e(f"s_lshl_b32 s{sT0}, s{sTW}, 7")
        c.e(f"v_add_u32 v{vt}, s{sT0}, v{vt}")
        c.e(f"v_add_u32 v{vt}, {RS}, v{vt}")
        rr = a.get(16, 4)
        for j in range(4):
            c.lds(f"ds_read_b128 v[{rr+4*j}:{rr+4*j+3}], v{vt} offset:{32*j}")
        c.wait_lg0()
        c.nop(16)
        for r in range(16):
            c.e(f"v_mul_f32 v{acc+r}, v{acc+r}, v{rr+r}")
        for p in range(8):
            c.e(f"v_cvt_pk_bf16_f32 v{acc+p}, v{acc+2*p}, v{acc+2*p+1}")
        c.e(f"v_and_b32 v{vt}, 31, v0")
        c.e(f"v_lshrrev_b32 v{vt2}, 5, v0")
        c.e(f"v_mul_u32_u24 v{vt2}, 20, v{vt2}")
        c.e(f"v_add_u32 v{vt2}, v{vt2}, v{vt}")
        c.e(f"v_lshlrev_b32 v{vt2}, 4, v{vt2}")
        c.e(f"v_cmp_gt_u32 vcc, 20, v{vt}")
        c.e(f"s_and_saveexec_b64 s[4:5], vcc")
        c.e(f"buffer_store_dwordx4 v[{acc}:{acc+3}], v{vt2}, s[{S_O}:{S_O+3}], {kvb} offen offset:1280 sc0 sc1")
        c.e(f"buffer_store_dwordx4 v[{acc+4}:{acc+7}], v{vt2}, s[{S_O}:{S_O+3}], {kvb} offen offset:1920 sc0 sc1")
        c.finish(0, sW, S_O)
    return a.hi


def k1_loader(c, kv):
    a = Alloc(1, 168)
    vt, vt2 = a.get(), a.get()
    vXa, vXb = a.get(), a.get()
    vL16 = a.get()
    if 'noprio' not in EXP: c.e("s_setprio 3")
    c.e(f"s_lshl_b32 s{sW2K}, s{sTW}, 12")
    c.e(f"s_mul_i32 s{sW1K}, s{sTW}, 5120")
    if kv or 'norot' in EXP:
        c.e(f"s_mov_b32 s{sCH}, 0")
    else:
        c.e(f"s_lshr_b32 s{sCH}, s2, 3")
        c.e(f"s_mul_i32 s{sT0}, s{sCH}, 26")
        c.e(f"s_lshr_b32 s{sT0}, s{sT0}, 8")
        c.e(f"s_mul_i32 s{sT0}, s{sT0}, 10")
        c.e(f"s_sub_u32 s{sCH}, s{sCH}, s{sT0}")
    x_dma_addr(c, vXa, vXb, vt)
    c.e(f"v_lshlrev_b32 v{vL16}, 4, v0")
    if kv:
        wait_args(c)
        srd(c, S_X, 24, 25, M*D*2)
        srd(c, S_O, 42, 43, WS_USED)
    if not kv:
        vWd = [a.get() for _ in range(5)]
        c.e(f"s_lshl_b32 s{sT0}, s{sTW}, 4")
        c.e(f"s_mul_i32 s{sT0}, s{sT0}, s{sSTR}")
        for i, r in enumerate(vWd):
            c.e(f"v_add_u32 v{vt}, {64*i}, v0")
            c.e(f"v_mul_u32_u24 v{vt2}, 3277, v{vt}")
            c.e(f"v_lshrrev_b32 v{vt2}, 16, v{vt2}")
            c.e(f"v_mul_u32_u24 v{r}, 20, v{vt2}")
            c.e(f"v_sub_u32 v{vt}, v{vt}, v{r}")
            c.e(f"v_mul_u32_u24 v{r}, s{sSTR}, v{vt2}")
            c.e(f"v_lshl_add_u32 v{r}, v{vt}, 4, v{r}")
            c.e(f"v_add_u32 v{r}, s{sT0}, v{r}")
        def dma(tag):
            c.e(f"s_lshl_b32 s{sWOFF}, s{sCH}, 6")
            c.e(f"s_mul_i32 s{sWOFF}, s{sSTR}, s{sWOFF}")
            c.e(f"s_add_u32 s{sMASK}, s{sW1K}, s{sSLD}")
            for i, r in enumerate(vWd):
                c.e(f"s_add_u32 m0, s{sMASK}, {1024*i}")
                c.e("s_nop 0")
                c.vmem(f"buffer_load_dwordx4 v{r}, s[{S_W}:{S_W+3}], s{sWOFF} offen lds", tag)
            c.e(f"s_lshl_b32 s{sXB}, s{sCH}, 7")
            c.e(f"s_add_u32 s{sMASK}, s{sW2K}, s{sSLD}")
            for i in range(4):
                c.e(f"s_add_u32 m0, s{sMASK}, {XOFF + 1024*i}")
                c.e(f"s_add_u32 s{sXOFF}, s{sXB}, {(i >> 1)*16*1280}")
                c.vmem(f"buffer_load_dwordx4 v{vXb if i & 1 else vXa}, s[{S_X}:{S_X+3}], s{sXOFF} offen lds", tag)
            c.e(f"s_add_u32 s{sCH}, s{sCH}, 1")
            c.e(f"s_cmp_eq_u32 s{sCH}, 10")
            c.e(f"s_cselect_b32 s{sCH}, 0, s{sCH}")
            c.e(f"s_add_u32 s{sSLD}, s{sSLD}, {SLOT}")
            c.e(f"s_cmp_eq_u32 s{sSLD}, {4*SLOT}")
            c.e(f"s_cselect_b32 s{sSLD}, 0, s{sSLD}")
        c.e(f"s_mov_b32 s{sSLD}, 0")
        wait_args(c)
        srd(c, S_X, 24, 25, M*D*2)
        srd_w(c)
        dma("ch0"); dma("ch1")
        srd(c, S_O, 42, 43, WS_USED)
        side_job_setup(c)
        vSJ = a.get()
        tr_addr(c, vSJ, 1280, 4, vt)
        c.e(f"v_add_u32 v{vSJ}, {2*SLOT}, v{vSJ}")
        trace(c, 22, vt)
        c.wait_vm("ch0")
        trace(c, 0, vt)
        c.e("s_barrier")
        trace(c, 1, vt)
        dma("ch2"); dma("ch3")
        c.e(f"s_mov_b32 s{sKB2}, 0")
        c.label("K1L_LOOP")
        c.e("s_waitcnt vmcnt(18)")
        trace_dyn(c, 2, sKB2, vt)
        c.e("s_barrier")
        trace_dyn(c, 3, sKB2, vt)
        dma("x")
        c.e(f"s_add_u32 s{sKB2}, s{sKB2}, 1")
        c.e(f"s_cmp_lt_u32 s{sKB2}, 6")
        c.e("s_cbranch_scc1 K1L_LOOP")
        c.e("s_waitcnt vmcnt(18)")
        c.e("s_barrier")
        for i in range(5):
            c.e(f"s_add_u32 m0, s{sW1K}, {2*SLOT + 1024*i}")
            c.e(f"s_mul_i32 s{sT0}, s{sSEG}, s{sTW}")
            c.e(f"s_add_u32 s{sT0}, s{sT0}, {1024*i}")
            c.e(f"buffer_load_dwordx4 v{vL16}, s[{S_SJ}:{S_SJ+3}], s{sT0} offen lds")
        c.e("s_waitcnt vmcnt(14)")
        c.e("s_barrier")
        c.e("s_waitcnt vmcnt(0)")
        c.e("s_barrier")
        c.vm = []
        sj = [a.get(4, 4) for _ in range(5)]
        c.e(f"s_mul_i32 s{sT0}, s{sTW}, 320")
        c.e(f"v_add_u32 v{vt}, s{sT0}, v{vSJ}")
        for i in range(5):
            c.lds(f"ds_read_b64_tr_b16 v[{sj[i]}:{sj[i]+1}], v{vt} offset:{64*i}", "sjr")
            c.lds(f"ds_read_b64_tr_b16 v[{sj[i]+2}:{sj[i]+3}], v{vt} offset:{64*i + 8*1280}", "sjr")
        c.wait_lg0()
        c.e("s_barrier")
        trace_dump(c, vt)
        c.e(f"s_mul_i32 s{sT1}, s{sTW}, s{sT2}")
        c.e(f"s_add_u32 s{sT1}, s{sT1}, s{sT3}")
        for i in range(5):
            c.e(f"s_add_u32 s{sT0}, s{sT1}, {1024*i}")
            c.vstore(f"buffer_store_dwordx4 v[{sj[i]}:{sj[i]+3}], v{vL16}, s[{S_SO}:{S_SO+3}], s{sT0} offen sc0 sc1")
    else:
        c.e(f"s_lshr_b32 s{sT0}, s{sTW}, 1")
        c.e(f"s_cmp_eq_u32 s{sT0}, 0")
        c.e(f"s_cselect_b32 s{S_W}, s28, s30")
        c.e(f"s_cselect_b32 s{S_W+1}, s29, s31")
        c.e(f"s_and_b32 s{S_W+1}, s{S_W+1}, 0xffff")
        c.e(f"s_mov_b32 s{S_W+2}, 25600")
        c.e(f"s_mov_b32 s{S_W+3}, 0x20000")
        c.e(f"s_and_b32 s{sT1}, s{sTW}, 1")
        c.e(f"s_mul_i32 s{sWOFF}, s{sT1}, 12800")
        c.e(f"s_mul_i32 s{sW1K}, s{sTW}, {SLOT}")
        x_dma(c, vXa, vXb, 0, "ch0")
        for i in range(13):
            c.e(f"s_add_u32 m0, s{sW1K}, {1024*i}")
            c.e(f"s_add_u32 s{sT0}, s{sWOFF}, {1024*i}")
            c.vmem(f"buffer_load_dwordx4 v{vL16}, s[{S_W}:{S_W+3}], s{sT0} offen lds", "ch0")
        x_dma(c, vXa, vXb, 1, "ch1")
        c.wait_vm("ch0")
        c.e("s_barrier")
        for ch in range(2, 4): x_dma(c, vXa, vXb, ch, f"ch{ch}")
        for ch in range(9):
            c.wait_vm(f"ch{ch+1}")
            c.e("s_barrier")
            if ch + 4 < 10: x_dma(c, vXa, vXb, ch + 4, f"ch{ch+4}")
        o_fill(c, a.get(4, 4), vt, "K")
    c.finish(0, sW, S_O)
    return a.hi

def gen_k1():
    c = Code()
    k1_prologue(c)
    hi = 0
    c.e(f"s_cmp_eq_u32 s{sFT}, 15")
    c.e("s_cbranch_scc1 K1_KV")
    c.e(f"s_cmp_lg_u32 s{sFH}, 2")
    c.e("s_cbranch_scc1 K1_NOTL")
    cl = Code(); hi = max(hi, k1_loader(cl, False)); c.lines += cl.lines
    c.label("K1_NOTL")
    c.e(f"s_cmp_eq_u32 s{sFH}, 0")
    c.e("s_cbranch_scc0 K1_MAIN1")
    c0 = Code(); hi = max(hi, k1_compute(c0)); c.lines += c0.lines
    c.label("K1_MAIN1")
    c1 = Code(); hi = max(hi, k1_aux(c1)); c.lines += c1.lines
    c.label("K1_KV")
    c.e(f"s_cmp_eq_u32 s{sFH}, 2")
    c.e("s_cbranch_scc1 K1_LOADKV")
    c.e(f"s_cmp_eq_u32 s{sFH}, 0")
    c.e("s_cbranch_scc0 K1_KV1")
    c2 = Code(); hi = max(hi, k1_kv(c2, 0)); c.lines += c2.lines
    c.label("K1_KV1")
    c3 = Code(); hi = max(hi, k1_kv(c3, 1)); c.lines += c3.lines
    c.label("K1_LOADKV")
    cl = Code(); hi = max(hi, k1_loader(cl, True)); c.lines += cl.lines
    c.label("K1_END")
    c.e("s_endpgm")
    return c.text(), hi

if __name__ == "__main__":
    t, hi = gen_k1()
    print(t)
    import sys
    print("vgprs", hi, "lds", K1_LDS, file=sys.stderr)
```

```python
from core import *
import re
import k2 as K2old
from k2 import piece_addr
EXP = os.environ.get('EXP', '')

GP = int(re.search(r'gp=([0-9])', EXP).group(1)) if 'gp=' in EXP else 0
K2_LDS = 163840
S_WS, S_X, S_B2, S_OUT = 8, 12, 16, 20
sW, sTT, sHEAD, sT0, sT1, sT2, sIT, sGW, sFBK, sA, sB, sAS, sRB, sG, sFB, sTO, sSPIN, sPB = range(40, 58)
sVM = 58
K2old.sVM = sVM
NV = 168

def attn_tile(c, R, j, pat=None):
    S = R['S'][j & 1]; N = R['S'][(j + 1) & 1]; P = R['P']; O = R['O']
    K0, K1, Va, Vb, Q0, Q1 = R['K0'], R['K1'], R['Va'], R['Vb'], R['Q0'], R['Q1']
    vK0, vK1, vV = R['vK0'], R['vK1'], R['vV']
    def ex(lo):
        c.e(f"v_exp_f32 v{S+lo}, v{S+lo}")
        c.e(f"v_exp_f32 v{S+lo+1}, v{S+lo+1}")
        c.e(f"v_exp_f32 v{S+lo+2}, v{S+lo+2}")
        c.e(f"v_cvt_pk_bf16_f32 v{P+lo//2}, v{S+lo}, v{S+lo+1}")
        c.e(f"v_exp_f32 v{S+lo+3}, v{S+lo+3}")
        R['pend'] = (P + lo//2 + 1, S + lo + 2, S + lo + 3)
    def flush():
        if R.get('pend'):
            d, a_, b_ = R['pend']; c.e(f"v_cvt_pk_bf16_f32 v{d}, v{a_}, v{b_}"); R['pend'] = None
    T = 2560
    import re
    if pat is None:
        m = re.search(r"pat=([0-9\-]+)", EXP); pat = m.group(1) if m else "2--1"
    def pr(k):
        if pat[k] != '-': c.e(f"s_setprio {pat[k]}")
    pr(0)
    c.e("s_waitcnt lgkmcnt(3)")
    flush()
    c.e(f"v_mfma_f32_32x32x16_bf16 v[{N}:{N+15}], v[{K0}:{K0+3}], v[{Q0}:{Q0+3}], 0")
    c.e(f"ds_read_b128 v[{K0}:{K0+3}], v{vK0} offset:{(j+2)*T}")
    ex(0)
    pr(1)
    c.e("s_waitcnt lgkmcnt(3)")
    flush()
    c.e(f"v_mfma_f32_32x32x16_bf16 v[{N}:{N+15}], v[{K1}:{K1+3}], v[{Q1}:{Q1+3}], v[{N}:{N+15}]")
    if 'k1z' not in EXP: c.e(f"ds_read_b64 v[{K1}:{K1+1}], v{vK1} offset:{(j+2)*T}")
    else:
        c.e("s_mov_b64 exec, 0xffffffff")
        c.e(f"ds_read_b64 v[{K1}:{K1+1}], v{vK1} offset:{(j+2)*T}")
        c.e("s_mov_b64 exec, -1")
    ex(4)
    pr(2)
    c.e("s_waitcnt lgkmcnt(3)")
    flush()
    c.e(f"v_mfma_f32_32x32x16_bf16 v[{O}:{O+15}], v[{Vb}:{Vb+3}], v[{P+4}:{P+7}], v[{O}:{O+15}]")
    ex(8)
    pr(3)
    c.e("s_waitcnt lgkmcnt(2)")
    flush()
    c.e(f"v_mfma_f32_32x32x16_bf16 v[{O}:{O+15}], v[{Va}:{Va+3}], v[{P}:{P+3}], v[{O}:{O+15}]")
    c.e(f"s_mov_b64 exec, s[{sVM}:{sVM+1}]")
    c.e(f"ds_read_b128 v[{Vb}:{Vb+3}], v{vV} offset:{j*T + 640}")
    c.e(f"ds_read_b128 v[{Va}:{Va+3}], v{vV} offset:{(j+1)*T}")
    c.e("s_mov_b64 exec, -1")
    ex(12)

PSTR = 35840
S9 = 4*PSTR

PROW = 656

def final_prefetch(c, F):
    vo, vn, vq, vt = F['vo'], F['vn'], F['vq'], F['vt']
    c.e(f"s_lshl_b32 s{sT0}, s{sW}, 6")
    c.e(f"v_add_u32 v{vq}, s{sT0}, v0")
    c.e(f"v_mul_u32_u24 v{vn}, 3277, v{vq}")
    c.e(f"v_lshrrev_b32 v{vn}, 16, v{vn}")
    c.e(f"v_mul_u32_u24 v{vt}, 20, v{vn}")
    c.e(f"v_sub_u32 v{vq}, v{vq}, v{vt}")
    c.e(f"s_mul_i32 s{sT1}, s{sFBK}, 320")
    c.e(f"v_lshlrev_b32 v{vt}, 4, v{vq}")
    c.e(f"v_add_u32 v{vt}, s{sT1}, v{vt}")
    c.vmem(f"buffer_load_dwordx4 v[{F['br']}:{F['br']+3}], v{vt}, s[{S_B2}:{S_B2+3}], 0 offen", "fin")
    c.e(f"s_lshl_b32 s{sT2}, s{sTO}, 5")
    c.e(f"v_add_u32 v{vo}, s{sT2}, v{vn}")
    c.e(f"v_mul_u32_u24 v{vo}, 1280, v{vo}")
    c.e(f"v_add_u32 v{vo}, v{vo}, v{vt}")
    c.e(f"v_cmp_gt_u32 vcc, 32, v{vn}")
    c.e(f"v_mov_b32 v{vt}, 0x7ffffff0")
    c.nop(1)
    c.e(f"v_cndmask_b32 v{vo}, v{vt}, v{vo}, vcc")
    c.vmem(f"buffer_load_dwordx4 v[{F['xr']}:{F['xr']+3}], v{vo}, s[{S_X}:{S_X+3}], 0 offen", "fin")
    c.e(f"v_min_u32 v{vn}, 31, v{vn}")
    c.e(f"v_mul_u32_u24 v{vn}, {PROW}, v{vn}")
    c.e(f"v_lshl_add_u32 v{vn}, v{vq}, 5, v{vn}")

def final_regs(base):
    a = Alloc(base, NV)
    F = dict(vo=a.get(), vn=a.get(), vq=a.get(), vt=a.get(), xr=a.get(4, 4), br=a.get(4, 4), rd=[a.get(4, 4) for _ in range(8)])
    return F, a.hi

def final_epilogue(c, F):
    vn, vq, vt, rd = F['vn'], F['vq'], F['vt'], F['rd']
    c.e(f"v_add_u32 v{vq}, {2*PSTR}, v{vn}")
    for k in range(4):
        base = vn if k < 2 else vq
        c.e(f"ds_read_b128 v[{rd[2*k]}:{rd[2*k]+3}], v{base} offset:{(k&1)*PSTR}")
        c.e(f"ds_read_b128 v[{rd[2*k+1]}:{rd[2*k+1]+3}], v{base} offset:{(k&1)*PSTR + 16}")
    c.e("s_waitcnt vmcnt(0) lgkmcnt(0)")
    for hf in range(2):
        for r in range(4):
            c.e(f"v_add_f32 v{rd[hf]+r}, v{rd[hf]+r}, v{rd[2+hf]+r}")
            c.e(f"v_add_f32 v{rd[4+hf]+r}, v{rd[4+hf]+r}, v{rd[6+hf]+r}")
        for r in range(4): c.e(f"v_add_f32 v{rd[hf]+r}, v{rd[hf]+r}, v{rd[4+hf]+r}")
    for src in (F['xr'], F['br']):
        for k in range(8):
            d = rd[k >> 2] + (k & 3)
            if k & 1: c.e(f"v_and_b32 v{vt}, 0xffff0000, v{src+(k>>1)}")
            else: c.e(f"v_lshlrev_b32 v{vt}, 16, v{src+(k>>1)}")
            c.e(f"v_add_f32 v{d}, v{d}, v{vt}")
    o = rd[2]
    for p in range(4):
        d = rd[p >> 1] + 2*(p & 1)
        c.e(f"v_cvt_pk_bf16_f32 v{o+p}, v{d}, v{d+1}")
    c.e(f"buffer_store_dwordx4 v[{o}:{o+3}], v{F['vo']}, s[{S_OUT}:{S_OUT+3}], 0 offen sc0 sc1")

def gen_attn(c):
    a = Alloc(1, NV)
    vt, vt2, vn, vk = a.get(), a.get(), a.get(), a.get()
    vA, vB, vC = a.get(), a.get(), a.get()
    vL16 = a.get()
    vK0, vK1, vV = a.get(), a.get(), a.get()
    R = dict(S=[a.get(16, 4), a.get(16, 4)], P=a.get(8, 4), O=a.get(16, 4), K0=a.get(4, 4), K1=a.get(4, 4),
             Va=a.get(4, 4), Vb=a.get(4, 4), Q0=a.get(4, 4), Q1=a.get(4, 4), vK0=vK0, vK1=vK1, vV=vV)
    Q0, Q1, O, P = R['Q0'], R['Q1'], R['O'], R['P']
    c.e(f"s_lshr_b32 s{sT2}, s{sW}, 2")
    c.e(f"s_lshl_b32 s{sTT}, s{sRB}, 1")
    c.e(f"s_add_u32 s{sTT}, s{sTT}, s{sT2}")
    c.e(f"s_and_b32 s{sT2}, s{sW}, 3")
    c.e(f"s_lshl_b32 s{sHEAD}, s{sG}, 2")
    c.e(f"s_add_u32 s{sHEAD}, s{sHEAD}, s{sT2}")
    c.e(f"v_and_b32 v{vn}, 31, v0")
    c.e(f"v_lshrrev_b32 v{vt2}, 5, v0")
    c.e(f"s_mul_i32 s{sT0}, s{sHEAD}, 20")
    c.e(f"s_mul_i32 s{sT1}, s{sTT}, {40*1024}")
    c.e(f"v_lshlrev_b32 v{vk}, 2, v{vt2}")
    c.e(f"v_add_u32 v{vk}, s{sT0}, v{vk}")
    piece_addr(c, vA, vk, vn, vt, sT1)
    c.e(f"v_add_u32 v{vk}, 8, v{vk}")
    piece_addr(c, vB, vk, vn, vt, sT1)
    c.e(f"v_mov_b32 v{vk}, s{sT0}")
    c.e(f"v_add_u32 v{vk}, 16, v{vk}")
    piece_addr(c, vC, vk, vn, vt, sT1)
    c.e(f"s_mov_b32 s{sT2}, {QF}")
    c.vmem(f"buffer_load_dwordx2 v[{Q0}:{Q0+1}], v{vA}, s[{S_WS}:{S_WS+3}], s{sT2} offen", "q")
    c.vmem(f"buffer_load_dwordx2 v[{Q0+2}:{Q0+3}], v{vB}, s[{S_WS}:{S_WS+3}], s{sT2} offen", "q")
    c.vmem(f"buffer_load_dwordx2 v[{Q1}:{Q1+1}], v{vC}, s[{S_WS}:{S_WS+3}], s{sT2} offen", "q")
    c.e(f"v_lshlrev_b32 v{vL16}, 4, v0")
    def base_addrs():
        c.e(f"v_mov_b32 v{vK0}, v{vL16}")
        c.e(f"v_lshlrev_b32 v{vK1}, 3, v{vn}")
        c.e(f"v_add_u32 v{vK1}, 1024, v{vK1}")
        c.e(f"v_lshrrev_b32 v{vt2}, 5, v0")
        c.e(f"v_mul_u32_u24 v{vV}, 20, v{vt2}")
        c.e(f"v_add_u32 v{vV}, v{vV}, v{vn}")
        c.e(f"v_lshlrev_b32 v{vV}, 4, v{vV}")
        c.e(f"v_add_u32 v{vV}, 1280, v{vV}")
        for r in range(16): c.e(f"v_mov_b32 v{O+r}, 0")
        for r in range(8): c.e(f"v_mov_b32 v{P+r}, 0")
    base_addrs()
    c.e(f"s_mov_b32 s{sVM}, 0x000fffff")
    c.e(f"s_mov_b32 s{sVM+1}, 0x000fffff")
    c.e(f"s_mov_b32 s{sFB}, 0")
    c.e(f"v_mov_b32 v{R['K1']+2}, 0x3f803f80")
    c.e(f"v_mov_b32 v{R['K1']+3}, 0x00003f80")
    if 'k1z' in EXP:
        c.e(f"v_cmp_gt_u32 vcc, 32, v0")
        c.e(f"v_mov_b32 v{R['K1']}, 0"); c.e(f"v_mov_b32 v{R['K1']+1}, 0")
        c.e(f"v_cndmask_b32 v{R['K1']+2}, 0, v{R['K1']+2}, vcc")
        c.e(f"v_cndmask_b32 v{R['K1']+3}, 0, v{R['K1']+3}, vcc")
    c.e(f"v_cmp_eq_u32 vcc, 20, v{vn}")
    c.e(f"v_mov_b32 v{vt}, 0x3f803f80")
    c.nop(1)
    for r in range(4):
        c.e(f"v_cndmask_b32 v{R['Va']+r}, 0, v{vt}, vcc")
        c.e(f"v_cndmask_b32 v{R['Vb']+r}, 0, v{vt}, vcc")
    c.wait_vm("q")
    c.e(f"v_cmp_gt_u32 vcc, 32, v0")
    c.e(f"v_mov_b32 v{Q1+2}, 0")
    c.e(f"v_mov_b32 v{Q1+3}, 0")
    c.e(f"v_cndmask_b32 v{Q1}, 0, v{Q1}, vcc")
    c.e(f"v_cndmask_b32 v{Q1+1}, 0, v{Q1+1}, vcc")
    c.e("s_barrier")
    if 'clk' in EXP: c.stamp(2); c.stamp(3, real=True)
    elif 'tail' not in EXP: c.stamp(2)
    S0 = R['S'][0]
    c.e(f"ds_read_b128 v[{R['K0']}:{R['K0']+3}], v{vK0}")
    if 'k1z' in EXP: c.e("s_mov_b64 exec, 0xffffffff")
    c.e(f"ds_read_b64 v[{R['K1']}:{R['K1']+1}], v{vK1}")
    if 'k1z' in EXP: c.e("s_mov_b64 exec, -1")
    c.e("s_waitcnt lgkmcnt(0)")
    c.e(f"v_mfma_f32_32x32x16_bf16 v[{S0}:{S0+15}], v[{R['K0']}:{R['K0']+3}], v[{Q0}:{Q0+3}], 0")
    c.e(f"v_mfma_f32_32x32x16_bf16 v[{S0}:{S0+15}], v[{R['K1']}:{R['K1']+3}], v[{Q1}:{Q1+3}], v[{S0}:{S0+15}]")
    c.e(f"ds_read_b128 v[{R['K0']}:{R['K0']+3}], v{vK0} offset:2560")
    if 'k1z' in EXP: c.e("s_mov_b64 exec, 0xffffffff")
    c.e(f"ds_read_b64 v[{R['K1']}:{R['K1']+1}], v{vK1} offset:2560")
    if 'k1z' in EXP: c.e("s_mov_b64 exec, -1")
    c.e(f"s_mov_b64 exec, s[{sVM}:{sVM+1}]")
    c.e(f"ds_read_b128 v[{R['Vb']}:{R['Vb']+3}], v{vV}")
    c.e(f"ds_read_b128 v[{R['Va']}:{R['Va']+3}], v{vV}")
    c.e("s_mov_b64 exec, -1")
    c.e(f"s_mov_b32 s{sIT}, 0")
    c.nop(16)
    def loop(tag, pat):
        c.label(f"K2_LOOP{tag}")
        for j in range(4): attn_tile(c, R, j, pat)
        c.e(f"v_add_u32 v{vK0}, {4*2560}, v{vK0}")
        d, a_, b_ = R['pend']; c.e(f"v_cvt_pk_bf16_f32 v{d}, v{a_}, v{b_}"); R['pend'] = None
        c.e(f"v_add_u32 v{vK1}, {4*2560}, v{vK1}")
        c.e(f"v_add_u32 v{vV}, {4*2560}, v{vV}")
        c.e(f"s_add_u32 s{sIT}, s{sIT}, 1")
        c.e(f"s_cmp_eq_u32 s{sIT}, 2")
        c.e(f"s_cbranch_scc1 K2_BAR{tag}")
        c.e(f"s_cmp_lg_u32 s{sIT}, 14")
        c.e(f"s_cbranch_scc1 K2_NOBAR{tag}")
        c.e("s_waitcnt lgkmcnt(0)")
        c.label(f"K2_BAR{tag}")
        c.e("s_barrier")
        c.label(f"K2_NOBAR{tag}")
        c.e(f"s_cmp_lt_u32 s{sIT}, 16")
        c.e(f"s_cbranch_scc1 K2_LOOP{tag}")
    if 'sym' != EXP:
        m_ = re.search(r"asym=([0-9\-]{4})([0-9\-]{4})", EXP)
        pa, pb = m_.groups() if m_ else ('3--0', '2--1')
        c.e(f"s_cmp_ge_u32 s{sW}, 4")
        c.e("s_cbranch_scc1 K2_LOOPB")
        loop("A", pa)
        c.e("s_branch K2_LOOPX")
        loop("B", pb)
        c.label("K2_LOOPX")
    else:
        loop("", None)
    c.e("s_waitcnt lgkmcnt(0)")
    c.nop(2)
    c.e(f"v_mfma_f32_32x32x16_bf16 v[{O}:{O+15}], v[{R['Vb']}:{R['Vb']+3}], v[{P+4}:{P+7}], v[{O}:{O+15}]")
    c.nop(16)
    if 'clk' in EXP: c.stamp(4); c.stamp(5, real=True)
    elif 'tail' not in EXP: c.stamp(3)
    c.label("K2_LEXT")
    c.e(f"v_mov_b32 v{vt}, v{O+8}")
    c.e(f"v_mov_b32 v{vt2}, v{O+8}")
    c.nop(2)
    c.e(f"v_permlane32_swap_b32 v{vt}, v{vt2}")
    c.nop(2)
    c.e(f"v_cmp_gt_u32 vcc, 32, v0")
    c.nop(2)
    c.e(f"v_cndmask_b32 v{vt}, v{O+8}, v{vt2}, vcc")
    c.e(f"s_cmp_lg_u32 s{sFB}, 0")
    c.e("s_cbranch_scc1 K2_NORM")
    c.e(f"v_mov_b32 v{vk}, {fhex(2.0**-60)}")
    c.e(f"v_cmp_ge_f32 s[4:5], v{vt}, v{vk}")
    c.e(f"v_mov_b32 v{vk}, {fhex(2.0**120)}")
    c.e(f"v_cmp_le_f32 s[6:7], v{vt}, v{vk}")
    c.e("s_and_b64 s[4:5], s[4:5], s[6:7]")
    t_ = R['S'][1]
    c.e(f"v_add_f32 v{t_}, v{O}, v{O+1}")
    c.e(f"v_add_f32 v{t_+1}, v{O+2}, v{O+3}")
    for r in range(4, 12, 2):
        c.e(f"v_add_f32 v{t_}, v{t_}, v{O+r}")
        c.e(f"v_add_f32 v{t_+1}, v{t_+1}, v{O+r+1}")
    c.e(f"v_add_f32 v{t_}, v{t_}, v{t_+1}")
    c.e(f"v_mov_b32 v{vk}, 0x7f800000")
    c.e(f"v_cmp_lt_f32 s[6:7], |v{t_}|, v{vk}")
    c.e("s_and_b64 s[4:5], s[4:5], s[6:7]")
    if 'forcefb' in EXP: c.e("s_mov_b64 s[4:5], 0")
    c.e("s_cmp_eq_u64 s[4:5], -1")
    c.e("s_cbranch_scc1 K2_NORM")
    vM = vk
    K0, K1, Va, Vb = R['K0'], R['K1'], R['Va'], R['Vb']
    base_addrs()
    c.e(f"v_mov_b32 v{vM}, 0xff800000")
    c.e(f"s_mov_b32 s{sIT}, {KV}")
    def gl_k():
        c.e(f"buffer_load_dwordx4 v[{K0}:{K0+3}], v{vK0}, s[{S_WS}:{S_WS+3}], s{sIT} offen")
        c.e(f"buffer_load_dwordx2 v[{K1}:{K1+1}], v{vK1}, s[{S_WS}:{S_WS+3}], s{sIT} offen")
    def qk():
        c.e(f"v_mfma_f32_32x32x16_bf16 v[{S0}:{S0+15}], v[{K0}:{K0+3}], v[{Q0}:{Q0+3}], 0")
        c.e(f"v_mfma_f32_32x32x16_bf16 v[{S0}:{S0+15}], v[{K1}:{K1+3}], v[{Q1}:{Q1+3}], v[{S0}:{S0+15}]")
        c.nop(20)
    c.label("K2_FBL")
    gl_k()
    c.e("s_waitcnt vmcnt(0)")
    qk()
    for r in range(0, 16, 2):
        c.e(f"v_max3_f32 v{vM}, v{vM}, v{S0+r}, v{S0+r+1}")
    c.e(f"s_add_u32 s{sIT}, s{sIT}, 2560")
    c.e(f"s_cmp_lt_u32 s{sIT}, {KV + 64*2560}")
    c.e("s_cbranch_scc1 K2_FBL")
    c.e(f"v_mov_b32 v{vt}, v{vM}")
    c.nop(2)
    c.e(f"v_permlane32_swap_b32 v{vM}, v{vt}")
    c.nop(2)
    c.e(f"v_max_f32 v{vM}, v{vM}, v{vt}")
    t0, t1, t2 = R['S'][1], R['S'][1]+1, R['S'][1]+2
    c.e(f"v_sub_f32 v{vM}, 0, v{vM}")
    c.e(f"v_cvt_pk_bf16_f32 v{t0}, v{vM}, v{vM}")
    c.e(f"v_and_b32 v{t0}, 0xffff0000, v{t0}")
    c.e(f"v_sub_f32 v{vM}, v{vM}, v{t0}")
    c.e(f"v_cvt_pk_bf16_f32 v{t1}, v{vM}, v{vM}")
    c.e(f"v_and_b32 v{t1}, 0xffff0000, v{t1}")
    c.e(f"v_sub_f32 v{vM}, v{vM}, v{t1}")
    c.e(f"v_cvt_pk_bf16_f32 v{t0}, v{t0}, v{t1}")
    c.e(f"v_mov_b32 v{t2}, 0")
    c.e(f"v_cvt_pk_bf16_f32 v{t1}, v{vM}, v{t2}")
    c.e(f"v_cmp_gt_u32 vcc, 32, v0")
    c.nop(2)
    c.e(f"v_cndmask_b32 v{Q1+2}, 0, v{t0}, vcc")
    c.e(f"v_cndmask_b32 v{Q1+3}, 0, v{t1}, vcc")
    c.e(f"s_mov_b32 s{sIT}, {KV}")
    c.label("K2_FB2")
    gl_k()
    c.e(f"s_mov_b64 exec, s[{sVM}:{sVM+1}]")
    c.e(f"buffer_load_dwordx4 v[{Va}:{Va+3}], v{vV}, s[{S_WS}:{S_WS+3}], s{sIT} offen")
    c.e(f"buffer_load_dwordx4 v[{Vb}:{Vb+3}], v{vV}, s[{S_WS}:{S_WS+3}], s{sIT} offen offset:640")
    c.e("s_mov_b64 exec, -1")
    c.e("s_waitcnt vmcnt(0)")
    qk()
    for r in range(16): c.e(f"v_exp_f32 v{S0+r}, v{S0+r}")
    c.nop(2)
    for p in range(8): c.e(f"v_cvt_pk_bf16_f32 v{P+p}, v{S0+2*p}, v{S0+2*p+1}")
    c.nop(2)
    c.e(f"v_mfma_f32_32x32x16_bf16 v[{O}:{O+15}], v[{Va}:{Va+3}], v[{P}:{P+3}], v[{O}:{O+15}]")
    c.e(f"v_mfma_f32_32x32x16_bf16 v[{O}:{O+15}], v[{Vb}:{Vb+3}], v[{P+4}:{P+7}], v[{O}:{O+15}]")
    c.e(f"s_add_u32 s{sIT}, s{sIT}, 2560")
    c.e(f"s_cmp_lt_u32 s{sIT}, {KV + 64*2560}")
    c.e("s_cbranch_scc1 K2_FB2")
    c.nop(20)
    c.e(f"s_mov_b32 s{sFB}, 1")
    c.e("s_branch K2_LEXT")
    c.label("K2_NORM")
    c.e(f"v_rcp_f32 v{vt}, v{vt}")
    c.e(f"v_cmp_gt_u32 vcc, 32, v0")
    for r in range(12): c.e(f"v_mul_f32 v{O+r}, v{O+r}, v{vt}")
    for p in range(6): c.e(f"v_cvt_pk_bf16_f32 v{O+p}, v{O+2*p}, v{O+2*p+1}")
    c.e(f"s_mul_i32 s{sT2}, s{sTT}, {40*1024}")
    c.e(f"s_add_u32 s{sT2}, s{sT2}, {OF}")
    c.e(f"s_lshl_b32 s{sT0}, s{sHEAD}, 10")
    c.e(f"s_add_u32 s{sT0}, s{sT0}, s{sT2}")
    c.e(f"s_lshl_b32 s{sT1}, s{sHEAD}, 8")
    c.e(f"s_add_u32 s{sT1}, s{sT1}, s{sT2}")
    c.e(f"s_add_u32 s{sT1}, s{sT1}, 32768")
    c.e(f"v_lshlrev_b32 v{vt}, 3, v0")
    c.e(f"buffer_store_dwordx4 v[{O}:{O+3}], v{vL16}, s[{S_WS}:{S_WS+3}], s{sT0} offen sc1")
    c.e("s_and_saveexec_b64 s[4:5], vcc")
    c.e(f"buffer_store_dwordx2 v[{O+4}:{O+5}], v{vt}, s[{S_WS}:{S_WS+3}], s{sT1} offen sc1")
    c.e("s_mov_b64 exec, -1")
    if 'waitst' in EXP: c.e("s_waitcnt vmcnt(0)")
    c.e("s_barrier")
    if 'clk' not in EXP: c.stamp(4)
    c.e("s_setprio 0")
    final_prefetch(c, FIN)
    c.e("s_barrier")
    if 'tail' in EXP and 'clk' not in EXP: c.stamp(2)
    c.e("s_branch K2_FINAL")
    return a.hi

def gen_gemm(c):
    a = Alloc(1, NV)
    vt, vL16, vF = a.get(), a.get(), a.get()
    acc = [a.get(16, 4) for _ in range(5)]
    fA = [[a.get(4, 4) for _ in range(5)] for _ in range(2)]
    oB = [a.get(4, 4) for _ in range(10)]
    fB = oB[:2]
    c.e("s_setprio 3")
    c.e(f"v_lshlrev_b32 v{vL16}, 4, v0")
    c.e(f"s_lshl_b32 s{sT1}, s{sGW}, 10")
    def kv(i):
        c.e(f"s_add_u32 m0, s{sT1}, {4096*i}")
        c.e(f"s_add_u32 s{sT2}, s{sT1}, {KV + 4096*i}")
        c.vmem(f"buffer_load_dwordx4 v{vL16}, s[{S_WS}:{S_WS+3}], s{sT2} offen lds", f"kv{i}")
    NP = int(os.environ.get('NP', '7'))
    for i in range(NP): kv(i)
    for t in range(5):
        for r in range(16): c.e(f"v_mov_b32 v{acc[t]+r}, 0")
    c.wait_vm("kv6")
    c.e("s_barrier")
    for i in range(NP, 40): kv(i)
    c.wait_vm0()
    c.e("s_barrier")
    c.e(f"s_setprio {GP}")
    if 'tail' not in EXP: c.stamp(2)
    def loads(b, tag, nb=True, sc=""):
        if nb: c.vmem(f"buffer_load_dwordx4 v[{fB[b]}:{fB[b]+3}], v{vL16}, s[{S_WS}:{S_WS+3}], s{sB} offen", tag)
        for t in range(5):
            if t < 4: c.vmem(f"buffer_load_dwordx4 v[{fA[b][t]}:{fA[b][t]+3}], v{vL16}, s[{S_WS}:{S_WS+3}], s{sA} offen offset:{1024*t}", tag)
            else:
                c.e(f"s_add_u32 s{sAS}, s{sA}, 4096")
                c.vmem(f"buffer_load_dwordx4 v[{fA[b][t]}:{fA[b][t]+3}], v{vL16}, s[{S_WS}:{S_WS+3}], s{sAS} offen", tag)
        c.e(f"s_add_u32 s{sA}, s{sA}, 5120")
        if nb: c.e(f"s_add_u32 s{sB}, s{sB}, 1024")
    def mfmas(b, B=None):
        B = fB[b] if B is None else B
        for t in range(5):
            c.e(f"v_mfma_f32_32x32x16_bf16 v[{acc[t]}:{acc[t]+15}], v[{fA[b][t]}:{fA[b][t]+3}], v[{B}:{B+3}], v[{acc[t]}:{acc[t]+15}]")
    c.e(f"s_mul_i32 s{sA}, s{sFBK}, {108*5120}")
    c.e(f"s_mul_i32 s{sT0}, s{sGW}, {27*5120}")
    c.e(f"s_add_u32 s{sA}, s{sA}, s{sT0}")
    c.e(f"s_add_u32 s{sA}, s{sA}, {W2F}")
    c.e(f"s_mul_i32 s{sB}, s{sTO}, {108*1024}")
    c.e(f"s_mul_i32 s{sT0}, s{sGW}, {27*1024}")
    c.e(f"s_add_u32 s{sB}, s{sB}, s{sT0}")
    c.e(f"s_add_u32 s{sB}, s{sB}, {HF}")
    loads(0, "p")
    c.e(f"s_mov_b32 s{sIT}, {12 if 'noffn' in EXP else 0}")
    c.label("K2_GL")
    c.vm = ["a"]*6
    loads(1, "b"); c.wait_vm("a"); mfmas(0)
    loads(0, "a"); c.wait_vm("b"); mfmas(1)
    c.e(f"s_add_u32 s{sIT}, s{sIT}, 1")
    c.e(f"s_cmp_lt_u32 s{sIT}, 13")
    c.e("s_cbranch_scc1 K2_GL")
    c.wait_vm0(); mfmas(0)
    if 'tail' not in EXP: c.stamp(3)
    c.e(f"s_mul_i32 s{sA}, s{sFBK}, {40*5120}")
    c.e(f"s_mul_i32 s{sT0}, s{sGW}, {10*5120}")
    c.e(f"s_add_u32 s{sA}, s{sA}, s{sT0}")
    c.e(f"s_add_u32 s{sA}, s{sA}, {WOF}")
    loads(0, "w0", nb=False); loads(1, "w1", nb=False)
    c.e(f"v_lshlrev_b32 v{vt}, 7, v0")
    for i in range(5):
        c.e(f"s_add_u32 s{sAS}, s{sA}, {8192*i}")
        c.vmem(f"buffer_load_dword v{oB[2]+i}, v{vt}, s[{S_WS}:{S_WS+3}], s{sAS} offen", "warm")
    c.e(f"s_mul_i32 s{sPB}, s{sTO}, {40*1024}")
    c.e(f"s_add_u32 s{sPB}, s{sPB}, {OF}")
    c.e(f"s_lshl_b32 s{sT0}, s{sGW}, 13")
    c.e(f"s_add_u32 s{sB}, s{sPB}, s{sT0}")
    c.e(f"s_lshl_b32 s{sT0}, s{sGW}, 11")
    c.e(f"s_add_u32 s{sPB}, s{sPB}, s{sT0}")
    c.e(f"s_add_u32 s{sPB}, s{sPB}, 32768")
    c.e(f"s_mul_i32 s{sT1}, s{sGW}, {PSTR}")
    c.e(f"v_add_u32 v{vF}, s{sT1}, v{vL16}")
    vP = a.get(); vR = a.get(); vF9 = a.get()
    c.e(f"v_and_b32 v{vR}, 31, v0")
    c.e(f"v_lshlrev_b32 v{vR}, 3, v{vR}")
    c.e(f"v_lshrrev_b32 v{vP}, 5, v0")
    c.e(f"v_lshl_add_u32 v{vR}, v{vP}, 8, v{vR}")
    c.e(f"v_and_b32 v{vP}, 7, v0")
    c.e(f"v_lshlrev_b32 v{vP}, 8, v{vP}")
    c.e(f"v_lshrrev_b32 v{vt}, 3, v0")
    c.e(f"v_lshl_add_u32 v{vP}, v{vt}, 5, v{vP}")
    c.e("s_barrier")
    def wdma(i, dst, tag):
        c.e(f"s_add_u32 m0, s{sT1}, {dst}")
        c.e(f"s_add_u32 s{sT2}, s{sA}, {1024*i}")
        c.vmem(f"buffer_load_dwordx4 v{vL16}, s[{S_WS}:{S_WS+3}], s{sT2} offen lds", tag)
    for i in range(35): wdma(i, 1024*i, f"d{i//5 + 2}")
    if 'tail' in EXP: c.stamp(2)
    c.e("s_barrier")
    c.stamp(4)
    c.e("s_setprio 3")
    c.e(f"s_mul_i32 s{sT1}, s{sGW}, 5120")
    for i in range(35, 40): wdma(i, S9 + 1024*(i-35), "d9")
    c.e(f"v_add_u32 v{vF9}, s{sT1}, v{vL16}")
    c.e(f"v_add_u32 v{vF9}, {S9}, v{vF9}")
    def oloads():
        for i in range(8):
            q, r_ = divmod(i, 4)
            if r_ == 0 and q: c.e(f"s_add_u32 s{sAS}, s{sB}, 4096")
            sb = sB if q == 0 else sAS
            c.vmem(f"buffer_load_dwordx4 v[{oB[i]}:{oB[i]+3}], v{vL16}, s[{S_WS}:{S_WS+3}], s{sb} offen offset:{r_*1024} sc1", "o")
        for i in range(2):
            c.vmem(f"buffer_load_dwordx2 v[{oB[8+i]}:{oB[8+i]+1}], v{vR}, s[{S_WS}:{S_WS+3}], s{sPB} offen offset:{i*1024} sc1", "o")
            c.vmem(f"buffer_load_dwordx2 v[{oB[8+i]+2}:{oB[8+i]+3}], v{vR}, s[{S_WS}:{S_WS+3}], s{sPB} offen offset:{i*1024+512} sc1", "o")
    def ocheck():
        c.e(f"v_max_u32 v{vt}, v{oB[0]}, v{oB[0]+1}")
        regs = [oB[0]+2, oB[0]+3] + [oB[i]+r for i in range(1, 10) for r in range(4)]
        for k in range(0, len(regs), 2):
            c.e(f"v_max3_u32 v{vt}, v{vt}, v{regs[k]}, v{regs[k+1]}")
        c.e(f"v_cmp_eq_u32 vcc, -1, v{vt}")
        c.e("s_nop 1")
        c.e("s_cmp_eq_u64 vcc, 0")
    c.e(f"s_mov_b32 s{sSPIN}, 0")
    c.e("s_sleep %d" % int(re.search(r"slp=(\d+)", EXP).group(1) if 'slp=' in EXP else 4))
    c.label("K2_POLL")
    oloads()
    c.e("s_waitcnt vmcnt(0)")
    ocheck()
    c.e("s_cbranch_scc1 K2_GOT")
    c.e(f"s_add_u32 s{sSPIN}, s{sSPIN}, 1")
    c.e("s_sleep 2")
    c.e(f"s_cmp_lt_u32 s{sSPIN}, 0x40000")
    c.e("s_cbranch_scc1 K2_POLL")
    c.label("K2_GOT")
    c.vm = []
    c.stamp(5)
    def lreads(step):
        b = step & 1
        for t in range(5):
            if step < 9: c.lds(f"ds_read_b128 v[{fA[b][t]}:{fA[b][t]+3}], v{vF} offset:{((step-2)*5 + t)*1024}", f"r{step}")
            else: c.lds(f"ds_read_b128 v[{fA[b][t]}:{fA[b][t]+3}], v{vF9} offset:{t*1024}", f"r{step}")
    c.e(f"v_and_b32 v{vP}, 31, v0")
    c.e(f"v_mul_u32_u24 v{vP}, {PROW}, v{vP}")
    c.e(f"v_lshrrev_b32 v{vR}, 5, v0")
    c.e(f"v_lshl_add_u32 v{vP}, v{vR}, 4, v{vP}")
    c.e(f"s_mul_i32 s{sT0}, s{sGW}, {PSTR}")
    c.e(f"v_add_u32 v{vP}, s{sT0}, v{vP}")
    mfmas(0, oB[0]); lreads(2)
    mfmas(1, oB[1]); lreads(3)
    for i in range(2, 10):
        c.wait_lg(f"r{i}")
        mfmas(i & 1, oB[i])
        if i + 2 < 10: lreads(i + 2)
        if i == 3: final_prefetch(c, FING)
    if 'tail' in EXP: c.stamp(3)
    c.nop(16)
    for t in range(5):
        for j in range(4):
            c.e(f"ds_write_b128 v{vP}, v[{acc[t]+4*j}:{acc[t]+4*j+3}] offset:{(32*t + 8*j)*4}")
    c.e("s_waitcnt lgkmcnt(0)")
    c.e("s_barrier")
    return a.hi

FIN, FINHI = final_regs(124)
FING = FIN

def gen_k2f():
    c = Code()
    c.e("s_cmp_ge_u32 s2, 256")
    c.e("s_cbranch_scc1 K2_END")
    c.e("s_load_dwordx2 s[4:5], s[0:1], 96")
    c.e("s_load_dwordx2 s[6:7], s[0:1], 0")
    c.e("s_load_dwordx4 s[24:27], s[0:1], 72")
    c.e("v_lshrrev_b32 v1, 6, v0")
    c.e("v_and_b32 v0, 63, v0")
    c.e(f"v_readfirstlane_b32 s{sW}, v1")
    c.e(f"s_and_b32 s{sRB}, s2, 31")
    c.e(f"s_lshr_b32 s{sG}, s2, 5")
    c.e(f"s_lshr_b32 s{sT0}, s{sG}, 2")
    c.e(f"s_lshl_b32 s{sTO}, s{sRB}, 1")
    c.e(f"s_add_u32 s{sTO}, s{sTO}, s{sT0}")
    c.e(f"s_and_b32 s{sFBK}, s{sG}, 3")
    c.e(f"s_sub_u32 s{sGW}, s{sW}, 8")
    c.e("s_waitcnt lgkmcnt(0)")
    c.stamp(0, real=True); c.stamp(1)
    srd(c, S_WS, 4, 5, WS_USED)
    srd(c, S_X, 6, 7, M*D*2)
    srd(c, S_B2, 24, 25, D*2)
    srd(c, S_OUT, 26, 27, M*D*2)
    c.e(f"s_cmp_ge_u32 s{sW}, 8")
    c.e("s_cbranch_scc1 K2_GEMM")
    ca = Code(); h1 = gen_attn(ca); c.lines += ca.lines
    c.label("K2_GEMM")
    cg = Code(); h2 = gen_gemm(cg); c.lines += cg.lines
    c.label("K2_FINAL")
    final_epilogue(c, FIN)
    c.label("K2_DONE")
    c.finish(1, sW, S_WS)
    c.label("K2_END")
    c.e("s_endpgm")
    return c.text(), max(h1, h2, FINHI), K2_LDS
```

```python
from core import *
EXP = os.environ.get('EXP', '')

def trace(c, idx, vt):
    if 'trace' not in EXP: return
    c.e('s_memtime s[76:77]'); c.e('s_waitcnt lgkmcnt(0)'); c.lg = []
    c.e(f's_lshl_b32 s78, s{sW}, 7'); c.e(f's_add_u32 s78, s78, {TRC + 4*idx}')
    c.e(f'v_mov_b32 v{vt}, s78'); c.e(f'v_mov_b32 v{vt+1}, s76'); c.lds(f'ds_write_b32 v{vt}, v{vt+1}')

def trace_dyn(c, idx0, sreg, vt):
    if 'trace' not in EXP: return
    c.e('s_memtime s[76:77]'); c.e('s_waitcnt lgkmcnt(0)'); c.lg = []
    c.e(f's_lshl_b32 s78, s{sW}, 7'); c.e(f's_lshl_b32 s79, s{sreg}, 3'); c.e('s_add_u32 s78, s78, s79'); c.e(f's_add_u32 s78, s78, {TRC + 4*idx0}')
    c.e(f'v_mov_b32 v{vt}, s78'); c.e(f'v_mov_b32 v{vt+1}, s76'); c.e(f'ds_write_b32 v{vt}, v{vt+1}')

def trace_dump(c, vt):
    if 'trace' not in EXP: return
    c.e('s_waitcnt lgkmcnt(0)')
    c.e(f's_lshl_b32 s78, s{sW}, 7'); c.e(f'v_lshlrev_b32 v{vt}, 2, v0'); c.e(f'v_add_u32 v{vt+1}, s78, v{vt}'); c.e(f'v_add_u32 v{vt+1}, {TRC}, v{vt+1}')
    c.e(f'ds_read_b32 v{vt+1}, v{vt+1}'); c.e('s_waitcnt lgkmcnt(0)')
    c.e(f's_lshl_b32 s79, s2, 4'); c.e(f's_add_u32 s79, s79, s{sW}'); c.e('s_lshl_b32 s79, s79, 7'); c.e(f's_add_u32 s79, s79, {STAMP + 2*262144}')
    c.e('s_mov_b64 exec, 0xffffffff'); c.e(f'buffer_store_dword v{vt+1}, v{vt}, s[{S_O}:{S_O+3}], s79 offen'); c.e('s_mov_b64 exec, -1')

DIRECT = 'service' not in EXP
PRIO_C = int(os.environ.get('PC', '2')); PRIO_X = int(os.environ.get('PX', '0'))
SLOT = 36864
XOFF = 20480
CSP  = 4*SLOT
ST   = CSP + 5120
RS   = ST + 2048
TRC  = RS + 512
K1_LDS = RS + 512 + (2048 if 'trace' in EXP else 0)
BAUG = 3*SLOT
AAUG = BAUG + 4096
OUTB = AAUG + 5120
EPS = 1e-5
QSCALE = (20 ** -0.5) * math.log2(math.e)

S_X, S_W, S_O, S_B, S_SJ, S_SO, S_D, S_D2 = 8, 12, 16, 20, 44, 48, 96, 4
sW, sTW, sFH, sTB, sFT, sSTR, sWOFF, sXOFF, sW1K, sW2K, sOUT, sISH, sT0, sT1, sT2, sT3, sKB, sCH, sXB, sMASK, sSEG, sSLD, sKB2, sCOL = range(52, 76)

def k1_prologue(c):
    c.e("s_cmp_ge_u32 s2, 256")
    c.e("s_cbranch_scc1 K1_END")
    if 'notouch' not in EXP:
        c.e("s_getpc_b64 s[4:5]")
        c.label("K1_PC")
        c.e("v_lshlrev_b32 v1, 7, v0")
        c.e(f"s_sub_u32 s4, s4, K1_PC-k1_kernel")
        c.e(f"s_subb_u32 s5, s5, 0")
        c.e(f"s_and_b32 s5, s5, 0xffff")
        c.e(f"s_mov_b32 s6, CODE_END-k1_kernel")
        c.e(f"s_mov_b32 s7, 0x20000")
        c.e(f"buffer_load_dword v167, v1, s[4:7], 0 offen")
    c.e("s_load_dwordx4 s[24:27], s[0:1], 0")
    c.e("s_load_dwordx4 s[36:39], s[0:1], 48")
    c.e("s_load_dwordx4 s[28:31], s[0:1], 16")
    c.e("s_load_dwordx2 s[32:33], s[0:1], 32")
    c.e("s_load_dwordx2 s[40:41], s[0:1], 64")
    c.e("s_load_dwordx4 s[76:79], s[0:1], 88")
    c.e("v_lshrrev_b32 v1, 6, v0")
    c.e("v_and_b32 v0, 63, v0")
    c.e(f"v_readfirstlane_b32 s{sW}, v1")
    c.e("s_and_b32 s3, s2, 7")
    c.e(f"s_lshr_b32 s{sT0}, s2, 3")
    c.e(f"s_and_b32 s{sTB}, s3, 1")
    c.e(f"s_lshl_b32 s{sTB}, s{sTB}, 3")
    c.e(f"s_and_b32 s{sT1}, s{sT0}, 7")
    c.e(f"s_add_u32 s{sTB}, s{sTB}, s{sT1}")
    c.e(f"s_lshr_b32 s{sFT}, s3, 1")
    c.e(f"s_lshl_b32 s{sFT}, s{sFT}, 2")
    c.e(f"s_lshr_b32 s{sT1}, s{sT0}, 3")
    c.e(f"s_add_u32 s{sFT}, s{sFT}, s{sT1}")
    c.e(f"s_sub_u32 s{sFT}, s{sFT}, 1")
    c.e(f"s_min_u32 s{sFT}, s{sFT}, 15")
    c.e(f"s_and_b32 s{sTW}, s{sW}, 3")
    c.e(f"s_lshr_b32 s{sFH}, s{sW}, 2")
    c.e(f"s_cmp_lt_u32 s{sFT}, 4")
    c.e(f"s_cselect_b32 s{sISH}, 0, 1")
    c.e(f"s_cselect_b32 s{sCOL}, 0, 4")
    c.e(f"s_movk_i32 s{sSTR}, 3456")
    c.e(f"s_cselect_b32 s{sSTR}, 1280, s{sSTR}")
    c.e(f"s_sub_u32 s{sCOL}, s{sFT}, s{sCOL}")
    c.e(f"s_mul_i32 s{sKB2}, s{sCOL}, 10")
    c.e(f"s_mul_i32 s{sCOL}, s{sCOL}, 320")

def wait_args(c):
    c.e("s_waitcnt lgkmcnt(0)")
    c.e("s_mov_b32 s42, s78"); c.e("s_mov_b32 s43, s79")
    c.e("s_mov_b32 s6, s76"); c.e("s_mov_b32 s7, s77")
    c.stamp(0, real=True)
    c.stamp(1)

def srd_w(c):
    c.e(f"s_cmp_eq_u32 s{sISH}, 0")
    c.e(f"s_cselect_b32 s{S_W}, s26, s36")
    c.e(f"s_cselect_b32 s{S_W+1}, s27, s37")
    c.e(f"s_mov_b32 s{S_W+2}, {640*1728*2}")
    c.e(f"s_cselect_b32 s{S_W+2}, {640*640*2}, s{S_W+2}")
    c.e(f"s_add_u32 s{S_W}, s{S_W}, s{sCOL}")
    c.e(f"s_addc_u32 s{S_W+1}, s{S_W+1}, 0")
    c.e(f"s_and_b32 s{S_W+1}, s{S_W+1}, 0xffff")
    c.e(f"s_sub_u32 s{S_W+2}, s{S_W+2}, s{sCOL}")
    c.e(f"s_mov_b32 s{S_W+3}, 0x20000")

def side_job_setup(c):
    c.e(f"s_mov_b32 s{sSEG}, 5120")
    c.e(f"s_sub_u32 s5, s2, 108")
    c.e(f"s_cmp_lt_u32 s5, 108")
    c.e(f"s_cselect_b32 s{sT0}, s40, s32")
    c.e(f"s_cselect_b32 s{sT1}, s41, s33")
    c.e(f"s_cselect_b32 s{sKB}, s5, 0")
    c.e(f"s_mov_b32 s{sT2}, {108*5120}")
    c.e(f"s_mov_b32 s{sT3}, {W2F}")
    c.e(f"s_mul_i32 s3, s{sKB}, {16*1280}")
    c.e(f"s_cbranch_scc1 K1_SJ1")
    c.e(f"s_mov_b32 s{sT2}, {40*5120}")
    c.e(f"s_mov_b32 s{sT3}, {WOF}")
    c.e(f"s_sub_u32 s{sKB}, s5, 108")
    c.e(f"s_mul_i32 s3, s{sKB}, 26")
    c.e(f"s_lshr_b32 s3, s3, 8")
    c.e(f"s_mul_i32 s4, s3, 10")
    c.e(f"s_sub_u32 s4, s{sKB}, s4")
    c.e(f"s_cmp_lt_u32 s4, 8")
    c.e(f"s_cbranch_scc0 K1_SJR")
    c.e(f"s_lshl_b32 s3, s3, 3")
    c.e(f"s_add_u32 s3, s3, s4")
    c.e(f"s_mul_i32 s3, s3, {20*1280}")
    c.e(f"s_branch K1_SJ1")
    c.label("K1_SJR")
    c.e(f"s_lshl_b32 s3, s3, 1")
    c.e(f"s_add_u32 s3, s3, s4")
    c.e(f"s_sub_u32 s3, s3, 8")
    c.e(f"s_mul_i32 s3, s3, {80*1280}")
    c.e(f"s_add_u32 s3, s3, {16*1280}")
    c.e(f"s_mov_b32 s{sSEG}, {20*1280}")
    c.label("K1_SJ1")
    c.e(f"s_add_u32 s{S_SJ}, s{sT0}, s3")
    c.e(f"s_addc_u32 s{S_SJ+1}, s{sT1}, 0")
    c.e(f"s_and_b32 s{S_SJ+1}, s{S_SJ+1}, 0xffff")
    c.e(f"s_mul_i32 s4, s{sSEG}, 3")
    c.e(f"s_add_u32 s4, s4, 5120")
    c.e(f"s_cmp_lt_u32 s5, 148")
    c.e(f"s_cselect_b32 s{S_SJ+2}, s4, 0")
    c.e(f"s_cselect_b32 s{S_SO+2}, {WS_USED}, 0")
    c.e(f"s_mov_b32 s{S_SJ+3}, 0x20000")
    c.e(f"s_mov_b32 s{S_SO}, s42")
    c.e(f"s_and_b32 s{S_SO+1}, s43, 0xffff")
    c.e(f"s_mov_b32 s{S_SO+3}, 0x20000")
    c.e(f"s_mul_i32 s3, s{sKB}, 5120")
    c.e(f"s_add_u32 s{sT3}, s{sT3}, s3")

def x_dma_addr(c, vXa, vXb, vt):
    c.e(f"s_lshl_b32 s{sT0}, s{sTB}, 7")
    c.e(f"s_lshl_b32 s{sT1}, s{sTW}, 5")
    c.e(f"s_add_u32 s{sT0}, s{sT0}, s{sT1}")
    c.e(f"v_lshrrev_b32 v{vt}, 3, v0")
    c.e(f"v_add_u32 v{vt}, s{sT0}, v{vt}")
    c.e(f"v_mul_u32_u24 v{vXa}, 1280, v{vt}")
    c.e(f"v_and_b32 v{vt}, 7, v0")
    c.e(f"v_lshrrev_b32 v{vXb}, 4, v0")
    c.e(f"v_xor_b32 v{vt}, v{vt}, v{vXb}")
    c.e(f"v_lshlrev_b32 v{vt}, 4, v{vt}")
    c.e(f"v_xor_b32 v{vXb}, 64, v{vt}")
    c.e(f"v_add_u32 v{vXb}, v{vXa}, v{vXb}")
    c.e(f"v_add_u32 v{vXb}, 10240, v{vXb}")
    c.e(f"v_add_u32 v{vXa}, v{vXa}, v{vt}")

def x_read_addr(c, vRX, vt, vt2):
    c.e(f"v_and_b32 v{vt}, 31, v0")
    c.e(f"v_bfe_u32 v{vt2}, v0, 1, 3")
    c.e(f"v_lshrrev_b32 v{vRX}, 5, v0")
    c.e(f"v_xor_b32 v{vt2}, v{vt2}, v{vRX}")
    c.e(f"v_lshlrev_b32 v{vt2}, 4, v{vt2}")
    c.e(f"s_lshl_b32 s{sT0}, s{sTW}, 5")
    c.e(f"v_add_u32 v{vt}, s{sT0}, v{vt}")
    c.e(f"v_lshlrev_b32 v{vt}, 7, v{vt}")
    c.e(f"v_add_u32 v{vt}, v{vt}, v{vt2}")
    c.e(f"v_add_u32 v{vRX}, {XOFF}, v{vt}")
    for k in range(1, 4):
        c.e(f"v_xor_b32 v{vRX+k}, {32*k}, v{vRX}")
    for k in range(4):
        c.e(f"v_add_u32 v{vRX+4+k}, {2*SLOT}, v{vRX+k}")

def tr_addr(c, vd, rowstride, hmul, vt):
    c.e(f"v_lshrrev_b32 v{vd}, 5, v0")
    c.e(f"v_mul_u32_u24 v{vd}, {hmul}, v{vd}")
    c.e(f"v_bfe_u32 v{vt}, v0, 2, 2")
    c.e(f"v_add_u32 v{vd}, v{vd}, v{vt}")
    c.e(f"v_mul_u32_u24 v{vd}, {rowstride}, v{vd}")
    c.e(f"v_bfe_u32 v{vt}, v0, 4, 1")
    c.e(f"v_lshl_add_u32 v{vd}, v{vt}, 5, v{vd}")
    c.e(f"v_and_b32 v{vt}, 3, v0")
    c.e(f"v_lshl_add_u32 v{vd}, v{vt}, 3, v{vd}")

def x_dma(c, vXa, vXb, chunk, tag):
    slot = chunk % 4
    c.e(f"s_lshl_b32 s{sXB}, s{sCH}, 7")
    for i in range(4):
        c.e(f"s_add_u32 m0, s{sW2K}, {slot*SLOT + XOFF + 1024*i}")
        c.e(f"s_add_u32 s{sXOFF}, s{sXB}, {(i >> 1)*16*1280}")
        c.vmem(f"buffer_load_dwordx4 v{vXb if i & 1 else vXa}, s[{S_X}:{S_X+3}], s{sXOFF} offen lds", tag)
    c.e(f"s_add_u32 s{sCH}, s{sCH}, 1")
    c.e(f"s_cmp_eq_u32 s{sCH}, 10")
    c.e(f"s_cselect_b32 s{sCH}, 0, s{sCH}")

def split_hi_lo(c, val, hi, lo, tmp):
    c.e(f"v_cvt_pk_bf16_f32 v{tmp}, v{val}, v{val}")
    c.e(f"v_and_b32 v{hi}, 0xffff0000, v{tmp}")
    c.e(f"v_sub_f32 v{lo}, v{val}, v{hi}")

def token_stats(c, vS, vQ, va, vb, vc_, vd):
    c.e(f"v_add_f32 v{vS}, v{vS}, v{vS+1}")
    c.e(f"v_add_f32 v{vQ}, v{vQ}, v{vQ+1}")
    c.e(f"v_mov_b32 v{va}, v{vS}")
    c.e(f"v_mov_b32 v{vb}, v{vQ}")
    c.nop(2)
    c.e(f"v_permlane32_swap_b32 v{vS}, v{va}")
    c.e(f"v_permlane32_swap_b32 v{vQ}, v{vb}")
    c.nop(2)
    c.e(f"v_add_f32 v{vS}, v{vS}, v{va}")
    c.e(f"v_add_f32 v{vQ}, v{vQ}, v{vb}")
    c.e(f"v_mul_f32 v{va}, {fhex(1.0/640)}, v{vS}")
    c.e(f"v_mul_f32 v{vQ}, {fhex(1.0/640)}, v{vQ}")
    c.e(f"v_fma_f32 v{vQ}, -v{va}, v{va}, v{vQ}")
    c.e(f"v_max_f32 v{vQ}, 0, v{vQ}")
    c.e(f"v_add_f32 v{vQ}, {fhex(EPS)}, v{vQ}")
    c.e(f"v_rsq_f32 v{vb}, v{vQ}")
    c.nop(1)
    c.e(f"v_mul_f32 v{vc_}, v{vQ}, v{vb}")

def build_Baug(c, vB, vmean, vstd, t0, t1, t2, t3):
    c.e(f"v_sub_f32 v{t0}, 0, v{vmean}")
    split_hi_lo(c, t0, t1, t2, t3)
    c.e(f"v_cvt_pk_bf16_f32 v{vB}, v{t1}, v{t2}")
    split_hi_lo(c, vstd, t0, t2, t3)
    c.e(f"v_cvt_pk_bf16_f32 v{vB+1}, v{t1}, v{t0}")
    c.e(f"v_mov_b32 v{vB+3}, 0")
    c.e(f"v_cvt_pk_bf16_f32 v{vB+2}, v{t2}, v{vB+3}")

def build_Aaug(c, vA, vcs, vbias, t0, t1, t2):
    c.e(f"v_cvt_pk_bf16_f32 v{vA}, v{vcs}, v{vcs}")
    c.e(f"v_and_b32 v{t0}, 0xffff0000, v{vA}")
    c.e(f"v_sub_f32 v{t1}, v{vcs}, v{t0}")
    c.e(f"v_cvt_pk_bf16_f32 v{vA+1}, v{t1}, v{vbias}")
    c.e(f"v_mov_b32 v{vA+3}, 0")
    c.e(f"v_cvt_pk_bf16_f32 v{vA+2}, v{vbias}, v{vA+3}")

def o_fill(c, r4, vaddr, tag):
    c.e(f"s_mul_i32 s{sT0}, s2, 10240")
    c.e(f"s_lshl_b32 s{sT1}, s{sTW}, 10")
    c.e(f"s_add_u32 s{sT0}, s{sT0}, s{sT1}")
    c.e(f"s_add_u32 s{sT0}, s{sT0}, {OF}")
    for r in range(4): c.e(f"v_mov_b32 v{r4+r}, -1")
    c.e(f"v_lshlrev_b32 v{vaddr}, 4, v0")
    c.e(f"buffer_store_dwordx4 v[{r4}:{r4+3}], v{vaddr}, s[{S_O}:{S_O+3}], s{sT0} offen sc0 sc1")
    c.e(f"s_add_u32 s{sT0}, s{sT0}, 4096")
    c.e(f"buffer_store_dwordx4 v[{r4}:{r4+3}], v{vaddr}, s[{S_O}:{S_O+3}], s{sT0} offen sc0 sc1")
    c.e(f"s_cmp_ge_u32 s{sTW}, 2")
    c.e(f"s_cbranch_scc1 K1_NF{tag}")
    c.e(f"s_add_u32 s{sT0}, s{sT0}, 4096")
    c.e(f"buffer_store_dwordx4 v[{r4}:{r4+3}], v{vaddr}, s[{S_O}:{S_O+3}], s{sT0} offen sc0 sc1")
    c.label(f"K1_NF{tag}")

def k1_compute(c):
    tiles = [0, 1, 2, 3, 4]; nt = 5
    L = "K1C"
    a = Alloc(1, 168)
    vt, vt2 = a.get(), a.get()
    vRW = a.get(2)
    vRX = a.get(8)
    vL16 = a.get()
    acc = [a.get(16, 4) for _ in range(nt)]
    fW = [[a.get(4, 4) for _ in range(nt)] for _ in range(2)]
    fX = [a.get(4, 4) for _ in range(2)]
    c.e(f"s_setprio {PRIO_C}")
    wait_args(c)
    srd(c, S_O, 42, 43, WS_USED)
    if DIRECT:
        c.e(f"s_cmp_eq_u32 s{sISH}, 0")
        c.e(f"s_cselect_b32 s{sT0}, 40, 108")
        c.e(f"s_mov_b32 s{sT1}, {HF}")
        c.e(f"s_cselect_b32 s{sT1}, {QF}, s{sT1}")
        c.e(f"s_lshl_b32 s3, s{sTB}, 2")
        c.e(f"s_add_u32 s3, s3, s{sTW}")
        c.e(f"s_mul_i32 s3, s3, s{sT0}")
        c.e(f"s_add_u32 s{sOUT}, s{sKB2}, s3")
        c.e(f"s_lshl_b32 s{sOUT}, s{sOUT}, 10")
        c.e(f"s_add_u32 s{sOUT}, s{sOUT}, s{sT1}")
    c.e(f"v_lshlrev_b32 v{vL16}, 4, v0")
    tr_addr(c, vRW, 320, 8, vt)
    x_read_addr(c, vRX, vt, vt2)
    vN = a.get(2)
    c.e(f"v_mov_b32 v{vRW+1}, v{vRW}")
    for k in range(4): c.e(f"v_mov_b32 v{vRX+4+k}, v{vRX+k}")
    for t in range(nt):
        for i in range(16): c.e(f"v_mov_b32 v{acc[t]+i}, 0")
    def rd_list(sp, b, nxt=False):
        aw = vN if nxt else vRW+1
        ax = vN+1 if nxt else vRX+4+sp
        L_ = [f"ds_read_b128 v[{fX[b]}:{fX[b]+3}], v{ax}"]
        for i, t in enumerate(tiles):
            off = sp*5120 + 64*t
            L_.append(f"ds_read_b64_tr_b16 v[{fW[b][i]}:{fW[b][i]+1}], v{aw} offset:{off}")
            L_.append(f"ds_read_b64_tr_b16 v[{fW[b][i]+2}:{fW[b][i]+3}], v{aw} offset:{off+1280}")
        return L_
    def kstep(sp, rd, barrier=False, extra=()):
        b = sp & 1
        c.e("s_waitcnt lgkmcnt(0)")
        if barrier:
            trace_dyn(c, 2, sCH, vt)
            c.e("s_barrier")
            trace_dyn(c, 3, sCH, vt)
        cnt = [4, 4, 3, 0, 0]; extra = list(extra)
        for i in range(nt):
            c.e(f"v_mfma_f32_32x32x16_bf16 v[{acc[i]}:{acc[i]+15}], v[{fW[b][i]}:{fW[b][i]+3}], v[{fX[b]}:{fX[b]+3}], v[{acc[i]}:{acc[i]+15}]")
            for r_ in rd[:cnt[i]]: c.e(r_)
            rd = rd[cnt[i]:]
            if i == 3:
                for e_ in extra: c.e(e_)
    c.e(f"s_mov_b32 s{sWOFF}, {SLOT}")
    c.e(f"s_mov_b32 s{sCH}, 0")
    trace(c, 0, vt)
    c.e("s_barrier")
    trace(c, 1, vt)
    c.stamp(2)
    for r_ in rd_list(0, 0): c.e(r_)
    c.label("K1C_LOOP")
    kstep(0, rd_list(1, 1), extra=[f"v_add_u32 v{vN}, s{sWOFF}, v{vRW}", f"v_add_u32 v{vN+1}, s{sWOFF}, v{vRX}"])
    kstep(1, rd_list(2, 0))
    kstep(2, rd_list(3, 1))
    kstep(3, rd_list(0, 0, nxt=True), barrier=True,
          extra=[f"v_add_u32 v{vRW+1}, s{sWOFF}, v{vRW}"] + [f"v_add_u32 v{vRX+4+k}, s{sWOFF}, v{vRX+k}" for k in range(4)])
    c.e(f"s_add_u32 s{sWOFF}, s{sWOFF}, {SLOT}")
    c.e(f"s_cmp_eq_u32 s{sWOFF}, {4*SLOT}")
    c.e(f"s_cselect_b32 s{sWOFF}, 0, s{sWOFF}")
    c.e(f"s_add_u32 s{sCH}, s{sCH}, 1")
    c.e(f"s_cmp_lt_u32 s{sCH}, 9")
    c.e("s_cbranch_scc1 K1C_LOOP")
    kstep(0, rd_list(1, 1)); kstep(1, rd_list(2, 0)); kstep(2, rd_list(3, 1))
    c.e(f"v_lshlrev_b32 v{vt}, 4, v0")
    c.e(f"v_and_b32 v{vt2}, 31, v0")
    c.e(f"s_lshl_b32 s{sT0}, s{sTW}, 5")
    c.e(f"v_add_u32 v{vt2}, s{sT0}, v{vt2}")
    c.e(f"v_lshlrev_b32 v{vt2}, 4, v{vt2}")
    c.e(f"v_add_u32 v{vt2}, {ST}, v{vt2}")
    c.e(f"v_add_u32 v{vt}, {BAUG}, v{vt}")
    kstep(3, [], barrier=True)
    c.lg = []
    c.stamp(3)
    stt = a.get(4, 4)
    c.e("s_barrier")
    vB = fX[0]
    c.e(f"s_lshl_b32 s{sT0}, s{sTW}, 10")
    c.e(f"v_add_u32 v{vN}, s{sT0}, v{vt}")
    c.e(f"ds_read_b128 v[{vB}:{vB+3}], v{vN}")
    for i in range(nt):
        c.e(f"ds_read_b128 v[{fW[0][i]}:{fW[0][i]+3}], v{vt} offset:{4096 + 1024*i}")
    c.e(f"ds_read_b128 v[{stt}:{stt+3}], v{vt2}")
    c.e(f"s_lshl_b32 s{sT0}, s{sTW}, 11")
    c.e(f"v_add_u32 v{vN+1}, s{sT0}, v{vL16}")
    c.e(f"v_add_u32 v{vN+1}, {OUTB}, v{vN+1}")
    c.e("s_waitcnt lgkmcnt(0)")
    for i in range(nt):
        c.e(f"v_mfma_f32_32x32x16_bf16 v[{acc[i]}:{acc[i]+15}], v[{fW[0][i]}:{fW[0][i]+3}], v[{vB}:{vB+3}], v[{acc[i]}:{acc[i]+15}]")
    def publish(A, t):
        if DIRECT:
            c.e(f"s_add_u32 s{sT0}, s{sOUT}, {2048*t}")
            c.e(f"buffer_store_dwordx4 v[{A}:{A+3}], v{vL16}, s[{S_O}:{S_O+3}], s{sT0} offen sc0 sc1")
            c.e(f"buffer_store_dwordx4 v[{A+4}:{A+7}], v{vL16}, s[{S_O}:{S_O+3}], s{sT0} offen offset:1024 sc0 sc1")
            return
        c.e(f"ds_write_b128 v{vN+1}, v[{A}:{A+3}] offset:{(t&1)*8192}")
        c.e(f"ds_write_b128 v{vN+1}, v[{A+4}:{A+7}] offset:{(t&1)*8192 + 1024}")
        c.e("s_waitcnt lgkmcnt(0)")
        c.e("s_barrier")
    F1 = fW[1]
    rs = F1[0]; sd = F1[0] + 2; k1p = F1[1]; k2p = F1[1] + 2
    c1 = -2*math.sqrt(2/math.pi)*math.log2(math.e); c2 = c1*0.044715
    c.e(f"s_cmp_eq_u32 s{sISH}, 0")
    c.e(f"s_cbranch_scc0 {L}_H")
    c.e(f"v_mul_f32 v{rs}, {fhex(QSCALE)}, v{stt+1}")
    c.e(f"v_mov_b32 v{rs+1}, v{rs}")
    c.nop(12)
    for i, t in enumerate(tiles):
        A = acc[i]
        for p in range(8):
            c.e(f"v_pk_mul_f32 v[{A+2*p}:{A+2*p+1}], v[{A+2*p}:{A+2*p+1}], v[{rs}:{rs+1}]")
        for p in range(8):
            c.e(f"v_cvt_pk_bf16_f32 v{A+p}, v{A+2*p}, v{A+2*p+1}")
        publish(A, t)
    c.stamp(4)
    c.finish(0, sW, S_O)
    c.label(f"{L}_H")
    c.stamp(5)
    r_ = stt + 1
    c.e(f"v_mul_f32 v{k1p}, {fhex(c1)}, v{r_}")
    c.e(f"v_mul_f32 v{k2p}, v{r_}, v{r_}")
    c.e(f"v_mul_f32 v{k2p}, v{k2p}, v{r_}")
    c.e(f"v_mul_f32 v{k2p}, {fhex(c2)}, v{k2p}")
    c.e(f"v_mov_b32 v{k1p+1}, v{k1p}")
    c.e(f"v_mov_b32 v{k2p+1}, v{k2p}")
    c.e(f"v_mov_b32 v{sd}, v{stt+2}")
    c.e(f"v_mov_b32 v{sd+1}, v{stt+2}")
    c.nop(8)
    g = [F1[2], F1[3]]
    def gelu_stage(A, q, G):
        P = [A+4*q, A+4*q+2]
        return [[f"v_pk_mul_f32 v[{G+2*u}:{G+2*u+1}], v[{z}:{z+1}], v[{z}:{z+1}]" for u, z in enumerate(P)],
                [f"v_pk_fma_f32 v[{G+2*u}:{G+2*u+1}], v[{G+2*u}:{G+2*u+1}], v[{k2p}:{k2p+1}], v[{k1p}:{k1p+1}]" for u, z in enumerate(P)],
                [f"v_pk_mul_f32 v[{G+2*u}:{G+2*u+1}], v[{G+2*u}:{G+2*u+1}], v[{z}:{z+1}]" for u, z in enumerate(P)],
                [f"v_exp_f32 v{G+u}, v{G+u}" for u in range(4)],
                [f"v_pk_fma_f32 v[{G+2*u}:{G+2*u+1}], v[{G+2*u}:{G+2*u+1}], v[{sd}:{sd+1}], v[{sd}:{sd+1}]" for u in range(2)],
                [f"v_rcp_f32 v{G+u}, v{G+u}" for u in range(4)],
                [f"v_pk_mul_f32 v[{z}:{z+1}], v[{z}:{z+1}], v[{G+2*u}:{G+2*u+1}]" for u, z in enumerate(P)],
                [f"v_cvt_pk_bf16_f32 v{A+2*q+u}, v{z}, v{z+1}" for u, z in enumerate(P)]]
    for i, t in enumerate(tiles):
        A = acc[i]
        if t == 4:
            c.e(f"s_cmp_eq_u32 s{sFT}, 14")
            c.e(f"s_cbranch_scc1 {L}_done")
        for q2 in range(2):
            X = gelu_stage(A, 2*q2, g[0]); Y = gelu_stage(A, 2*q2+1, g[1])
            for st in range(8):
                for x_ in X[st]: c.e(x_)
                for y_ in Y[st]: c.e(y_)
        publish(A, t)
    c.label(f"{L}_done")
    c.stamp(4)
    c.finish(0, sW, S_O)
    return a.hi

CHK = int(os.environ.get('CHK', '8'))
NAUX = int(os.environ.get('NAUX', '3'))
PL = int(os.environ.get('PL', '1'))
def k1_aux(c):
    a = Alloc(1, 168)
    vt, vt2 = a.get(), a.get()
    vRW = a.get(2)
    vU = a.get(10); vZ = a.get(); vA = a.get(); vG = a.get()
    vCS = [a.get() for _ in range(5)]; vC2 = [a.get() for _ in range(5)]
    stt = a.get(8, 4)
    fW = [a.get(4, 4) for _ in range(5)]
    c.e(f"s_mov_b32 s{sMASK}, 0xffff0000")
    c.e(f"s_setprio {PRIO_X}")
    wait_args(c)
    srd(c, S_O, 42, 43, WS_USED)
    srd(c, S_D, 6, 7, 256)
    c.e(f"s_add_u32 s{S_B}, s38, s{sCOL}")
    c.e(f"s_addc_u32 s{S_B+1}, s39, 0")
    c.e(f"s_and_b32 s{S_B+1}, s{S_B+1}, 0xffff")
    c.e(f"s_sub_u32 s{S_B+2}, {1728*2}, s{sCOL}")
    c.e(f"s_cmp_eq_u32 s{sISH}, 0")
    c.e(f"s_cselect_b32 s{S_B+2}, 0, s{S_B+2}")
    c.e(f"s_mov_b32 s{S_B+3}, 0x20000")
    c.e(f"s_cselect_b32 s{sT0}, 40, 108")
    c.e(f"s_mov_b32 s{sT1}, {HF}")
    c.e(f"s_cselect_b32 s{sT1}, {QF}, s{sT1}")
    c.e(f"s_lshl_b32 s3, s{sTB}, 2")
    c.e(f"s_add_u32 s3, s3, s{sTW}")
    c.e(f"s_mul_i32 s3, s3, s{sT0}")
    c.e(f"s_add_u32 s{sOUT}, s{sKB2}, s3")
    c.e(f"s_lshl_b32 s{sOUT}, s{sOUT}, 10")
    c.e(f"s_add_u32 s{sOUT}, s{sOUT}, s{sT1}")
    vBi = a.get(2)
    c.e(f"v_and_b32 v{vt}, 31, v0")
    c.e(f"v_lshlrev_b32 v{vt}, 1, v{vt}")
    c.e(f"s_lshl_b32 s3, s{sTW}, 6")
    c.e(f"buffer_load_ushort v{vBi}, v{vt}, s[{S_B}:{S_B+3}], s3 offen")
    c.e(f"buffer_load_ushort v{vBi+1}, v{vt}, s[{S_B}:{S_B+3}], 0 offen offset:256")
    tr_addr(c, vRW, 320, 8, vt)
    c.e(f"s_mul_i32 s{sT0}, s{sTW}, 5120")
    c.e(f"v_add_u32 v{vRW}, s{sT0}, v{vRW}")
    for r in vCS + vC2: c.e(f"v_mov_b32 v{r}, 0")
    def work():
        c.e(f"v_add_u32 v{vRW+1}, s{sWOFF}, v{vRW}")
        for t in range(NAUX):
            c.e(f"ds_read_b64_tr_b16 v[{fW[t]}:{fW[t]+1}], v{vRW+1} offset:{64*t}")
            c.e(f"ds_read_b64_tr_b16 v[{fW[t]+2}:{fW[t]+3}], v{vRW+1} offset:{64*t+1280}")
        c.e("s_waitcnt lgkmcnt(0)")
        if 'nocs' in EXP: return
        for r in range(4):
            for t in range(NAUX):
                c.e(f"v_lshlrev_b32 v{vU+2*t}, 16, v{fW[t]+r}")
                c.e(f"v_and_b32 v{vU+2*t+1}, s{sMASK}, v{fW[t]+r}")
            for t in range(NAUX):
                c.e(f"v_add_f32 v{vCS[t]}, v{vCS[t]}, v{vU+2*t}")
                c.e(f"v_add_f32 v{vC2[t]}, v{vC2[t]}, v{vU+2*t+1}")
    c.e(f"s_lshl_b32 s{sT2}, s{sTB}, 4")
    c.e(f"s_lshl_b32 s{sT3}, s{sTB}, 11")
    c.e(f"s_add_u32 s{sT3}, s{sT3}, {STATS}")
    c.e(f"v_and_b32 v{vZ}, 3, v0")
    c.e(f"v_lshlrev_b32 v{vZ}, 2, v{vZ}")
    c.e(f"v_lshlrev_b32 v{vA}, 4, v0")
    c.e(f"s_mov_b32 s{sWOFF}, 0")
    c.e(f"s_mov_b32 s{sCH}, 0")
    c.e(f"s_cmp_eq_u32 s{sTW}, 0")
    c.e(f"s_cselect_b32 s{sXB}, {CHK}, 99")
    c.e("s_barrier")
    c.label("K1A_LOOP")
    c.e(f"s_cmp_lg_u32 s{sCH}, s{sXB}")
    c.e("s_cbranch_scc1 K1_AX0")
    c.e(f"buffer_load_dword v{vG}, v{vZ}, s[{S_D}:{S_D+3}], s{sT2} offen sc1")
    c.label("K1_AX0")
    if 'earlyfill' in EXP:
        c.e(f"s_cmp_lg_u32 s{sCH}, 2")
        c.e("s_cbranch_scc1 K1_AXF")
        o_fill(c, stt, vt2, "A")
        c.label("K1_AXF")
    work()
    c.e(f"s_cmp_lg_u32 s{sCH}, s{sXB}")
    c.e("s_cbranch_scc1 K1_AX1")
    c.e(f"s_mov_b32 s{sKB}, 0")
    c.label("K1_AXP")
    c.e("s_waitcnt vmcnt(0)")
    c.e(f"v_cmp_eq_u32 vcc, 1, v{vG}")
    c.e(f"s_add_u32 s{sKB}, s{sKB}, 1")
    c.e("s_cmp_eq_u64 vcc, -1")
    c.e("s_cbranch_scc1 K1_AXG")
    c.e("s_sleep 12")
    c.e(f"buffer_load_dword v{vG}, v{vZ}, s[{S_D}:{S_D+3}], s{sT2} offen sc1")
    c.e(f"s_cmp_lt_u32 s{sKB}, 0x10000")
    c.e("s_cbranch_scc1 K1_AXP")
    c.label("K1_AXG")
    c.e(f"buffer_load_dwordx4 v[{stt}:{stt+3}], v{vA}, s[{S_O}:{S_O+3}], s{sT3} offen sc1")
    c.e(f"buffer_load_dwordx4 v[{stt+4}:{stt+7}], v{vA}, s[{S_O}:{S_O+3}], s{sT3} offen offset:1024 sc1")
    c.label("K1_AX1")
    c.e(f"s_add_u32 s{sWOFF}, s{sWOFF}, {SLOT}")
    c.e(f"s_cmp_eq_u32 s{sWOFF}, {4*SLOT}")
    c.e(f"s_cselect_b32 s{sWOFF}, 0, s{sWOFF}")
    c.e(f"s_add_u32 s{sCH}, s{sCH}, 1")
    c.e(f"s_cmp_eq_u32 s{sCH}, 10")
    c.e("s_cbranch_scc1 K1A_END")
    trace_dyn(c, 0, sCH, vt)
    c.e("s_barrier")
    trace_dyn(c, 1, sCH, vt)
    c.e("s_branch K1A_LOOP")
    c.label("K1A_END")
    trace(c, 20, vt)
    for t in range(NAUX): c.e(f"v_add_f32 v{vCS[t]}, v{vCS[t]}, v{vC2[t]}")
    c.nop(4)
    c.e(f"v_and_b32 v{vt}, 31, v0")
    c.e(f"v_lshlrev_b32 v{vt}, 5, v{vt}")
    c.e(f"v_lshrrev_b32 v{vt2}, 5, v0")
    c.e(f"v_lshl_add_u32 v{vt}, v{vt2}, 2, v{vt}")
    c.e(f"s_lshl_b32 s{sT0}, s{sTW}, 3")
    c.e(f"v_add_u32 v{vt}, s{sT0}, v{vt}")
    c.e(f"v_add_u32 v{vt}, {CSP}, v{vt}")
    for t in range(NAUX):
        c.lds(f"ds_write_b32 v{vt}, v{vCS[t]} offset:{t*1024}")
    c.e(f"s_cmp_lg_u32 s{sTW}, 0")
    c.e("s_cbranch_scc1 K1_AX2")
    c.e("s_waitcnt vmcnt(0)")
    c.e(f"v_add_u32 v{vt}, {ST}, v{vA}")
    c.e(f"ds_write_b128 v{vt}, v[{stt}:{stt+3}]")
    c.e(f"ds_write_b128 v{vt}, v[{stt+4}:{stt+7}] offset:1024")
    c.label("K1_AX2")
    c.e("s_waitcnt vmcnt(0) lgkmcnt(0)")
    trace(c, 21, vt)
    c.e("s_barrier")
    trace_dump(c, vt)
    T = fW[0]; P0, P1, Q0_, Q1_ = fW[1], fW[2], fW[3], fW[4]
    c.e(f"v_and_b32 v{vt}, 31, v0")
    c.e(f"s_lshl_b32 s{sT0}, s{sTW}, 5")
    c.e(f"v_add_u32 v{vt2}, s{sT0}, v{vt}")
    c.e(f"v_lshlrev_b32 v{vt2}, 4, v{vt2}")
    c.e(f"v_add_u32 v{vt2}, {ST}, v{vt2}")
    c.e(f"ds_read_b128 v[{stt}:{stt+3}], v{vt2}")
    c.e(f"v_lshlrev_b32 v{vt}, 5, v{vt}")
    c.e(f"s_lshl_b32 s{sT0}, s{sTW}, 10")
    c.e(f"v_add_u32 v{vt2}, s{sT0}, v{vt}")
    c.e(f"v_add_u32 v{vt2}, {CSP}, v{vt2}")
    c.e(f"ds_read_b128 v[{P0}:{P0+3}], v{vt2}")
    c.e(f"ds_read_b128 v[{P1}:{P1+3}], v{vt2} offset:16")
    c.e(f"v_add_u32 v{vt}, {CSP + 4096}, v{vt}")
    c.e(f"ds_read_b128 v[{Q0_}:{Q0_+3}], v{vt}")
    c.e(f"ds_read_b128 v[{Q1_}:{Q1_+3}], v{vt} offset:16")
    c.e(f"v_cmp_gt_u32 vcc, 32, v0")
    c.e(f"v_lshlrev_b32 v{vBi}, 16, v{vBi}")
    c.e(f"v_lshlrev_b32 v{vBi+1}, 16, v{vBi+1}")
    c.e(f"v_cndmask_b32 v{vBi}, 0, v{vBi}, vcc")
    c.e(f"v_cndmask_b32 v{vBi+1}, 0, v{vBi+1}, vcc")
    c.e("s_waitcnt lgkmcnt(0)")
    for A, B in ((P0, P1), (Q0_, Q1_)):
        c.e(f"v_add_f32 v{A}, v{A}, v{A+1}"); c.e(f"v_add_f32 v{A+2}, v{A+2}, v{A+3}")
        c.e(f"v_add_f32 v{B}, v{B}, v{B+1}"); c.e(f"v_add_f32 v{B+2}, v{B+2}, v{B+3}")
        c.e(f"v_add_f32 v{A}, v{A}, v{A+2}"); c.e(f"v_add_f32 v{B}, v{B}, v{B+2}")
        c.e(f"v_add_f32 v{A}, v{A}, v{B}")
        c.e(f"v_cndmask_b32 v{A}, 0, v{A}, vcc")
    tq = vU
    build_Baug(c, stt+4, stt, stt+2, tq, tq+1, tq+2, tq+3)
    c.e(f"v_lshlrev_b32 v{vA}, 4, v0")
    c.e(f"s_lshl_b32 s{sT0}, s{sTW}, 10")
    c.e(f"v_add_u32 v{vt}, s{sT0}, v{vA}")
    c.e(f"v_add_u32 v{vt}, {BAUG}, v{vt}")
    c.e(f"ds_write_b128 v{vt}, v[{stt+4}:{stt+7}]")
    build_Aaug(c, P1, P0, vBi, tq, tq+1, tq+2)
    c.e(f"ds_write_b128 v{vt}, v[{P1}:{P1+3}] offset:4096")
    build_Aaug(c, Q1_, Q0_, vBi+1, tq, tq+1, tq+2)
    c.e(f"v_add_u32 v{vt2}, {AAUG + 4096}, v{vA}")
    c.e(f"ds_write_b128 v{vt2}, v[{Q1_}:{Q1_+3}]")
    c.e("s_waitcnt lgkmcnt(0)")
    c.e("s_barrier")
    c.e("s_setprio 3")
    if DIRECT:
        if 'earlyfill' not in EXP: o_fill(c, T, vt2, "A")
        c.finish(0, sW, S_O)
        return a.hi
    c.e(f"s_lshl_b32 s{sT0}, s{sTW}, 11")
    c.e(f"v_add_u32 v{vt}, s{sT0}, v{vA}")
    c.e(f"v_add_u32 v{vt}, {OUTB}, v{vt}")
    for t in range(5):
        if t == 4:
            c.e(f"s_cmp_eq_u32 s{sFT}, 14")
            c.e(f"s_cbranch_scc1 K1_AX3")
        R_ = fW[t & 1] if False else (P0 if t & 1 else Q0_)
        R2 = (P1 if t & 1 else Q1_)
        c.e("s_barrier")
        c.e(f"ds_read_b128 v[{R_}:{R_+3}], v{vt} offset:{(t&1)*8192}")
        c.e(f"ds_read_b128 v[{R2}:{R2+3}], v{vt} offset:{(t&1)*8192 + 1024}")
        c.e(f"s_add_u32 s{sT0}, s{sOUT}, {2048*t}")
        c.e("s_waitcnt lgkmcnt(0)")
        c.e(f"buffer_store_dwordx4 v[{R_}:{R_+3}], v{vA}, s[{S_O}:{S_O+3}], s{sT0} offen sc0 sc1")
        c.e(f"buffer_store_dwordx4 v[{R2}:{R2+3}], v{vA}, s[{S_O}:{S_O+3}], s{sT0} offen offset:1024 sc0 sc1")
    c.label("K1_AX3")
    c.finish(0, sW, S_O)
    return a.hi

def k1_kv(c, fh):
    L = f"K1KV{fh}"
    a = Alloc(1, 168)
    vt, vt2 = a.get(), a.get()
    vRW = a.get()
    vRX = a.get(8)
    vL16 = a.get()
    vOnes = a.get()
    vS = a.get(2); vQ = a.get(2); vCS = a.get(); vC4 = a.get(4)
    acc = a.get(16, 4)
    fW = [a.get(4, 4) for _ in range(2)]
    fX = [a.get(4, 4) for _ in range(2)]
    wait_args(c)
    srd(c, S_X, 24, 25, M*D*2)
    srd(c, S_O, 42, 43, WS_USED)
    srd(c, S_D, 6, 7, 256)
    c.e(f"s_lshl_b32 s3, s{sTB}, 2")
    c.e(f"s_add_u32 s3, s3, s{sTW}")
    c.e(f"s_mul_i32 s{sOUT}, s3, 2560")
    c.e(f"s_add_u32 s{sOUT}, s{sOUT}, {KV}")
    c.e(f"v_lshlrev_b32 v{vL16}, 4, v0")
    tr_addr(c, vRW, 40, 8, vt)
    c.e(f"v_add_u32 v{vRW}, {2*fh*SLOT}, v{vRW}")
    x_read_addr(c, vRX, vt, vt2)
    c.e(f"v_mov_b32 v{vOnes}, 0x3f803f80")
    for r in (vS, vS+1, vQ, vQ+1, vCS, vC4, vC4+1, vC4+2, vC4+3): c.e(f"v_mov_b32 v{r}, 0")
    for i in range(16): c.e(f"v_mov_b32 v{acc+i}, 0")
    def reads(n):
        ch, sp = divmod(n, 4); slot = ch % 4; b = n & 1
        hi = slot >> 1; base = (slot & 1) * SLOT
        c.lds(f"ds_read_b128 v[{fX[b]}:{fX[b]+3}], v{vRX+4*hi+sp} offset:{base}", n)
        hf = n // 20; k0 = (n % 20) * 16
        off = hf*SLOT + k0*40
        c.lds(f"ds_read_b64_tr_b16 v[{fW[b]}:{fW[b]+1}], v{vRW} offset:{off}", n)
        c.lds(f"ds_read_b64_tr_b16 v[{fW[b]+2}:{fW[b]+3}], v{vRW} offset:{off+160}", n)
    tmp = a.get(8, 4)
    if fh == 0:
        c.e("s_setprio 3")
        m0_ = a.mark()
        xb = [a.get(40, 4), a.get(40, 4)]
        vG = a.get(); SQ = a.get(8)
        c.e(f"s_lshl_b32 s{sT0}, s{sTB}, 7")
        c.e(f"s_lshl_b32 s{sT1}, s{sTW}, 5")
        c.e(f"s_add_u32 s{sT0}, s{sT0}, s{sT1}")
        c.e(f"v_lshrrev_b32 v{vG}, 3, v0")
        c.e(f"v_add_u32 v{vG}, s{sT0}, v{vG}")
        c.e(f"v_mul_u32_u24 v{vG}, 1280, v{vG}")
        c.e(f"v_and_b32 v{vt}, 7, v0")
        c.e(f"v_lshl_add_u32 v{vG}, v{vt}, 4, v{vG}")
        def xload(g):
            for ch in range(10):
                c.e(f"s_mov_b32 s{sT1}, {g*10240 + ch*128}")
                c.vmem(f"buffer_load_dwordx4 v[{xb[g&1]+4*ch}:{xb[g&1]+4*ch+3}], v{vG}, s[{S_X}:{S_X+3}], s{sT1} offen", f"xs{g}")
        xload(0); xload(1)
        for r in range(8): c.e(f"v_mov_b32 v{SQ+r}, 0")
        for g in range(4):
            c.wait_vm(f"xs{g}")
            for r in range(40):
                c.e(f"v_dot2_f32_bf16 v{SQ+2*g}, v{xb[g&1]+r}, v{vOnes}, v{SQ+2*g}")
                c.e(f"v_dot2_f32_bf16 v{SQ+2*g+1}, v{xb[g&1]+r}, v{xb[g&1]+r}, v{SQ+2*g+1}")
            if g + 2 < 4: xload(g + 2)
        c.nop(4)
        for ctl in ("quad_perm:[1,0,3,2]", "quad_perm:[2,3,0,1]", "row_half_mirror"):
            for r in range(8):
                c.e(f"v_add_f32_dpp v{SQ+r}, v{SQ+r}, v{SQ+r} {ctl} row_mask:0xf bank_mask:0xf")
            c.nop(2)
        c.e(f"v_and_b32 v{vt}, 7, v0")
        for g in range(1, 4):
            c.e(f"v_cmp_eq_u32 vcc, {g}, v{vt}")
            c.nop(2)
            c.e(f"v_cndmask_b32 v{SQ}, v{SQ}, v{SQ+2*g}, vcc")
            c.e(f"v_cndmask_b32 v{SQ+1}, v{SQ+1}, v{SQ+2*g+1}, vcc")
        c.e(f"v_mul_f32 v{tmp}, {fhex(1.0/640)}, v{SQ}")
        c.e(f"v_mul_f32 v{SQ+1}, {fhex(1.0/640)}, v{SQ+1}")
        c.e(f"v_fma_f32 v{SQ+1}, -v{tmp}, v{tmp}, v{SQ+1}")
        c.e(f"v_max_f32 v{SQ+1}, 0, v{SQ+1}")
        c.e(f"v_add_f32 v{SQ+1}, {fhex(EPS)}, v{SQ+1}")
        c.e(f"v_rsq_f32 v{tmp+1}, v{SQ+1}")
        c.nop(1)
        c.e(f"v_mul_f32 v{tmp+2}, v{SQ+1}, v{tmp+1}")
        c.e(f"v_mov_b32 v{tmp+3}, 0")
        c.e(f"v_lshlrev_b32 v{vt2}, 3, v{vt}")
        c.e(f"v_lshrrev_b32 v{vG}, 3, v0")
        c.e(f"v_add_u32 v{vt2}, v{vt2}, v{vG}")
        c.e(f"v_lshlrev_b32 v{vt2}, 4, v{vt2}")
        c.e(f"s_lshl_b32 s{sT0}, s{sTB}, 2")
        c.e(f"s_add_u32 s{sT0}, s{sT0}, s{sTW}")
        c.e(f"s_lshl_b32 s{sT1}, s{sT0}, 9")
        c.e(f"s_add_u32 s{sT1}, s{sT1}, {STATS}")
        c.e(f"v_cmp_gt_u32 vcc, 4, v{vt}")
        c.e(f"s_and_saveexec_b64 s[4:5], vcc")
        c.e(f"buffer_store_dwordx4 v[{tmp}:{tmp+3}], v{vt2}, s[{S_O}:{S_O+3}], s{sT1} offen sc0 sc1")
        c.e(f"s_lshl_b32 s{sT1}, s{sTW}, 9")
        c.e(f"v_add_u32 v{vt2}, s{sT1}, v{vt2}")
        c.e(f"v_add_u32 v{vt2}, {ST}, v{vt2}")
        c.e(f"ds_write_b128 v{vt2}, v[{tmp}:{tmp+3}]")
        c.e("s_mov_b64 exec, -1")
        c.e("s_waitcnt vmcnt(0) lgkmcnt(0)")
        c.vm = []
        c.e(f"s_lshl_b32 s{sT0}, s{sT0}, 2")
        c.e(f"v_mov_b32 v{vt}, 1")
        c.e(f"v_mov_b32 v{vt2}, 0")
        c.e("s_mov_b64 exec, 1")
        c.e(f"buffer_store_dword v{vt}, v{vt2}, s[{S_D}:{S_D+3}], s{sT0} offen sc0 sc1")
        c.e("s_mov_b64 exec, -1")
        c.e("s_setprio 0")
        a.release(m0_)
    c.e("s_barrier")
    reads(0)
    for n in range(40):
        ch, sp = divmod(n, 4); b = n & 1
        c.wait_lg(n)
        if sp == 3 and ch + 1 < 10:
            c.e("s_barrier")
        if n + 1 < 40: reads(n + 1)
        if fh == 0:
            c.e(f"v_mfma_f32_32x32x16_bf16 v[{acc}:{acc+15}], v[{fW[b]}:{fW[b]+3}], v[{fX[b]}:{fX[b]+3}], v[{acc}:{acc+15}]")
        else:
            c.e(f"v_mfma_f32_32x32x16_bf16 v[{acc}:{acc+15}], v[{fX[b]}:{fX[b]+3}], v[{fW[b]}:{fW[b]+3}], v[{acc}:{acc+15}]")
    c.e(f"v_and_b32 v{vt}, 31, v0")
    c.e(f"s_lshl_b32 s{sT0}, s{sTW}, 5")
    c.e(f"v_add_u32 v{vt}, s{sT0}, v{vt}")
    c.e(f"v_lshlrev_b32 v{vt}, 4, v{vt}")
    c.e(f"v_add_u32 v{vt}, {ST}, v{vt}")
    c.lds(f"ds_read_b128 v[{tmp}:{tmp+3}], v{vt}")
    csb = [a.get(4, 4) for _ in range(4)]
    for n0 in range(0, 40, 4):
        for u in range(4):
            n = n0 + u; hf = n // 20; k0 = (n % 20) * 16; off = hf*SLOT + k0*40
            c.lds(f"ds_read_b64_tr_b16 v[{csb[u]}:{csb[u]+1}], v{vRW} offset:{off}", "cs")
            c.lds(f"ds_read_b64_tr_b16 v[{csb[u]+2}:{csb[u]+3}], v{vRW} offset:{off+160}", "cs")
        c.wait_lg0()
        for r in range(4):
            for u in range(4):
                c.e(f"v_dot2_f32_bf16 v{vC4+u}, v{csb[u]+r}, v{vOnes}, v{vC4+u}")
    c.nop(4)
    c.e(f"v_add_f32 v{vC4}, v{vC4}, v{vC4+1}")
    c.e(f"v_add_f32 v{vC4+2}, v{vC4+2}, v{vC4+3}")
    c.e(f"v_add_f32 v{vCS}, v{vC4}, v{vC4+2}")
    c.e(f"v_mov_b32 v{vt}, v{vCS}")
    c.nop(2)
    c.e(f"v_permlane32_swap_b32 v{vCS}, v{vt}")
    c.nop(2)
    c.e(f"v_add_f32 v{vCS}, v{vCS}, v{vt}")
    c.e(f"v_cmp_gt_u32 vcc, 32, v0")
    c.nop(2)
    c.e(f"v_cndmask_b32 v{vCS}, 0, v{vCS}, vcc")
    c.e(f"v_mov_b32 v{vt}, 0")
    t2 = a.get(4, 4)
    build_Baug(c, fX[0], tmp, tmp+2, t2, t2+1, t2+2, t2+3)
    build_Aaug(c, fW[0], vCS, vt, t2, t2+1, t2+2)
    c.nop(2)
    kvb = f"s{sOUT}"
    if fh == 0:
        c.e(f"v_mfma_f32_32x32x16_bf16 v[{acc}:{acc+15}], v[{fW[0]}:{fW[0]+3}], v[{fX[0]}:{fX[0]+3}], v[{acc}:{acc+15}]")
        c.nop(16)
        for r in range(12):
            c.e(f"v_mul_f32 v{acc+r}, v{acc+r}, v{tmp+1}")
        for p in range(6):
            c.e(f"v_cvt_pk_bf16_f32 v{acc+p}, v{acc+2*p}, v{acc+2*p+1}")
        c.e(f"buffer_store_dwordx4 v[{acc}:{acc+3}], v{vL16}, s[{S_O}:{S_O+3}], {kvb} offen sc0 sc1")
        c.e(f"v_lshlrev_b32 v{vt}, 3, v0")
        c.e(f"v_cmp_gt_u32 vcc, 32, v0")
        c.e(f"s_and_saveexec_b64 s[4:5], vcc")
        c.e(f"buffer_store_dwordx2 v[{acc+4}:{acc+5}], v{vt}, s[{S_O}:{S_O+3}], {kvb} offen offset:1024 sc0 sc1")
        c.finish(0, sW, S_O)
    else:
        c.e(f"v_mfma_f32_32x32x16_bf16 v[{acc}:{acc+15}], v[{fX[0]}:{fX[0]+3}], v[{fW[0]}:{fW[0]+3}], v[{acc}:{acc+15}]")
        c.e(f"v_and_b32 v{vt}, 31, v0")
        c.e(f"s_lshl_b32 s{sT0}, s{sTW}, 5")
        c.e(f"v_add_u32 v{vt}, s{sT0}, v{vt}")
        c.e(f"v_lshlrev_b32 v{vt}, 2, v{vt}")
        c.e(f"v_add_u32 v{vt}, {RS}, v{vt}")
        c.lds(f"ds_write_b32 v{vt}, v{tmp+1}")
        c.wait_lg0()
        c.e(f"v_lshrrev_b32 v{vt}, 5, v0")
        c.e(f"v_lshlrev_b32 v{vt}, 4, v{vt}")
        c.e(f"s_lshl_b32 s{sT0}, s{sTW}, 7")
        c.e(f"v_add_u32 v{vt}, s{sT0}, v{vt}")
        c.e(f"v_add_u32 v{vt}, {RS}, v{vt}")
        rr = a.get(16, 4)
        for j in range(4):
            c.lds(f"ds_read_b128 v[{rr+4*j}:{rr+4*j+3}], v{vt} offset:{32*j}")
        c.wait_lg0()
        c.nop(16)
        for r in range(16):
            c.e(f"v_mul_f32 v{acc+r}, v{acc+r}, v{rr+r}")
        for p in range(8):
            c.e(f"v_cvt_pk_bf16_f32 v{acc+p}, v{acc+2*p}, v{acc+2*p+1}")
        c.e(f"v_and_b32 v{vt}, 31, v0")
        c.e(f"v_lshrrev_b32 v{vt2}, 5, v0")
        c.e(f"v_mul_u32_u24 v{vt2}, 20, v{vt2}")
        c.e(f"v_add_u32 v{vt2}, v{vt2}, v{vt}")
        c.e(f"v_lshlrev_b32 v{vt2}, 4, v{vt2}")
        c.e(f"v_cmp_gt_u32 vcc, 20, v{vt}")
        c.e(f"s_and_saveexec_b64 s[4:5], vcc")
        c.e(f"buffer_store_dwordx4 v[{acc}:{acc+3}], v{vt2}, s[{S_O}:{S_O+3}], {kvb} offen offset:1280 sc0 sc1")
        c.e(f"buffer_store_dwordx4 v[{acc+4}:{acc+7}], v{vt2}, s[{S_O}:{S_O+3}], {kvb} offen offset:1920 sc0 sc1")
        c.finish(0, sW, S_O)
    return a.hi


def k1_loader(c, kv):
    a = Alloc(1, 168)
    vt, vt2 = a.get(), a.get()
    vXa, vXb = a.get(), a.get()
    vL16 = a.get()
    if 'noprio' not in EXP: c.e("s_setprio 3")
    c.e(f"s_lshl_b32 s{sW2K}, s{sTW}, 12")
    c.e(f"s_mul_i32 s{sW1K}, s{sTW}, 5120")
    if kv or 'norot' in EXP:
        c.e(f"s_mov_b32 s{sCH}, 0")
    else:
        c.e(f"s_lshr_b32 s{sCH}, s2, 3")
        c.e(f"s_mul_i32 s{sT0}, s{sCH}, 26")
        c.e(f"s_lshr_b32 s{sT0}, s{sT0}, 8")
        c.e(f"s_mul_i32 s{sT0}, s{sT0}, 10")
        c.e(f"s_sub_u32 s{sCH}, s{sCH}, s{sT0}")
    x_dma_addr(c, vXa, vXb, vt)
    c.e(f"v_lshlrev_b32 v{vL16}, 4, v0")
    if kv:
        wait_args(c)
        srd(c, S_X, 24, 25, M*D*2)
        srd(c, S_O, 42, 43, WS_USED)
    if not kv:
        vWd = [a.get() for _ in range(5)]
        c.e(f"s_lshl_b32 s{sT0}, s{sTW}, 4")
        c.e(f"s_mul_i32 s{sT0}, s{sT0}, s{sSTR}")
        for i, r in enumerate(vWd):
            c.e(f"v_add_u32 v{vt}, {64*i}, v0")
            c.e(f"v_mul_u32_u24 v{vt2}, 3277, v{vt}")
            c.e(f"v_lshrrev_b32 v{vt2}, 16, v{vt2}")
            c.e(f"v_mul_u32_u24 v{r}, 20, v{vt2}")
            c.e(f"v_sub_u32 v{vt}, v{vt}, v{r}")
            c.e(f"v_mul_u32_u24 v{r}, s{sSTR}, v{vt2}")
            c.e(f"v_lshl_add_u32 v{r}, v{vt}, 4, v{r}")
            c.e(f"v_add_u32 v{r}, s{sT0}, v{r}")
        def dma(tag):
            c.e(f"s_lshl_b32 s{sWOFF}, s{sCH}, 6")
            c.e(f"s_mul_i32 s{sWOFF}, s{sSTR}, s{sWOFF}")
            c.e(f"s_add_u32 s{sMASK}, s{sW1K}, s{sSLD}")
            for i, r in enumerate(vWd):
                c.e(f"s_add_u32 m0, s{sMASK}, {1024*i}")
                c.e("s_nop 0")
                c.vmem(f"buffer_load_dwordx4 v{r}, s[{S_W}:{S_W+3}], s{sWOFF} offen lds", tag)
            c.e(f"s_lshl_b32 s{sXB}, s{sCH}, 7")
            c.e(f"s_add_u32 s{sMASK}, s{sW2K}, s{sSLD}")
            for i in range(4):
                c.e(f"s_add_u32 m0, s{sMASK}, {XOFF + 1024*i}")
                c.e(f"s_add_u32 s{sXOFF}, s{sXB}, {(i >> 1)*16*1280}")
                c.vmem(f"buffer_load_dwordx4 v{vXb if i & 1 else vXa}, s[{S_X}:{S_X+3}], s{sXOFF} offen lds", tag)
            c.e(f"s_add_u32 s{sCH}, s{sCH}, 1")
            c.e(f"s_cmp_eq_u32 s{sCH}, 10")
            c.e(f"s_cselect_b32 s{sCH}, 0, s{sCH}")
            c.e(f"s_add_u32 s{sSLD}, s{sSLD}, {SLOT}")
            c.e(f"s_cmp_eq_u32 s{sSLD}, {4*SLOT}")
            c.e(f"s_cselect_b32 s{sSLD}, 0, s{sSLD}")
        c.e(f"s_mov_b32 s{sSLD}, 0")
        wait_args(c)
        srd(c, S_X, 24, 25, M*D*2)
        srd_w(c)
        dma("ch0"); dma("ch1")
        srd(c, S_O, 42, 43, WS_USED)
        side_job_setup(c)
        vSJ = a.get()
        tr_addr(c, vSJ, 1280, 4, vt)
        c.e(f"v_add_u32 v{vSJ}, {2*SLOT}, v{vSJ}")
        LT = list(range(NAUX, 5))
        vRW = a.get(2); vU = a.get(4); vCS = [a.get() for _ in LT]; vC2 = [a.get() for _ in LT]
        fW = [a.get(4, 4) for _ in LT]
        tr_addr(c, vRW, 320, 8, vt)
        c.e(f"s_mul_i32 s{sT0}, s{sTW}, 5120")
        c.e(f"v_add_u32 v{vRW}, s{sT0}, v{vRW}")
        for r in vCS + vC2: c.e(f"v_mov_b32 v{r}, 0")
        c.e(f"s_mov_b32 s{sOUT}, 0")
        c.e(f"s_mov_b32 s{sISH}, 0xffff0000")
        def cs_reads():
            c.e(f"v_add_u32 v{vRW+1}, s{sOUT}, v{vRW}")
            for k, t in enumerate(LT):
                c.e(f"ds_read_b64_tr_b16 v[{fW[k]}:{fW[k]+1}], v{vRW+1} offset:{64*t}")
                c.e(f"ds_read_b64_tr_b16 v[{fW[k]+2}:{fW[k]+3}], v{vRW+1} offset:{64*t+1280}")
            c.e(f"s_add_u32 s{sOUT}, s{sOUT}, {SLOT}")
            c.e(f"s_cmp_eq_u32 s{sOUT}, {4*SLOT}")
            c.e(f"s_cselect_b32 s{sOUT}, 0, s{sOUT}")
        def cs_work():
            w_ = []
            if 'nocs' in EXP: return w_
            for r in range(4):
                for k in range(len(LT)):
                    w_.append(f"v_lshlrev_b32 v{vU+2*k}, 16, v{fW[k]+r}")
                    w_.append(f"v_and_b32 v{vU+2*k+1}, s{sISH}, v{fW[k]+r}")
                for k in range(len(LT)):
                    w_.append(f"v_add_f32 v{vCS[k]}, v{vCS[k]}, v{vU+2*k}")
                    w_.append(f"v_add_f32 v{vC2[k]}, v{vC2[k]}, v{vU+2*k+1}")
            return w_
        def mix(emit):
            cs_reads()
            save = c.lines; c.lines = []
            emit()
            L_ = c.lines; c.lines = save
            idx = [i for i, l in enumerate(L_) if "buffer_load" in l]
            work = cs_work(); waited = False
            for i, l in enumerate(L_):
                c.lines.append(l)
                if i in idx:
                    p = idx.index(i)
                    if p >= 1 and work:
                        if not waited: c.e("s_waitcnt lgkmcnt(0)"); waited = True
                        n_ = (len(work) + (len(idx) - 1 - p)) // (len(idx) - p)
                        for _ in range(n_):
                            if work: c.e(work.pop(0))
            if not waited: c.e("s_waitcnt lgkmcnt(0)")
            for w_ in work: c.e(w_)
        trace(c, 22, vt)
        c.wait_vm("ch0")
        trace(c, 0, vt)
        c.e("s_barrier")
        trace(c, 1, vt)
        mix(lambda: (dma("ch2"), dma("ch3")))
        c.e(f"s_setprio {PL}")
        c.e(f"s_mov_b32 s{sKB2}, 0")
        c.label("K1L_LOOP")
        c.e("s_waitcnt vmcnt(18)")
        trace_dyn(c, 2, sKB2, vt)
        c.e("s_barrier")
        trace_dyn(c, 3, sKB2, vt)
        mix(lambda: dma("x"))
        c.e(f"s_add_u32 s{sKB2}, s{sKB2}, 1")
        c.e(f"s_cmp_lt_u32 s{sKB2}, 6")
        c.e("s_cbranch_scc1 K1L_LOOP")
        c.e("s_waitcnt vmcnt(18)")
        c.e("s_barrier")
        def sjl():
            for i in range(5):
                c.e(f"s_add_u32 m0, s{sW1K}, {2*SLOT + 1024*i}")
                c.e(f"s_mul_i32 s{sT0}, s{sSEG}, s{sTW}")
                c.e(f"s_add_u32 s{sT0}, s{sT0}, {1024*i}")
                c.e(f"buffer_load_dwordx4 v{vL16}, s[{S_SJ}:{S_SJ+3}], s{sT0} offen lds")
        mix(sjl)
        c.e("s_waitcnt vmcnt(14)")
        c.e("s_barrier")
        mix(lambda: None)
        c.e("s_waitcnt vmcnt(0)")
        c.e("s_barrier")
        mix(lambda: None)
        c.vm = []
        for k in range(len(LT)): c.e(f"v_add_f32 v{vCS[k]}, v{vCS[k]}, v{vC2[k]}")
        c.e(f"v_and_b32 v{vt}, 31, v0")
        c.e(f"v_lshlrev_b32 v{vt}, 5, v{vt}")
        c.e(f"v_lshrrev_b32 v{vt2}, 5, v0")
        c.e(f"v_lshl_add_u32 v{vt}, v{vt2}, 2, v{vt}")
        c.e(f"s_lshl_b32 s{sT0}, s{sTW}, 3")
        c.e(f"v_add_u32 v{vt}, s{sT0}, v{vt}")
        c.e(f"v_add_u32 v{vt}, {CSP}, v{vt}")
        for k, t in enumerate(LT):
            c.e(f"ds_write_b32 v{vt}, v{vCS[k]} offset:{t*1024}")
        sj = [a.get(4, 4) for _ in range(5)]
        c.e(f"s_mul_i32 s{sT0}, s{sTW}, 320")
        c.e(f"v_add_u32 v{vt}, s{sT0}, v{vSJ}")
        for i in range(5):
            c.lds(f"ds_read_b64_tr_b16 v[{sj[i]}:{sj[i]+1}], v{vt} offset:{64*i}", "sjr")
            c.lds(f"ds_read_b64_tr_b16 v[{sj[i]+2}:{sj[i]+3}], v{vt} offset:{64*i + 8*1280}", "sjr")
        c.wait_lg0()
        c.e("s_barrier")
        trace_dump(c, vt)
        c.e(f"s_mul_i32 s{sT1}, s{sTW}, s{sT2}")
        c.e(f"s_add_u32 s{sT1}, s{sT1}, s{sT3}")
        for i in range(5):
            c.e(f"s_add_u32 s{sT0}, s{sT1}, {1024*i}")
            c.vstore(f"buffer_store_dwordx4 v[{sj[i]}:{sj[i]+3}], v{vL16}, s[{S_SO}:{S_SO+3}], s{sT0} offen sc0 sc1")
        if DIRECT: c.e("s_barrier")
        else:
            for i in range(5): c.e("s_barrier")
            c.e(f"s_cmp_eq_u32 s{sFT}, 14")
            c.e("s_cbranch_scc1 K1L_X")
            c.e("s_barrier")
            c.label("K1L_X")
    else:
        c.e(f"s_lshr_b32 s{sT0}, s{sTW}, 1")
        c.e(f"s_cmp_eq_u32 s{sT0}, 0")
        c.e(f"s_cselect_b32 s{S_W}, s28, s30")
        c.e(f"s_cselect_b32 s{S_W+1}, s29, s31")
        c.e(f"s_and_b32 s{S_W+1}, s{S_W+1}, 0xffff")
        c.e(f"s_mov_b32 s{S_W+2}, 25600")
        c.e(f"s_mov_b32 s{S_W+3}, 0x20000")
        c.e(f"s_and_b32 s{sT1}, s{sTW}, 1")
        c.e(f"s_mul_i32 s{sWOFF}, s{sT1}, 12800")
        c.e(f"s_mul_i32 s{sW1K}, s{sTW}, {SLOT}")
        x_dma(c, vXa, vXb, 0, "ch0")
        for i in range(13):
            c.e(f"s_add_u32 m0, s{sW1K}, {1024*i}")
            c.e(f"s_add_u32 s{sT0}, s{sWOFF}, {1024*i}")
            c.vmem(f"buffer_load_dwordx4 v{vL16}, s[{S_W}:{S_W+3}], s{sT0} offen lds", "ch0")
        x_dma(c, vXa, vXb, 1, "ch1")
        c.wait_vm("ch0")
        c.e("s_barrier")
        for ch in range(2, 4): x_dma(c, vXa, vXb, ch, f"ch{ch}")
        for ch in range(9):
            c.wait_vm(f"ch{ch+1}")
            c.e("s_barrier")
            if ch + 4 < 10: x_dma(c, vXa, vXb, ch + 4, f"ch{ch+4}")
        o_fill(c, a.get(4, 4), vt, "K")
    c.finish(0, sW, S_O)
    return a.hi

def gen_k1():
    c = Code()
    k1_prologue(c)
    hi = 0
    c.e(f"s_cmp_eq_u32 s{sFT}, 15")
    c.e("s_cbranch_scc1 K1_KV")
    c.e(f"s_cmp_lg_u32 s{sFH}, 2")
    c.e("s_cbranch_scc1 K1_NOTL")
    cl = Code(); hi = max(hi, k1_loader(cl, False)); c.lines += cl.lines
    c.label("K1_NOTL")
    c.e(f"s_cmp_eq_u32 s{sFH}, 0")
    c.e("s_cbranch_scc0 K1_MAIN1")
    c0 = Code(); hi = max(hi, k1_compute(c0)); c.lines += c0.lines
    c.label("K1_MAIN1")
    c1 = Code(); hi = max(hi, k1_aux(c1)); c.lines += c1.lines
    c.label("K1_KV")
    c.e(f"s_cmp_eq_u32 s{sFH}, 2")
    c.e("s_cbranch_scc1 K1_LOADKV")
    c.e(f"s_cmp_eq_u32 s{sFH}, 0")
    c.e("s_cbranch_scc0 K1_KV1")
    c2 = Code(); hi = max(hi, k1_kv(c2, 0)); c.lines += c2.lines
    c.label("K1_KV1")
    c3 = Code(); hi = max(hi, k1_kv(c3, 1)); c.lines += c3.lines
    c.label("K1_LOADKV")
    cl = Code(); hi = max(hi, k1_loader(cl, True)); c.lines += cl.lines
    c.label("K1_END")
    c.e("s_endpgm")
    return c.text(), hi

if __name__ == "__main__":
    t, hi = gen_k1()
    print(t)
    import sys
    print("vgprs", hi, "lds", K1_LDS, file=sys.stderr)
```

```python
from core import *
import re
import k2 as K2old
from k2 import piece_addr
EXP = os.environ.get('EXP', '')

GP = int(re.search(r'gp=([0-9])', EXP).group(1)) if 'gp=' in EXP else 0
K2_LDS = 163840
S_WS, S_X, S_B2, S_OUT = 8, 12, 16, 20
sW, sTT, sHEAD, sT0, sT1, sT2, sIT, sGW, sFBK, sA, sB, sAS, sRB, sG, sFB, sTO, sSPIN, sPB = range(40, 58)
sVM = 58
K2old.sVM = sVM
NV = 168

def attn_tile(c, R, j, pat=None):
    S = R['S'][j & 1]; N = R['S'][(j + 1) & 1]; P = R['P']; O = R['O']
    K0, K1, Va, Vb, Q0, Q1 = R['K0'], R['K1'], R['Va'], R['Vb'], R['Q0'], R['Q1']
    vK0, vK1, vV = R['vK0'], R['vK1'], R['vV']
    def ex(lo):
        c.e(f"v_exp_f32 v{S+lo}, v{S+lo}")
        c.e(f"v_exp_f32 v{S+lo+1}, v{S+lo+1}")
        c.e(f"v_exp_f32 v{S+lo+2}, v{S+lo+2}")
        c.e(f"v_cvt_pk_bf16_f32 v{P+lo//2}, v{S+lo}, v{S+lo+1}")
        c.e(f"v_exp_f32 v{S+lo+3}, v{S+lo+3}")
        R['pend'] = (P + lo//2 + 1, S + lo + 2, S + lo + 3)
    def flush():
        if R.get('pend'):
            d, a_, b_ = R['pend']; c.e(f"v_cvt_pk_bf16_f32 v{d}, v{a_}, v{b_}"); R['pend'] = None
    T = 2560
    import re
    if pat is None:
        m = re.search(r"pat=([0-9\-]+)", EXP); pat = m.group(1) if m else "2--1"
    def pr(k):
        if pat[k] != '-': c.e(f"s_setprio {pat[k]}")
    W2 = 'w4' not in EXP
    pr(0)
    c.e("s_waitcnt lgkmcnt(2)" if W2 else "s_waitcnt lgkmcnt(3)")
    flush()
    c.e(f"v_mfma_f32_32x32x16_bf16 v[{N}:{N+15}], v[{K0}:{K0+3}], v[{Q0}:{Q0+3}], 0")
    c.e(f"ds_read_b128 v[{K0}:{K0+3}], v{vK0} offset:{(j+2)*T}")
    ex(0)
    pr(1)
    if not W2: c.e("s_waitcnt lgkmcnt(3)")
    c.e(f"v_mfma_f32_32x32x8_bf16 v[{N}:{N+15}], v[{K1}:{K1+1}], v[{Q1}:{Q1+1}], v[{N}:{N+15}]")
    flush()
    c.e(f"ds_read_b64 v[{K1}:{K1+1}], v{vK1} offset:{(j+2)*T}")
    ex(4)
    pr(2)
    c.e("s_waitcnt lgkmcnt(2)" if W2 else "s_waitcnt lgkmcnt(3)")
    flush()
    c.e(f"v_mfma_f32_32x32x16_bf16 v[{O}:{O+15}], v[{Vb}:{Vb+3}], v[{P+4}:{P+7}], v[{O}:{O+15}]")
    ex(8)
    pr(3)
    if not W2: c.e("s_waitcnt lgkmcnt(2)")
    c.e(f"v_mfma_f32_32x32x16_bf16 v[{O}:{O+15}], v[{Va}:{Va+3}], v[{P}:{P+3}], v[{O}:{O+15}]")
    flush()
    c.e(f"s_mov_b64 exec, s[{sVM}:{sVM+1}]")
    c.e(f"ds_read_b128 v[{Vb}:{Vb+3}], v{vV} offset:{j*T + 640}")
    c.e(f"ds_read_b128 v[{Va}:{Va+3}], v{vV} offset:{(j+1)*T}")
    c.e("s_mov_b64 exec, -1")
    ex(12)

PSTR = 35840
S9 = 4*PSTR

PROW = 656

def final_prefetch(c, F):
    vo, vn, vq, vt = F['vo'], F['vn'], F['vq'], F['vt']
    c.e(f"s_lshl_b32 s{sT0}, s{sW}, 6")
    c.e(f"v_add_u32 v{vq}, s{sT0}, v0")
    c.e(f"v_mul_u32_u24 v{vn}, 3277, v{vq}")
    c.e(f"v_lshrrev_b32 v{vn}, 16, v{vn}")
    c.e(f"v_mul_u32_u24 v{vt}, 20, v{vn}")
    c.e(f"v_sub_u32 v{vq}, v{vq}, v{vt}")
    c.e(f"s_mul_i32 s{sT1}, s{sFBK}, 320")
    c.e(f"v_lshlrev_b32 v{vt}, 4, v{vq}")
    c.e(f"v_add_u32 v{vt}, s{sT1}, v{vt}")
    c.vmem(f"buffer_load_dwordx4 v[{F['br']}:{F['br']+3}], v{vt}, s[{S_B2}:{S_B2+3}], 0 offen", "fin")
    c.e(f"s_lshl_b32 s{sT2}, s{sTO}, 5")
    c.e(f"v_add_u32 v{vo}, s{sT2}, v{vn}")
    c.e(f"v_mul_u32_u24 v{vo}, 1280, v{vo}")
    c.e(f"v_add_u32 v{vo}, v{vo}, v{vt}")
    c.e(f"v_cmp_gt_u32 vcc, 32, v{vn}")
    c.e(f"v_mov_b32 v{vt}, 0x7ffffff0")
    c.nop(1)
    c.e(f"v_cndmask_b32 v{vo}, v{vt}, v{vo}, vcc")
    c.vmem(f"buffer_load_dwordx4 v[{F['xr']}:{F['xr']+3}], v{vo}, s[{S_X}:{S_X+3}], 0 offen", "fin")
    c.e(f"v_min_u32 v{vn}, 31, v{vn}")
    c.e(f"v_mul_u32_u24 v{vn}, {PROW}, v{vn}")
    c.e(f"v_lshl_add_u32 v{vn}, v{vq}, 5, v{vn}")

def final_regs(base):
    a = Alloc(base, NV)
    F = dict(vo=a.get(), vn=a.get(), vq=a.get(), vt=a.get(), xr=a.get(4, 4), br=a.get(4, 4), rd=[a.get(4, 4) for _ in range(8)])
    return F, a.hi

def final_epilogue(c, F):
    vn, vq, vt, rd = F['vn'], F['vq'], F['vt'], F['rd']
    c.e(f"v_add_u32 v{vq}, {2*PSTR}, v{vn}")
    for k in range(4):
        base = vn if k < 2 else vq
        c.e(f"ds_read_b128 v[{rd[2*k]}:{rd[2*k]+3}], v{base} offset:{(k&1)*PSTR}")
        c.e(f"ds_read_b128 v[{rd[2*k+1]}:{rd[2*k+1]+3}], v{base} offset:{(k&1)*PSTR + 16}")
    c.e("s_waitcnt vmcnt(0) lgkmcnt(0)")
    for hf in range(2):
        for r in range(4):
            c.e(f"v_add_f32 v{rd[hf]+r}, v{rd[hf]+r}, v{rd[2+hf]+r}")
            c.e(f"v_add_f32 v{rd[4+hf]+r}, v{rd[4+hf]+r}, v{rd[6+hf]+r}")
        for r in range(4): c.e(f"v_add_f32 v{rd[hf]+r}, v{rd[hf]+r}, v{rd[4+hf]+r}")
    for src in (F['xr'], F['br']):
        for k in range(8):
            d = rd[k >> 2] + (k & 3)
            if k & 1: c.e(f"v_and_b32 v{vt}, 0xffff0000, v{src+(k>>1)}")
            else: c.e(f"v_lshlrev_b32 v{vt}, 16, v{src+(k>>1)}")
            c.e(f"v_add_f32 v{d}, v{d}, v{vt}")
    o = rd[2]
    for p in range(4):
        d = rd[p >> 1] + 2*(p & 1)
        c.e(f"v_cvt_pk_bf16_f32 v{o+p}, v{d}, v{d+1}")
    c.e(f"buffer_store_dwordx4 v[{o}:{o+3}], v{F['vo']}, s[{S_OUT}:{S_OUT+3}], 0 offen sc0 sc1")

def k2_args(c):
    c.e("s_waitcnt lgkmcnt(0)")
    c.stamp(0, real=True); c.stamp(1)
    srd(c, S_WS, 4, 5, WS_USED)

def k2_args2(c):
    srd(c, S_X, 6, 7, M*D*2)
    srd(c, S_B2, 24, 25, D*2)
    srd(c, S_OUT, 26, 27, M*D*2)

def gen_attn(c):
    a = Alloc(1, NV)
    vt, vt2, vn, vk = a.get(), a.get(), a.get(), a.get()
    vA, vB, vC = a.get(), a.get(), a.get()
    vL16 = a.get()
    vK0, vK1, vV = a.get(), a.get(), a.get()
    R = dict(S=[a.get(16, 4), a.get(16, 4)], P=a.get(8, 4), O=a.get(16, 4), K0=a.get(4, 4), K1=a.get(4, 4),
             Va=a.get(4, 4), Vb=a.get(4, 4), Q0=a.get(4, 4), Q1=a.get(4, 4), vK0=vK0, vK1=vK1, vV=vV)
    Q0, Q1, O, P = R['Q0'], R['Q1'], R['O'], R['P']
    c.e(f"s_lshr_b32 s{sT2}, s{sW}, 2")
    c.e(f"s_lshl_b32 s{sTT}, s{sRB}, 1")
    c.e(f"s_add_u32 s{sTT}, s{sTT}, s{sT2}")
    c.e(f"s_and_b32 s{sT2}, s{sW}, 3")
    c.e(f"s_lshl_b32 s{sHEAD}, s{sG}, 2")
    c.e(f"s_add_u32 s{sHEAD}, s{sHEAD}, s{sT2}")
    c.e(f"v_and_b32 v{vn}, 31, v0")
    c.e(f"v_lshrrev_b32 v{vt2}, 5, v0")
    c.e(f"s_mul_i32 s{sT0}, s{sHEAD}, 20")
    c.e(f"s_mul_i32 s{sT1}, s{sTT}, {40*1024}")
    c.e(f"v_lshlrev_b32 v{vk}, 2, v{vt2}")
    c.e(f"v_add_u32 v{vk}, s{sT0}, v{vk}")
    piece_addr(c, vA, vk, vn, vt, sT1)
    c.e(f"v_add_u32 v{vk}, 8, v{vk}")
    piece_addr(c, vB, vk, vn, vt, sT1)
    c.e(f"v_mov_b32 v{vk}, s{sT0}")
    c.e(f"v_add_u32 v{vk}, 16, v{vk}")
    piece_addr(c, vC, vk, vn, vt, sT1)
    k2_args(c)
    c.e(f"s_mov_b32 s{sT2}, {QF}")
    c.vmem(f"buffer_load_dwordx2 v[{Q0}:{Q0+1}], v{vA}, s[{S_WS}:{S_WS+3}], s{sT2} offen", "q")
    c.vmem(f"buffer_load_dwordx2 v[{Q0+2}:{Q0+3}], v{vB}, s[{S_WS}:{S_WS+3}], s{sT2} offen", "q")
    c.vmem(f"buffer_load_dwordx2 v[{Q1}:{Q1+1}], v{vC}, s[{S_WS}:{S_WS+3}], s{sT2} offen", "q")
    k2_args2(c)
    c.e(f"v_lshlrev_b32 v{vL16}, 4, v0")
    def base_addrs():
        c.e(f"v_mov_b32 v{vK0}, v{vL16}")
        c.e(f"v_lshlrev_b32 v{vK1}, 3, v{vn}")
        c.e(f"v_add_u32 v{vK1}, 1024, v{vK1}")
        c.e(f"v_lshrrev_b32 v{vt2}, 5, v0")
        c.e(f"v_mul_u32_u24 v{vV}, 20, v{vt2}")
        c.e(f"v_add_u32 v{vV}, v{vV}, v{vn}")
        c.e(f"v_lshlrev_b32 v{vV}, 4, v{vV}")
        c.e(f"v_add_u32 v{vV}, 1280, v{vV}")
        for r in range(16): c.e(f"v_mov_b32 v{O+r}, 0")
        for r in range(8): c.e(f"v_mov_b32 v{P+r}, 0")
    base_addrs()
    c.e(f"s_mov_b32 s{sVM}, 0x000fffff")
    c.e(f"s_mov_b32 s{sVM+1}, 0x000fffff")
    c.e(f"s_mov_b32 s{sFB}, 0")
    c.e(f"v_cmp_eq_u32 vcc, 20, v{vn}")
    c.e(f"v_mov_b32 v{vt}, 0x3f803f80")
    c.nop(1)
    for r in range(4):
        c.e(f"v_cndmask_b32 v{R['Va']+r}, 0, v{vt}, vcc")
        c.e(f"v_cndmask_b32 v{R['Vb']+r}, 0, v{vt}, vcc")
    c.wait_vm("q")
    c.e(f"v_cmp_gt_u32 vcc, 32, v0")
    c.nop(2)
    c.e(f"v_cndmask_b32 v{Q1}, 0, v{Q1}, vcc")
    c.e(f"v_cndmask_b32 v{Q1+1}, 0, v{Q1+1}, vcc")
    c.e("s_barrier")
    if 'clk' in EXP: c.stamp(2); c.stamp(3, real=True)
    elif 'tail' not in EXP: c.stamp(2)
    S0 = R['S'][0]
    c.e(f"ds_read_b128 v[{R['K0']}:{R['K0']+3}], v{vK0}")
    c.e(f"ds_read_b64 v[{R['K1']}:{R['K1']+1}], v{vK1}")
    c.e("s_waitcnt lgkmcnt(0)")
    c.e(f"v_mfma_f32_32x32x16_bf16 v[{S0}:{S0+15}], v[{R['K0']}:{R['K0']+3}], v[{Q0}:{Q0+3}], 0")
    c.e(f"v_mfma_f32_32x32x8_bf16 v[{S0}:{S0+15}], v[{R['K1']}:{R['K1']+1}], v[{Q1}:{Q1+1}], v[{S0}:{S0+15}]")
    c.e(f"ds_read_b128 v[{R['K0']}:{R['K0']+3}], v{vK0} offset:2560")
    c.e(f"ds_read_b64 v[{R['K1']}:{R['K1']+1}], v{vK1} offset:2560")
    c.e(f"s_mov_b64 exec, s[{sVM}:{sVM+1}]")
    c.e(f"ds_read_b128 v[{R['Vb']}:{R['Vb']+3}], v{vV}")
    c.e(f"ds_read_b128 v[{R['Va']}:{R['Va']+3}], v{vV}")
    c.e("s_mov_b64 exec, -1")
    c.e(f"s_mov_b32 s{sIT}, 0")
    c.nop(16)
    def loop(tag, pat):
        c.label(f"K2_LOOP{tag}")
        for j in range(4): attn_tile(c, R, j, pat)
        c.e(f"v_add_u32 v{vK0}, {4*2560}, v{vK0}")
        d, a_, b_ = R['pend']; c.e(f"v_cvt_pk_bf16_f32 v{d}, v{a_}, v{b_}"); R['pend'] = None
        c.e(f"v_add_u32 v{vK1}, {4*2560}, v{vK1}")
        c.e(f"v_add_u32 v{vV}, {4*2560}, v{vV}")
        c.e(f"s_add_u32 s{sIT}, s{sIT}, 1")
        c.e(f"s_cmp_eq_u32 s{sIT}, 2")
        c.e(f"s_cbranch_scc1 K2_BAR{tag}")
        c.e(f"s_cmp_lg_u32 s{sIT}, 14")
        c.e(f"s_cbranch_scc1 K2_NOBAR{tag}")
        c.e("s_waitcnt lgkmcnt(0)")
        c.label(f"K2_BAR{tag}")
        c.e("s_barrier")
        c.label(f"K2_NOBAR{tag}")
        c.e(f"s_cmp_lt_u32 s{sIT}, 16")
        c.e(f"s_cbranch_scc1 K2_LOOP{tag}")
    if 'sym' != EXP:
        m_ = re.search(r"asym=([0-9\-]{4})([0-9\-]{4})", EXP)
        pa, pb = m_.groups() if m_ else ('3--0', '2--1')
        c.e(f"s_cmp_ge_u32 s{sW}, 4")
        c.e("s_cbranch_scc1 K2_LOOPB")
        loop("A", pa)
        c.e("s_branch K2_LOOPX")
        loop("B", pb)
        c.label("K2_LOOPX")
    else:
        loop("", None)
    c.e("s_waitcnt lgkmcnt(0)")
    c.nop(2)
    c.e(f"v_mfma_f32_32x32x16_bf16 v[{O}:{O+15}], v[{R['Vb']}:{R['Vb']+3}], v[{P+4}:{P+7}], v[{O}:{O+15}]")
    c.nop(16)
    if 'clk' in EXP: c.stamp(4); c.stamp(5, real=True)
    elif 'tail' not in EXP: c.stamp(3)
    c.label("K2_LEXT")
    c.e(f"v_mov_b32 v{vt}, v{O+8}")
    c.e(f"v_mov_b32 v{vt2}, v{O+8}")
    c.nop(2)
    c.e(f"v_permlane32_swap_b32 v{vt}, v{vt2}")
    c.nop(2)
    c.e(f"v_cmp_gt_u32 vcc, 32, v0")
    c.nop(2)
    c.e(f"v_cndmask_b32 v{vt}, v{O+8}, v{vt2}, vcc")
    c.e(f"s_cmp_lg_u32 s{sFB}, 0")
    c.e("s_cbranch_scc1 K2_NORM")
    c.e(f"v_mov_b32 v{vk}, {fhex(2.0**-60)}")
    c.e(f"v_cmp_ge_f32 s[4:5], v{vt}, v{vk}")
    c.e(f"v_mov_b32 v{vk}, {fhex(2.0**120)}")
    c.e(f"v_cmp_le_f32 s[6:7], v{vt}, v{vk}")
    c.e("s_and_b64 s[4:5], s[4:5], s[6:7]")
    t_ = R['S'][1]
    c.e(f"v_add_f32 v{t_}, v{O}, v{O+1}")
    c.e(f"v_add_f32 v{t_+1}, v{O+2}, v{O+3}")
    for r in range(4, 12, 2):
        c.e(f"v_add_f32 v{t_}, v{t_}, v{O+r}")
        c.e(f"v_add_f32 v{t_+1}, v{t_+1}, v{O+r+1}")
    c.e(f"v_add_f32 v{t_}, v{t_}, v{t_+1}")
    c.e(f"v_mov_b32 v{vk}, 0x7f800000")
    c.e(f"v_cmp_lt_f32 s[6:7], |v{t_}|, v{vk}")
    c.e("s_and_b64 s[4:5], s[4:5], s[6:7]")
    if 'forcefb' in EXP: c.e("s_mov_b64 s[4:5], 0")
    c.e("s_cmp_eq_u64 s[4:5], -1")
    c.e("s_cbranch_scc1 K2_NORM")
    vM = vk
    K0, K1, Va, Vb = R['K0'], R['K1'], R['Va'], R['Vb']
    base_addrs()
    c.e(f"v_mov_b32 v{vM}, 0xff800000")
    c.e(f"v_mov_b32 v{K1}, 0x3f803f80")
    c.e(f"v_mov_b32 v{K1+1}, 0x00003f80")
    c.e(f"s_mov_b32 s{sIT}, {KV}")
    def gl_k():
        c.e(f"buffer_load_dwordx4 v[{K0}:{K0+3}], v{vK0}, s[{S_WS}:{S_WS+3}], s{sIT} offen")
        c.e("s_mov_b64 exec, 0xffffffff")
        c.e(f"buffer_load_dwordx2 v[{K1}:{K1+1}], v{vK1}, s[{S_WS}:{S_WS+3}], s{sIT} offen")
        c.e("s_mov_b64 exec, -1")
    def qk():
        c.e(f"v_mfma_f32_32x32x16_bf16 v[{S0}:{S0+15}], v[{K0}:{K0+3}], v[{Q0}:{Q0+3}], 0")
        c.e(f"v_mfma_f32_32x32x8_bf16 v[{S0}:{S0+15}], v[{K1}:{K1+1}], v[{Q1}:{Q1+1}], v[{S0}:{S0+15}]")
        c.nop(20)
    c.label("K2_FBL")
    gl_k()
    c.e("s_waitcnt vmcnt(0)")
    qk()
    for r in range(0, 16, 2):
        c.e(f"v_max3_f32 v{vM}, v{vM}, v{S0+r}, v{S0+r+1}")
    c.e(f"s_add_u32 s{sIT}, s{sIT}, 2560")
    c.e(f"s_cmp_lt_u32 s{sIT}, {KV + 64*2560}")
    c.e("s_cbranch_scc1 K2_FBL")
    c.e(f"v_mov_b32 v{vt}, v{vM}")
    c.nop(2)
    c.e(f"v_permlane32_swap_b32 v{vM}, v{vt}")
    c.nop(2)
    c.e(f"v_max_f32 v{vM}, v{vM}, v{vt}")
    t0, t1, t2 = R['S'][1], R['S'][1]+1, R['S'][1]+2
    c.e(f"v_sub_f32 v{vM}, 0, v{vM}")
    c.e(f"v_cvt_pk_bf16_f32 v{t0}, v{vM}, v{vM}")
    c.e(f"v_and_b32 v{t0}, 0xffff0000, v{t0}")
    c.e(f"v_sub_f32 v{vM}, v{vM}, v{t0}")
    c.e(f"v_cvt_pk_bf16_f32 v{t1}, v{vM}, v{vM}")
    c.e(f"v_and_b32 v{t1}, 0xffff0000, v{t1}")
    c.e(f"v_sub_f32 v{vM}, v{vM}, v{t1}")
    c.e(f"v_cvt_pk_bf16_f32 v{t0}, v{t0}, v{t1}")
    c.e(f"v_mov_b32 v{t2}, 0")
    c.e(f"v_cvt_pk_bf16_f32 v{t1}, v{vM}, v{t2}")
    c.e(f"v_cmp_gt_u32 vcc, 32, v0")
    c.nop(2)
    c.e(f"v_cndmask_b32 v{Q1}, v{t0}, v{Q1}, vcc")
    c.e(f"v_cndmask_b32 v{Q1+1}, v{t1}, v{Q1+1}, vcc")
    c.e(f"s_mov_b32 s{sIT}, {KV}")
    c.label("K2_FB2")
    gl_k()
    c.e(f"s_mov_b64 exec, s[{sVM}:{sVM+1}]")
    c.e(f"buffer_load_dwordx4 v[{Va}:{Va+3}], v{vV}, s[{S_WS}:{S_WS+3}], s{sIT} offen")
    c.e(f"buffer_load_dwordx4 v[{Vb}:{Vb+3}], v{vV}, s[{S_WS}:{S_WS+3}], s{sIT} offen offset:640")
    c.e("s_mov_b64 exec, -1")
    c.e("s_waitcnt vmcnt(0)")
    qk()
    for r in range(16): c.e(f"v_exp_f32 v{S0+r}, v{S0+r}")
    c.nop(2)
    for p in range(8): c.e(f"v_cvt_pk_bf16_f32 v{P+p}, v{S0+2*p}, v{S0+2*p+1}")
    c.nop(2)
    c.e(f"v_mfma_f32_32x32x16_bf16 v[{O}:{O+15}], v[{Va}:{Va+3}], v[{P}:{P+3}], v[{O}:{O+15}]")
    c.e(f"v_mfma_f32_32x32x16_bf16 v[{O}:{O+15}], v[{Vb}:{Vb+3}], v[{P+4}:{P+7}], v[{O}:{O+15}]")
    c.e(f"s_add_u32 s{sIT}, s{sIT}, 2560")
    c.e(f"s_cmp_lt_u32 s{sIT}, {KV + 64*2560}")
    c.e("s_cbranch_scc1 K2_FB2")
    c.nop(20)
    c.e(f"s_mov_b32 s{sFB}, 1")
    c.e("s_branch K2_LEXT")
    c.label("K2_NORM")
    c.e(f"v_rcp_f32 v{vt}, v{vt}")
    c.e(f"v_cmp_gt_u32 vcc, 32, v0")
    for r in range(12): c.e(f"v_mul_f32 v{O+r}, v{O+r}, v{vt}")
    for p in range(6): c.e(f"v_cvt_pk_bf16_f32 v{O+p}, v{O+2*p}, v{O+2*p+1}")
    c.e(f"s_mul_i32 s{sT2}, s{sTT}, {40*1024}")
    c.e(f"s_add_u32 s{sT2}, s{sT2}, {OF}")
    c.e(f"s_lshl_b32 s{sT0}, s{sHEAD}, 10")
    c.e(f"s_add_u32 s{sT0}, s{sT0}, s{sT2}")
    c.e(f"s_lshl_b32 s{sT1}, s{sHEAD}, 8")
    c.e(f"s_add_u32 s{sT1}, s{sT1}, s{sT2}")
    c.e(f"s_add_u32 s{sT1}, s{sT1}, 32768")
    c.e(f"v_lshlrev_b32 v{vt}, 3, v0")
    c.e(f"buffer_store_dwordx4 v[{O}:{O+3}], v{vL16}, s[{S_WS}:{S_WS+3}], s{sT0} offen sc1")
    c.e("s_and_saveexec_b64 s[4:5], vcc")
    c.e(f"buffer_store_dwordx2 v[{O+4}:{O+5}], v{vt}, s[{S_WS}:{S_WS+3}], s{sT1} offen sc1")
    c.e("s_mov_b64 exec, -1")
    if 'waitst' in EXP: c.e("s_waitcnt vmcnt(0)")
    c.e("s_barrier")
    if 'clk' not in EXP: c.stamp(4)
    c.e("s_setprio 0")
    final_prefetch(c, FIN)
    c.e("s_barrier")
    if 'tail' in EXP and 'clk' not in EXP: c.stamp(2)
    c.e("s_branch K2_FINAL")
    return a.hi

def gen_gemm(c):
    a = Alloc(1, NV)
    vt, vL16, vF = a.get(), a.get(), a.get()
    acc = [a.get(16, 4) for _ in range(5)]
    fA = [[a.get(4, 4) for _ in range(5)] for _ in range(2)]
    oB = [a.get(4, 4) for _ in range(10)]
    fB = oB[:2]
    c.e("s_setprio 3")
    c.e(f"v_lshlrev_b32 v{vL16}, 4, v0")
    c.e(f"s_lshl_b32 s{sT1}, s{sGW}, 10")
    k2_args(c)
    def kv(i):
        c.e(f"s_add_u32 m0, s{sT1}, {4096*i}")
        c.e(f"s_add_u32 s{sT2}, s{sT1}, {KV + 4096*i}")
        c.vmem(f"buffer_load_dwordx4 v{vL16}, s[{S_WS}:{S_WS+3}], s{sT2} offen lds", f"kv{i}")
    NP = int(os.environ.get('NP', '7'))
    for i in range(NP): kv(i)
    k2_args2(c)
    for t in range(5):
        for r in range(16): c.e(f"v_mov_b32 v{acc[t]+r}, 0")
    c.wait_vm("kv6")
    c.e("s_barrier")
    for i in range(NP, 40): kv(i)
    c.wait_vm0()
    c.e("s_barrier")
    c.e(f"s_setprio {GP}")
    if 'tail' not in EXP: c.stamp(2)
    FL = " sc1" if 'fsc1' in EXP else (" nt" if 'fnt' in EXP else (" sc0" if 'fsc0' in EXP else ""))
    def loads(b, tag, nb=True, sc=""):
        if nb: c.vmem(f"buffer_load_dwordx4 v[{fB[b]}:{fB[b]+3}], v{vL16}, s[{S_WS}:{S_WS+3}], s{sB} offen{FL}", tag)
        for t in range(5):
            if t < 4: c.vmem(f"buffer_load_dwordx4 v[{fA[b][t]}:{fA[b][t]+3}], v{vL16}, s[{S_WS}:{S_WS+3}], s{sA} offen offset:{1024*t}{FL}", tag)
            else:
                c.e(f"s_add_u32 s{sAS}, s{sA}, 4096")
                c.vmem(f"buffer_load_dwordx4 v[{fA[b][t]}:{fA[b][t]+3}], v{vL16}, s[{S_WS}:{S_WS+3}], s{sAS} offen{FL}", tag)
        c.e(f"s_add_u32 s{sA}, s{sA}, 5120")
        if nb: c.e(f"s_add_u32 s{sB}, s{sB}, 1024")
    def mfmas(b, B=None):
        B = fB[b] if B is None else B
        for t in range(5):
            c.e(f"v_mfma_f32_32x32x16_bf16 v[{acc[t]}:{acc[t]+15}], v[{fA[b][t]}:{fA[b][t]+3}], v[{B}:{B+3}], v[{acc[t]}:{acc[t]+15}]")
    c.e(f"s_mul_i32 s{sA}, s{sFBK}, {108*5120}")
    c.e(f"s_mul_i32 s{sT0}, s{sGW}, {27*5120}")
    c.e(f"s_add_u32 s{sA}, s{sA}, s{sT0}")
    c.e(f"s_add_u32 s{sA}, s{sA}, {W2F}")
    c.e(f"s_mul_i32 s{sB}, s{sTO}, {108*1024}")
    c.e(f"s_mul_i32 s{sT0}, s{sGW}, {27*1024}")
    c.e(f"s_add_u32 s{sB}, s{sB}, s{sT0}")
    c.e(f"s_add_u32 s{sB}, s{sB}, {HF}")
    loads(0, "p")
    c.e(f"s_mov_b32 s{sIT}, {12 if 'noffn' in EXP else 0}")
    c.label("K2_GL")
    c.vm = ["a"]*6
    loads(1, "b"); c.wait_vm("a"); mfmas(0)
    loads(0, "a"); c.wait_vm("b"); mfmas(1)
    c.e(f"s_add_u32 s{sIT}, s{sIT}, 1")
    c.e(f"s_cmp_lt_u32 s{sIT}, 13")
    c.e("s_cbranch_scc1 K2_GL")
    c.wait_vm0(); mfmas(0)
    if 'tail' not in EXP: c.stamp(3)
    c.e(f"s_mul_i32 s{sA}, s{sFBK}, {40*5120}")
    c.e(f"s_mul_i32 s{sT0}, s{sGW}, {10*5120}")
    c.e(f"s_add_u32 s{sA}, s{sA}, s{sT0}")
    c.e(f"s_add_u32 s{sA}, s{sA}, {WOF}")
    loads(0, "w0", nb=False); loads(1, "w1", nb=False)
    c.e(f"v_lshlrev_b32 v{vt}, 7, v0")
    for i in range(5):
        c.e(f"s_add_u32 s{sAS}, s{sA}, {8192*i}")
        c.vmem(f"buffer_load_dword v{oB[2]+i}, v{vt}, s[{S_WS}:{S_WS+3}], s{sAS} offen", "warm")
    c.e(f"s_mul_i32 s{sPB}, s{sTO}, {40*1024}")
    c.e(f"s_add_u32 s{sPB}, s{sPB}, {OF}")
    c.e(f"s_lshl_b32 s{sT0}, s{sGW}, 13")
    c.e(f"s_add_u32 s{sB}, s{sPB}, s{sT0}")
    c.e(f"s_lshl_b32 s{sT0}, s{sGW}, 11")
    c.e(f"s_add_u32 s{sPB}, s{sPB}, s{sT0}")
    c.e(f"s_add_u32 s{sPB}, s{sPB}, 32768")
    c.e(f"s_mul_i32 s{sT1}, s{sGW}, {PSTR}")
    c.e(f"v_add_u32 v{vF}, s{sT1}, v{vL16}")
    vP = a.get(); vR = a.get(); vF9 = a.get()
    c.e(f"v_and_b32 v{vR}, 31, v0")
    c.e(f"v_lshlrev_b32 v{vR}, 3, v{vR}")
    c.e(f"v_lshrrev_b32 v{vP}, 5, v0")
    c.e(f"v_lshl_add_u32 v{vR}, v{vP}, 8, v{vR}")
    c.e(f"v_and_b32 v{vP}, 7, v0")
    c.e(f"v_lshlrev_b32 v{vP}, 8, v{vP}")
    c.e(f"v_lshrrev_b32 v{vt}, 3, v0")
    c.e(f"v_lshl_add_u32 v{vP}, v{vt}, 5, v{vP}")
    c.e("s_barrier")
    def wdma(i, dst, tag):
        c.e(f"s_add_u32 m0, s{sT1}, {dst}")
        c.e(f"s_add_u32 s{sT2}, s{sA}, {1024*i}")
        c.vmem(f"buffer_load_dwordx4 v{vL16}, s[{S_WS}:{S_WS+3}], s{sT2} offen lds", tag)
    for i in range(35): wdma(i, 1024*i, f"d{i//5 + 2}")
    if 'tail' in EXP: c.stamp(2)
    c.e("s_barrier")
    c.stamp(4)
    c.e("s_setprio 3")
    c.e(f"s_mul_i32 s{sT1}, s{sGW}, 5120")
    for i in range(35, 40): wdma(i, S9 + 1024*(i-35), "d9")
    c.e(f"v_add_u32 v{vF9}, s{sT1}, v{vL16}")
    c.e(f"v_add_u32 v{vF9}, {S9}, v{vF9}")
    def oloads():
        for i in range(8):
            q, r_ = divmod(i, 4)
            if r_ == 0 and q: c.e(f"s_add_u32 s{sAS}, s{sB}, 4096")
            sb = sB if q == 0 else sAS
            c.vmem(f"buffer_load_dwordx4 v[{oB[i]}:{oB[i]+3}], v{vL16}, s[{S_WS}:{S_WS+3}], s{sb} offen offset:{r_*1024} sc1", "o")
        for i in range(2):
            c.vmem(f"buffer_load_dwordx2 v[{oB[8+i]}:{oB[8+i]+1}], v{vR}, s[{S_WS}:{S_WS+3}], s{sPB} offen offset:{i*1024} sc1", "o")
            c.vmem(f"buffer_load_dwordx2 v[{oB[8+i]+2}:{oB[8+i]+3}], v{vR}, s[{S_WS}:{S_WS+3}], s{sPB} offen offset:{i*1024+512} sc1", "o")
    def ocheck():
        c.e(f"v_max_u32 v{vt}, v{oB[0]}, v{oB[0]+1}")
        regs = [oB[0]+2, oB[0]+3] + [oB[i]+r for i in range(1, 10) for r in range(4)]
        for k in range(0, len(regs), 2):
            c.e(f"v_max3_u32 v{vt}, v{vt}, v{regs[k]}, v{regs[k+1]}")
        c.e(f"v_cmp_eq_u32 vcc, -1, v{vt}")
        c.e("s_nop 1")
        c.e("s_cmp_eq_u64 vcc, 0")
    c.e(f"s_mov_b32 s{sSPIN}, 0")
    c.e("s_sleep %d" % int(re.search(r"slp=(\d+)", EXP).group(1) if 'slp=' in EXP else 4))
    c.label("K2_POLL")
    oloads()
    c.e("s_waitcnt vmcnt(0)")
    ocheck()
    c.e("s_cbranch_scc1 K2_GOT")
    c.e(f"s_add_u32 s{sSPIN}, s{sSPIN}, 1")
    c.e("s_sleep 2")
    c.e(f"s_cmp_lt_u32 s{sSPIN}, 0x40000")
    c.e("s_cbranch_scc1 K2_POLL")
    c.label("K2_GOT")
    c.vm = []
    c.stamp(5)
    def lreads(step):
        b = step & 1
        for t in range(5):
            if step < 9: c.lds(f"ds_read_b128 v[{fA[b][t]}:{fA[b][t]+3}], v{vF} offset:{((step-2)*5 + t)*1024}", f"r{step}")
            else: c.lds(f"ds_read_b128 v[{fA[b][t]}:{fA[b][t]+3}], v{vF9} offset:{t*1024}", f"r{step}")
    c.e(f"v_and_b32 v{vP}, 31, v0")
    c.e(f"v_mul_u32_u24 v{vP}, {PROW}, v{vP}")
    c.e(f"v_lshrrev_b32 v{vR}, 5, v0")
    c.e(f"v_lshl_add_u32 v{vP}, v{vR}, 4, v{vP}")
    c.e(f"s_mul_i32 s{sT0}, s{sGW}, {PSTR}")
    c.e(f"v_add_u32 v{vP}, s{sT0}, v{vP}")
    mfmas(0, oB[0]); lreads(2)
    mfmas(1, oB[1]); lreads(3)
    for i in range(2, 10):
        c.wait_lg(f"r{i}")
        mfmas(i & 1, oB[i])
        if i + 2 < 10: lreads(i + 2)
        if i == 3: final_prefetch(c, FING)
    if 'tail' in EXP: c.stamp(3)
    c.nop(16)
    for t in range(5):
        for j in range(4):
            c.e(f"ds_write_b128 v{vP}, v[{acc[t]+4*j}:{acc[t]+4*j+3}] offset:{(32*t + 8*j)*4}")
    c.e("s_waitcnt lgkmcnt(0)")
    c.e("s_barrier")
    return a.hi

FIN, FINHI = final_regs(124)
FING = FIN

def gen_k2f():
    c = Code()
    c.e("s_cmp_ge_u32 s2, 256")
    c.e("s_cbranch_scc1 K2_END")
    c.e("s_load_dwordx2 s[4:5], s[0:1], 96")
    c.e("s_load_dwordx2 s[6:7], s[0:1], 0")
    c.e("s_load_dwordx4 s[24:27], s[0:1], 72")
    c.e("v_lshrrev_b32 v1, 6, v0")
    c.e("v_and_b32 v0, 63, v0")
    c.e(f"v_readfirstlane_b32 s{sW}, v1")
    c.e(f"s_and_b32 s{sRB}, s2, 31")
    c.e(f"s_lshr_b32 s{sG}, s2, 5")
    c.e(f"s_lshr_b32 s{sT0}, s{sG}, 2")
    c.e(f"s_lshl_b32 s{sTO}, s{sRB}, 1")
    c.e(f"s_add_u32 s{sTO}, s{sTO}, s{sT0}")
    c.e(f"s_and_b32 s{sFBK}, s{sG}, 3")
    c.e(f"s_sub_u32 s{sGW}, s{sW}, 8")
    c.e(f"s_cmp_ge_u32 s{sW}, 8")
    c.e("s_cbranch_scc1 K2_GEMM")
    ca = Code(); h1 = gen_attn(ca); c.lines += ca.lines
    c.label("K2_GEMM")
    cg = Code(); h2 = gen_gemm(cg); c.lines += cg.lines
    c.label("K2_FINAL")
    final_epilogue(c, FIN)
    c.label("K2_DONE")
    c.finish(1, sW, S_WS)
    c.label("K2_END")
    c.e("s_endpgm")
    return c.text(), max(h1, h2, FINHI), K2_LDS
```

```python
from core import *
EXP = os.environ.get('EXP', '')

def trace(c, idx, vt):
    if 'trace' not in EXP: return
    c.e('s_memtime s[76:77]'); c.e('s_waitcnt lgkmcnt(0)'); c.lg = []
    c.e(f's_lshl_b32 s78, s{sW}, 7'); c.e(f's_add_u32 s78, s78, {TRC + 4*idx}')
    c.e(f'v_mov_b32 v{vt}, s78'); c.e(f'v_mov_b32 v{vt+1}, s76'); c.lds(f'ds_write_b32 v{vt}, v{vt+1}')

def trace_dyn(c, idx0, sreg, vt):
    if 'trace' not in EXP: return
    c.e('s_memtime s[76:77]'); c.e('s_waitcnt lgkmcnt(0)'); c.lg = []
    c.e(f's_lshl_b32 s78, s{sW}, 7'); c.e(f's_lshl_b32 s79, s{sreg}, 3'); c.e('s_add_u32 s78, s78, s79'); c.e(f's_add_u32 s78, s78, {TRC + 4*idx0}')
    c.e(f'v_mov_b32 v{vt}, s78'); c.e(f'v_mov_b32 v{vt+1}, s76'); c.e(f'ds_write_b32 v{vt}, v{vt+1}')

def trace_dump(c, vt):
    if 'trace' not in EXP: return
    c.e('s_waitcnt lgkmcnt(0)')
    c.e(f's_lshl_b32 s78, s{sW}, 7'); c.e(f'v_lshlrev_b32 v{vt}, 2, v0'); c.e(f'v_add_u32 v{vt+1}, s78, v{vt}'); c.e(f'v_add_u32 v{vt+1}, {TRC}, v{vt+1}')
    c.e(f'ds_read_b32 v{vt+1}, v{vt+1}'); c.e('s_waitcnt lgkmcnt(0)')
    c.e(f's_lshl_b32 s79, s2, 4'); c.e(f's_add_u32 s79, s79, s{sW}'); c.e('s_lshl_b32 s79, s79, 7'); c.e(f's_add_u32 s79, s79, {STAMP + 2*262144}')
    c.e('s_mov_b64 exec, 0xffffffff'); c.e(f'buffer_store_dword v{vt+1}, v{vt}, s[{S_O}:{S_O+3}], s79 offen'); c.e('s_mov_b64 exec, -1')

DIRECT = 'service' not in EXP
PRIO_C = int(os.environ.get('PC', '2')); PRIO_X = int(os.environ.get('PX', '0'))
SLOT = 36864
XOFF = 20480
CSP  = 4*SLOT
ST   = CSP + 5120
RS   = ST + 2048
TRC  = RS + 512
K1_LDS = RS + 512 + (2048 if 'trace' in EXP else 0)
BAUG = 3*SLOT
AAUG = BAUG + 4096
OUTB = AAUG + 5120
EPS = 1e-5
QSCALE = (20 ** -0.5) * math.log2(math.e)

S_X, S_W, S_O, S_B, S_SJ, S_SO, S_D, S_D2 = 8, 12, 16, 20, 44, 48, 96, 4
sW, sTW, sFH, sTB, sFT, sSTR, sWOFF, sXOFF, sW1K, sW2K, sOUT, sISH, sT0, sT1, sT2, sT3, sKB, sCH, sXB, sMASK, sSEG, sSLD, sKB2, sCOL = range(52, 76)

def k1_prologue(c):
    c.e("s_cmp_ge_u32 s2, 256")
    c.e("s_cbranch_scc1 K1_END")
    if 'ent' in EXP and STAMPS: c.e("s_memrealtime s[90:91]")
    if 'notouch' not in EXP:
        c.e("s_getpc_b64 s[4:5]")
        c.label("K1_PC")
        c.e("v_lshlrev_b32 v1, 7, v0")
        c.e(f"s_sub_u32 s4, s4, K1_PC-k1_kernel")
        c.e(f"s_subb_u32 s5, s5, 0")
        c.e(f"s_and_b32 s5, s5, 0xffff")
        c.e(f"s_mov_b32 s6, CODE_END-k1_kernel")
        c.e(f"s_mov_b32 s7, 0x20000")
        c.e(f"buffer_load_dword v167, v1, s[4:7], 0 offen")
    c.e("s_load_dwordx4 s[24:27], s[0:1], 0")
    c.e("s_load_dwordx4 s[36:39], s[0:1], 48")
    c.e("s_load_dwordx4 s[28:31], s[0:1], 16")
    c.e("s_load_dwordx2 s[32:33], s[0:1], 32")
    c.e("s_load_dwordx2 s[40:41], s[0:1], 64")
    c.e("s_load_dwordx4 s[76:79], s[0:1], 88")
    c.e("v_lshrrev_b32 v1, 6, v0")
    c.e("v_and_b32 v0, 63, v0")
    c.e(f"v_readfirstlane_b32 s{sW}, v1")
    c.e("s_and_b32 s3, s2, 7")
    c.e(f"s_lshr_b32 s{sT0}, s2, 3")
    c.e(f"s_and_b32 s{sTB}, s3, 1")
    c.e(f"s_lshl_b32 s{sTB}, s{sTB}, 3")
    c.e(f"s_and_b32 s{sT1}, s{sT0}, 7")
    c.e(f"s_add_u32 s{sTB}, s{sTB}, s{sT1}")
    c.e(f"s_lshr_b32 s{sFT}, s3, 1")
    c.e(f"s_lshl_b32 s{sFT}, s{sFT}, 2")
    c.e(f"s_lshr_b32 s{sT1}, s{sT0}, 3")
    c.e(f"s_add_u32 s{sFT}, s{sFT}, s{sT1}")
    c.e(f"s_sub_u32 s{sFT}, s{sFT}, 1")
    c.e(f"s_min_u32 s{sFT}, s{sFT}, 15")
    c.e(f"s_and_b32 s{sTW}, s{sW}, 3")
    c.e(f"s_lshr_b32 s{sFH}, s{sW}, 2")
    c.e(f"s_cmp_lt_u32 s{sFT}, 4")
    c.e(f"s_cselect_b32 s{sISH}, 0, 1")
    c.e(f"s_cselect_b32 s{sCOL}, 0, 4")
    c.e(f"s_movk_i32 s{sSTR}, 3456")
    c.e(f"s_cselect_b32 s{sSTR}, 1280, s{sSTR}")
    c.e(f"s_sub_u32 s{sCOL}, s{sFT}, s{sCOL}")
    c.e(f"s_mul_i32 s{sKB2}, s{sCOL}, 10")
    c.e(f"s_mul_i32 s{sCOL}, s{sCOL}, 320")

def wait_args(c):
    c.e("s_waitcnt lgkmcnt(0)")
    c.e("s_mov_b32 s42, s78"); c.e("s_mov_b32 s43, s79")
    c.e("s_mov_b32 s6, s76"); c.e("s_mov_b32 s7, s77")
    c.stamp(0, real=True)
    c.stamp(1)

def srd_w(c):
    c.e(f"s_cmp_eq_u32 s{sISH}, 0")
    c.e(f"s_cselect_b32 s{S_W}, s26, s36")
    c.e(f"s_cselect_b32 s{S_W+1}, s27, s37")
    c.e(f"s_mov_b32 s{S_W+2}, {640*1728*2}")
    c.e(f"s_cselect_b32 s{S_W+2}, {640*640*2}, s{S_W+2}")
    c.e(f"s_add_u32 s{S_W}, s{S_W}, s{sCOL}")
    c.e(f"s_addc_u32 s{S_W+1}, s{S_W+1}, 0")
    c.e(f"s_and_b32 s{S_W+1}, s{S_W+1}, 0xffff")
    c.e(f"s_sub_u32 s{S_W+2}, s{S_W+2}, s{sCOL}")
    c.e(f"s_mov_b32 s{S_W+3}, 0x20000")

def side_job_setup(c):
    c.e(f"s_mov_b32 s{sSEG}, 5120")
    c.e(f"s_sub_u32 s5, s2, 108")
    c.e(f"s_cmp_lt_u32 s5, 108")
    c.e(f"s_cselect_b32 s{sT0}, s40, s32")
    c.e(f"s_cselect_b32 s{sT1}, s41, s33")
    c.e(f"s_cselect_b32 s{sKB}, s5, 0")
    c.e(f"s_mov_b32 s{sT2}, {108*5120}")
    c.e(f"s_mov_b32 s{sT3}, {W2F}")
    c.e(f"s_mul_i32 s3, s{sKB}, {16*1280}")
    c.e(f"s_cbranch_scc1 K1_SJ1")
    c.e(f"s_mov_b32 s{sT2}, {40*5120}")
    c.e(f"s_mov_b32 s{sT3}, {WOF}")
    c.e(f"s_sub_u32 s{sKB}, s5, 108")
    c.e(f"s_mul_i32 s3, s{sKB}, 26")
    c.e(f"s_lshr_b32 s3, s3, 8")
    c.e(f"s_mul_i32 s4, s3, 10")
    c.e(f"s_sub_u32 s4, s{sKB}, s4")
    c.e(f"s_cmp_lt_u32 s4, 8")
    c.e(f"s_cbranch_scc0 K1_SJR")
    c.e(f"s_lshl_b32 s3, s3, 3")
    c.e(f"s_add_u32 s3, s3, s4")
    c.e(f"s_mul_i32 s3, s3, {20*1280}")
    c.e(f"s_branch K1_SJ1")
    c.label("K1_SJR")
    c.e(f"s_lshl_b32 s3, s3, 1")
    c.e(f"s_add_u32 s3, s3, s4")
    c.e(f"s_sub_u32 s3, s3, 8")
    c.e(f"s_mul_i32 s3, s3, {80*1280}")
    c.e(f"s_add_u32 s3, s3, {16*1280}")
    c.e(f"s_mov_b32 s{sSEG}, {20*1280}")
    c.label("K1_SJ1")
    c.e(f"s_add_u32 s{S_SJ}, s{sT0}, s3")
    c.e(f"s_addc_u32 s{S_SJ+1}, s{sT1}, 0")
    c.e(f"s_and_b32 s{S_SJ+1}, s{S_SJ+1}, 0xffff")
    c.e(f"s_mul_i32 s4, s{sSEG}, 3")
    c.e(f"s_add_u32 s4, s4, 5120")
    c.e(f"s_cmp_lt_u32 s5, 148")
    c.e(f"s_cselect_b32 s{S_SJ+2}, s4, 0")
    c.e(f"s_cselect_b32 s{S_SO+2}, {WS_USED}, 0")
    c.e(f"s_mov_b32 s{S_SJ+3}, 0x20000")
    c.e(f"s_mov_b32 s{S_SO}, s42")
    c.e(f"s_and_b32 s{S_SO+1}, s43, 0xffff")
    c.e(f"s_mov_b32 s{S_SO+3}, 0x20000")
    c.e(f"s_mul_i32 s3, s{sKB}, 5120")
    c.e(f"s_add_u32 s{sT3}, s{sT3}, s3")

def x_dma_addr(c, vXa, vXb, vt):
    c.e(f"s_lshl_b32 s{sT0}, s{sTB}, 7")
    c.e(f"s_lshl_b32 s{sT1}, s{sTW}, 5")
    c.e(f"s_add_u32 s{sT0}, s{sT0}, s{sT1}")
    c.e(f"v_lshrrev_b32 v{vt}, 3, v0")
    c.e(f"v_add_u32 v{vt}, s{sT0}, v{vt}")
    c.e(f"v_mul_u32_u24 v{vXa}, 1280, v{vt}")
    c.e(f"v_and_b32 v{vt}, 7, v0")
    c.e(f"v_lshrrev_b32 v{vXb}, 4, v0")
    c.e(f"v_xor_b32 v{vt}, v{vt}, v{vXb}")
    c.e(f"v_lshlrev_b32 v{vt}, 4, v{vt}")
    c.e(f"v_xor_b32 v{vXb}, 64, v{vt}")
    c.e(f"v_add_u32 v{vXb}, v{vXa}, v{vXb}")
    c.e(f"v_add_u32 v{vXb}, 10240, v{vXb}")
    c.e(f"v_add_u32 v{vXa}, v{vXa}, v{vt}")

def x_read_addr(c, vRX, vt, vt2):
    c.e(f"v_and_b32 v{vt}, 31, v0")
    c.e(f"v_bfe_u32 v{vt2}, v0, 1, 3")
    c.e(f"v_lshrrev_b32 v{vRX}, 5, v0")
    c.e(f"v_xor_b32 v{vt2}, v{vt2}, v{vRX}")
    c.e(f"v_lshlrev_b32 v{vt2}, 4, v{vt2}")
    c.e(f"s_lshl_b32 s{sT0}, s{sTW}, 5")
    c.e(f"v_add_u32 v{vt}, s{sT0}, v{vt}")
    c.e(f"v_lshlrev_b32 v{vt}, 7, v{vt}")
    c.e(f"v_add_u32 v{vt}, v{vt}, v{vt2}")
    c.e(f"v_add_u32 v{vRX}, {XOFF}, v{vt}")
    for k in range(1, 4):
        c.e(f"v_xor_b32 v{vRX+k}, {32*k}, v{vRX}")
    for k in range(4):
        c.e(f"v_add_u32 v{vRX+4+k}, {2*SLOT}, v{vRX+k}")

def tr_addr(c, vd, rowstride, hmul, vt):
    c.e(f"v_lshrrev_b32 v{vd}, 5, v0")
    c.e(f"v_mul_u32_u24 v{vd}, {hmul}, v{vd}")
    c.e(f"v_bfe_u32 v{vt}, v0, 2, 2")
    c.e(f"v_add_u32 v{vd}, v{vd}, v{vt}")
    c.e(f"v_mul_u32_u24 v{vd}, {rowstride}, v{vd}")
    c.e(f"v_bfe_u32 v{vt}, v0, 4, 1")
    c.e(f"v_lshl_add_u32 v{vd}, v{vt}, 5, v{vd}")
    c.e(f"v_and_b32 v{vt}, 3, v0")
    c.e(f"v_lshl_add_u32 v{vd}, v{vt}, 3, v{vd}")

def x_dma(c, vXa, vXb, chunk, tag):
    slot = chunk % 4
    c.e(f"s_lshl_b32 s{sXB}, s{sCH}, 7")
    for i in range(4):
        c.e(f"s_add_u32 m0, s{sW2K}, {slot*SLOT + XOFF + 1024*i}")
        c.e(f"s_add_u32 s{sXOFF}, s{sXB}, {(i >> 1)*16*1280}")
        c.vmem(f"buffer_load_dwordx4 v{vXb if i & 1 else vXa}, s[{S_X}:{S_X+3}], s{sXOFF} offen lds", tag)
    c.e(f"s_add_u32 s{sCH}, s{sCH}, 1")
    c.e(f"s_cmp_eq_u32 s{sCH}, 10")
    c.e(f"s_cselect_b32 s{sCH}, 0, s{sCH}")

def split_hi_lo(c, val, hi, lo, tmp):
    c.e(f"v_cvt_pk_bf16_f32 v{tmp}, v{val}, v{val}")
    c.e(f"v_and_b32 v{hi}, 0xffff0000, v{tmp}")
    c.e(f"v_sub_f32 v{lo}, v{val}, v{hi}")

def token_stats(c, vS, vQ, va, vb, vc_, vd):
    c.e(f"v_add_f32 v{vS}, v{vS}, v{vS+1}")
    c.e(f"v_add_f32 v{vQ}, v{vQ}, v{vQ+1}")
    c.e(f"v_mov_b32 v{va}, v{vS}")
    c.e(f"v_mov_b32 v{vb}, v{vQ}")
    c.nop(2)
    c.e(f"v_permlane32_swap_b32 v{vS}, v{va}")
    c.e(f"v_permlane32_swap_b32 v{vQ}, v{vb}")
    c.nop(2)
    c.e(f"v_add_f32 v{vS}, v{vS}, v{va}")
    c.e(f"v_add_f32 v{vQ}, v{vQ}, v{vb}")
    c.e(f"v_mul_f32 v{va}, {fhex(1.0/640)}, v{vS}")
    c.e(f"v_mul_f32 v{vQ}, {fhex(1.0/640)}, v{vQ}")
    c.e(f"v_fma_f32 v{vQ}, -v{va}, v{va}, v{vQ}")
    c.e(f"v_max_f32 v{vQ}, 0, v{vQ}")
    c.e(f"v_add_f32 v{vQ}, {fhex(EPS)}, v{vQ}")
    c.e(f"v_rsq_f32 v{vb}, v{vQ}")
    c.nop(1)
    c.e(f"v_mul_f32 v{vc_}, v{vQ}, v{vb}")

def build_Baug(c, vB, vmean, vstd, t0, t1, t2, t3):
    c.e(f"v_sub_f32 v{t0}, 0, v{vmean}")
    split_hi_lo(c, t0, t1, t2, t3)
    c.e(f"v_cvt_pk_bf16_f32 v{vB}, v{t1}, v{t2}")
    split_hi_lo(c, vstd, t0, t2, t3)
    c.e(f"v_cvt_pk_bf16_f32 v{vB+1}, v{t1}, v{t0}")
    c.e(f"v_mov_b32 v{vB+3}, 0")
    c.e(f"v_cvt_pk_bf16_f32 v{vB+2}, v{t2}, v{vB+3}")

def build_Aaug(c, vA, vcs, vbias, t0, t1, t2):
    c.e(f"v_cvt_pk_bf16_f32 v{vA}, v{vcs}, v{vcs}")
    c.e(f"v_and_b32 v{t0}, 0xffff0000, v{vA}")
    c.e(f"v_sub_f32 v{t1}, v{vcs}, v{t0}")
    c.e(f"v_cvt_pk_bf16_f32 v{vA+1}, v{t1}, v{vbias}")
    c.e(f"v_mov_b32 v{vA+3}, 0")
    c.e(f"v_cvt_pk_bf16_f32 v{vA+2}, v{vbias}, v{vA+3}")

def o_fill(c, r4, vaddr, tag):
    c.e(f"s_mul_i32 s{sT0}, s2, 10240")
    c.e(f"s_lshl_b32 s{sT1}, s{sTW}, 10")
    c.e(f"s_add_u32 s{sT0}, s{sT0}, s{sT1}")
    c.e(f"s_add_u32 s{sT0}, s{sT0}, {OF}")
    for r in range(4): c.e(f"v_mov_b32 v{r4+r}, -1")
    c.e(f"v_lshlrev_b32 v{vaddr}, 4, v0")
    c.e(f"buffer_store_dwordx4 v[{r4}:{r4+3}], v{vaddr}, s[{S_O}:{S_O+3}], s{sT0} offen sc0 sc1")
    c.e(f"s_add_u32 s{sT0}, s{sT0}, 4096")
    c.e(f"buffer_store_dwordx4 v[{r4}:{r4+3}], v{vaddr}, s[{S_O}:{S_O+3}], s{sT0} offen sc0 sc1")
    c.e(f"s_cmp_ge_u32 s{sTW}, 2")
    c.e(f"s_cbranch_scc1 K1_NF{tag}")
    c.e(f"s_add_u32 s{sT0}, s{sT0}, 4096")
    c.e(f"buffer_store_dwordx4 v[{r4}:{r4+3}], v{vaddr}, s[{S_O}:{S_O+3}], s{sT0} offen sc0 sc1")
    c.label(f"K1_NF{tag}")

def operand_touch(c, vt, vt2, vd, widx):
    srd(c, S_X, 24, 25, M*D*2)
    srd_w(c)
    c.e(f"s_lshr_b32 s3, s2, 3")
    c.e(f"s_and_b32 s4, s3, 7")
    c.e(f"s_mul_i32 s4, s4, 320")
    c.e(f"s_mul_i32 s5, s{widx}, 40")
    c.e(f"s_add_u32 s4, s4, s5")
    c.e(f"v_add_u32 v{vt}, s4, v0")
    c.e(f"v_lshrrev_b32 v{vt2}, 2, v{vt}")
    c.e(f"v_mul_u32_u24 v{vt2}, s{sSTR}, v{vt2}")
    c.e(f"v_and_b32 v{vt}, 3, v{vt}")
    c.e(f"v_lshl_add_u32 v{vt2}, v{vt}, 7, v{vt2}")
    c.e(f"v_cmp_gt_u32 vcc, 40, v0")
    c.e(f"s_and_saveexec_b64 s[84:85], vcc" if not STAMPS else f"s_and_saveexec_b64 s[100:101], vcc")
    c.e(f"buffer_load_dword v{vd}, v{vt2}, s[{S_W}:{S_W+3}], 0 offen")
    c.e(f"s_lshr_b32 s4, s3, 3")
    c.e(f"s_mul_i32 s4, s4, 320")
    c.e(f"s_add_u32 s4, s4, s5")
    c.e(f"v_add_u32 v{vt}, s4, v0")
    c.e(f"v_mul_u32_u24 v{vt2}, 6554, v{vt}")
    c.e(f"v_lshrrev_b32 v{vt2}, 16, v{vt2}")
    c.e(f"v_mul_u32_u24 v{vd+1}, 10, v{vt2}")
    c.e(f"v_sub_u32 v{vt}, v{vt}, v{vd+1}")
    c.e(f"s_lshl_b32 s4, s{sTB}, 7")
    c.e(f"v_add_u32 v{vt2}, s4, v{vt2}")
    c.e(f"v_mul_u32_u24 v{vt2}, 1280, v{vt2}")
    c.e(f"v_lshl_add_u32 v{vt2}, v{vt}, 7, v{vt2}")
    c.e(f"buffer_load_dword v{vd+1}, v{vt2}, s[{S_X}:{S_X+3}], 0 offen")
    c.e("s_mov_b64 exec, -1")

def k1_compute(c):
    tiles = [0, 1, 2, 3, 4]; nt = 5
    L = "K1C"
    a = Alloc(1, 168)
    vt, vt2 = a.get(), a.get()
    vRW = a.get(2)
    vRX = a.get(8)
    vL16 = a.get()
    acc = [a.get(16, 4) for _ in range(nt)]
    fW = [[a.get(4, 4) for _ in range(nt)] for _ in range(2)]
    fX = [a.get(4, 4) for _ in range(2)]
    c.e(f"s_setprio {PRIO_C}")
    wait_args(c)
    if 'optouch' in EXP: operand_touch(c, vt, vt2, 165, sW)
    srd(c, S_O, 42, 43, WS_USED)
    if DIRECT:
        c.e(f"s_cmp_eq_u32 s{sISH}, 0")
        c.e(f"s_cselect_b32 s{sT0}, 40, 108")
        c.e(f"s_mov_b32 s{sT1}, {HF}")
        c.e(f"s_cselect_b32 s{sT1}, {QF}, s{sT1}")
        c.e(f"s_lshl_b32 s3, s{sTB}, 2")
        c.e(f"s_add_u32 s3, s3, s{sTW}")
        c.e(f"s_mul_i32 s3, s3, s{sT0}")
        c.e(f"s_add_u32 s{sOUT}, s{sKB2}, s3")
        c.e(f"s_lshl_b32 s{sOUT}, s{sOUT}, 10")
        c.e(f"s_add_u32 s{sOUT}, s{sOUT}, s{sT1}")
    c.e(f"v_lshlrev_b32 v{vL16}, 4, v0")
    tr_addr(c, vRW, 320, 8, vt)
    x_read_addr(c, vRX, vt, vt2)
    vN = a.get(2)
    c.e(f"v_mov_b32 v{vRW+1}, v{vRW}")
    for k in range(4): c.e(f"v_mov_b32 v{vRX+4+k}, v{vRX+k}")
    for t in range(nt):
        for i in range(16): c.e(f"v_mov_b32 v{acc[t]+i}, 0")
    def rd_list(sp, b, nxt=False):
        aw = vN if nxt else vRW+1
        ax = vN+1 if nxt else vRX+4+sp
        L_ = [f"ds_read_b128 v[{fX[b]}:{fX[b]+3}], v{ax}"]
        for i, t in enumerate(tiles):
            off = sp*5120 + 64*t
            L_.append(f"ds_read_b64_tr_b16 v[{fW[b][i]}:{fW[b][i]+1}], v{aw} offset:{off}")
            L_.append(f"ds_read_b64_tr_b16 v[{fW[b][i]+2}:{fW[b][i]+3}], v{aw} offset:{off+1280}")
        return L_
    def kstep(sp, rd, barrier=False, extra=()):
        b = sp & 1
        c.e("s_waitcnt lgkmcnt(0)")
        if barrier:
            trace_dyn(c, 2, sCH, vt)
            c.e("s_barrier")
            trace_dyn(c, 3, sCH, vt)
        cnt = [int(x) for x in os.environ.get('CNT', '44300')]; extra = list(extra)
        for i in range(nt):
            c.e(f"v_mfma_f32_32x32x16_bf16 v[{acc[i]}:{acc[i]+15}], v[{fW[b][i]}:{fW[b][i]+3}], v[{fX[b]}:{fX[b]+3}], v[{acc[i]}:{acc[i]+15}]")
            for r_ in rd[:cnt[i]]: c.e(r_)
            rd = rd[cnt[i]:]
            if i == 3:
                for e_ in extra: c.e(e_)
    c.e(f"s_mov_b32 s{sWOFF}, {SLOT}")
    c.e(f"s_mov_b32 s{sCH}, 0")
    trace(c, 0, vt)
    c.e("s_barrier")
    trace(c, 1, vt)
    c.stamp(2)
    for r_ in rd_list(0, 0): c.e(r_)
    c.label("K1C_LOOP")
    kstep(0, rd_list(1, 1), extra=[f"v_add_u32 v{vN}, s{sWOFF}, v{vRW}", f"v_add_u32 v{vN+1}, s{sWOFF}, v{vRX}"])
    kstep(1, rd_list(2, 0))
    kstep(2, rd_list(3, 1))
    kstep(3, rd_list(0, 0, nxt=True), barrier=True,
          extra=[f"v_add_u32 v{vRW+1}, s{sWOFF}, v{vRW}"] + [f"v_add_u32 v{vRX+4+k}, s{sWOFF}, v{vRX+k}" for k in range(4)])
    c.e(f"s_add_u32 s{sWOFF}, s{sWOFF}, {SLOT}")
    c.e(f"s_cmp_eq_u32 s{sWOFF}, {4*SLOT}")
    c.e(f"s_cselect_b32 s{sWOFF}, 0, s{sWOFF}")
    c.e(f"s_add_u32 s{sCH}, s{sCH}, 1")
    c.e(f"s_cmp_lt_u32 s{sCH}, 9")
    c.e("s_cbranch_scc1 K1C_LOOP")
    kstep(0, rd_list(1, 1)); kstep(1, rd_list(2, 0)); kstep(2, rd_list(3, 1))
    c.e(f"v_lshlrev_b32 v{vt}, 4, v0")
    c.e(f"v_and_b32 v{vt2}, 31, v0")
    c.e(f"s_lshl_b32 s{sT0}, s{sTW}, 5")
    c.e(f"v_add_u32 v{vt2}, s{sT0}, v{vt2}")
    c.e(f"v_lshlrev_b32 v{vt2}, 4, v{vt2}")
    c.e(f"v_add_u32 v{vt2}, {ST}, v{vt2}")
    c.e(f"v_add_u32 v{vt}, {BAUG}, v{vt}")
    kstep(3, [], barrier=True)
    c.lg = []
    c.stamp(3)
    stt = a.get(4, 4)
    c.e("s_barrier")
    vB = fX[0]
    c.e(f"s_lshl_b32 s{sT0}, s{sTW}, 10")
    c.e(f"v_add_u32 v{vN}, s{sT0}, v{vt}")
    c.e(f"ds_read_b128 v[{vB}:{vB+3}], v{vN}")
    for i in range(nt):
        c.e(f"ds_read_b128 v[{fW[0][i]}:{fW[0][i]+3}], v{vt} offset:{4096 + 1024*i}")
    c.e(f"ds_read_b128 v[{stt}:{stt+3}], v{vt2}")
    c.e(f"s_lshl_b32 s{sT0}, s{sTW}, 11")
    c.e(f"v_add_u32 v{vN+1}, s{sT0}, v{vL16}")
    c.e(f"v_add_u32 v{vN+1}, {OUTB}, v{vN+1}")
    c.e("s_waitcnt lgkmcnt(0)")
    for i in range(nt):
        c.e(f"v_mfma_f32_32x32x16_bf16 v[{acc[i]}:{acc[i]+15}], v[{fW[0][i]}:{fW[0][i]+3}], v[{vB}:{vB+3}], v[{acc[i]}:{acc[i]+15}]")
    def publish(A, t):
        if DIRECT:
            c.e(f"s_add_u32 s{sT0}, s{sOUT}, {2048*t}")
            c.e(f"buffer_store_dwordx4 v[{A}:{A+3}], v{vL16}, s[{S_O}:{S_O+3}], s{sT0} offen sc0 sc1")
            c.e(f"buffer_store_dwordx4 v[{A+4}:{A+7}], v{vL16}, s[{S_O}:{S_O+3}], s{sT0} offen offset:1024 sc0 sc1")
            return
        c.e(f"ds_write_b128 v{vN+1}, v[{A}:{A+3}] offset:{(t&1)*8192}")
        c.e(f"ds_write_b128 v{vN+1}, v[{A+4}:{A+7}] offset:{(t&1)*8192 + 1024}")
        c.e("s_waitcnt lgkmcnt(0)")
        c.e("s_barrier")
    F1 = fW[1]
    rs = F1[0]; sd = F1[0] + 2; k1p = F1[1]; k2p = F1[1] + 2
    c1 = -2*math.sqrt(2/math.pi)*math.log2(math.e); c2 = c1*0.044715
    c.e(f"s_cmp_eq_u32 s{sISH}, 0")
    c.e(f"s_cbranch_scc0 {L}_H")
    c.e(f"v_mul_f32 v{rs}, {fhex(QSCALE)}, v{stt+1}")
    c.e(f"v_mov_b32 v{rs+1}, v{rs}")
    c.nop(12)
    for i, t in enumerate(tiles):
        A = acc[i]
        for p in range(8):
            c.e(f"v_pk_mul_f32 v[{A+2*p}:{A+2*p+1}], v[{A+2*p}:{A+2*p+1}], v[{rs}:{rs+1}]")
        for p in range(8):
            c.e(f"v_cvt_pk_bf16_f32 v{A+p}, v{A+2*p}, v{A+2*p+1}")
        publish(A, t)
    c.stamp(4)
    c.finish(0, sW, S_O)
    c.label(f"{L}_H")
    c.stamp(5)
    r_ = stt + 1
    c.e(f"v_mul_f32 v{k1p}, {fhex(c1)}, v{r_}")
    c.e(f"v_mul_f32 v{k2p}, v{r_}, v{r_}")
    c.e(f"v_mul_f32 v{k2p}, v{k2p}, v{r_}")
    c.e(f"v_mul_f32 v{k2p}, {fhex(c2)}, v{k2p}")
    c.e(f"v_mov_b32 v{k1p+1}, v{k1p}")
    c.e(f"v_mov_b32 v{k2p+1}, v{k2p}")
    c.e(f"v_mov_b32 v{sd}, v{stt+2}")
    c.e(f"v_mov_b32 v{sd+1}, v{stt+2}")
    c.nop(8)
    g = [F1[2], F1[3]]
    def gelu_stage(A, q, G):
        P = [A+4*q, A+4*q+2]
        return [[f"v_pk_mul_f32 v[{G+2*u}:{G+2*u+1}], v[{z}:{z+1}], v[{z}:{z+1}]" for u, z in enumerate(P)],
                [f"v_pk_fma_f32 v[{G+2*u}:{G+2*u+1}], v[{G+2*u}:{G+2*u+1}], v[{k2p}:{k2p+1}], v[{k1p}:{k1p+1}]" for u, z in enumerate(P)],
                [f"v_pk_mul_f32 v[{G+2*u}:{G+2*u+1}], v[{G+2*u}:{G+2*u+1}], v[{z}:{z+1}]" for u, z in enumerate(P)],
                [f"v_exp_f32 v{G+u}, v{G+u}" for u in range(4)],
                [f"v_pk_fma_f32 v[{G+2*u}:{G+2*u+1}], v[{G+2*u}:{G+2*u+1}], v[{sd}:{sd+1}], v[{sd}:{sd+1}]" for u in range(2)],
                [f"v_rcp_f32 v{G+u}, v{G+u}" for u in range(4)],
                [f"v_pk_mul_f32 v[{z}:{z+1}], v[{z}:{z+1}], v[{G+2*u}:{G+2*u+1}]" for u, z in enumerate(P)],
                [f"v_cvt_pk_bf16_f32 v{A+2*q+u}, v{z}, v{z+1}" for u, z in enumerate(P)]]
    for i, t in enumerate(tiles):
        A = acc[i]
        if t == 4:
            c.e(f"s_cmp_eq_u32 s{sFT}, 14")
            c.e(f"s_cbranch_scc1 {L}_done")
        for q2 in range(2):
            X = gelu_stage(A, 2*q2, g[0]); Y = gelu_stage(A, 2*q2+1, g[1])
            for st in range(8):
                for x_ in X[st]: c.e(x_)
                for y_ in Y[st]: c.e(y_)
        publish(A, t)
    c.label(f"{L}_done")
    c.stamp(4)
    c.finish(0, sW, S_O)
    return a.hi

CHK = int(os.environ.get('CHK', '8'))
NAUX = int(os.environ.get('NAUX', '3'))
PL = int(os.environ.get('PL', '1'))
def k1_aux(c):
    a = Alloc(1, 168)
    vt, vt2 = a.get(), a.get()
    vRW = a.get(2)
    vU = a.get(10); vZ = a.get(); vA = a.get(); vG = a.get()
    vCS = [a.get() for _ in range(5)]; vC2 = [a.get() for _ in range(5)]
    stt = a.get(8, 4)
    fW = [a.get(4, 4) for _ in range(5)]
    c.e(f"s_mov_b32 s{sMASK}, 0xffff0000")
    c.e(f"s_setprio {PRIO_X}")
    wait_args(c)
    if 'optouch' in EXP: operand_touch(c, vt, vt2, 165, sW)
    srd(c, S_O, 42, 43, WS_USED)
    srd(c, S_D, 6, 7, 256)
    c.e(f"s_add_u32 s{S_B}, s38, s{sCOL}")
    c.e(f"s_addc_u32 s{S_B+1}, s39, 0")
    c.e(f"s_and_b32 s{S_B+1}, s{S_B+1}, 0xffff")
    c.e(f"s_sub_u32 s{S_B+2}, {1728*2}, s{sCOL}")
    c.e(f"s_cmp_eq_u32 s{sISH}, 0")
    c.e(f"s_cselect_b32 s{S_B+2}, 0, s{S_B+2}")
    c.e(f"s_mov_b32 s{S_B+3}, 0x20000")
    c.e(f"s_cselect_b32 s{sT0}, 40, 108")
    c.e(f"s_mov_b32 s{sT1}, {HF}")
    c.e(f"s_cselect_b32 s{sT1}, {QF}, s{sT1}")
    c.e(f"s_lshl_b32 s3, s{sTB}, 2")
    c.e(f"s_add_u32 s3, s3, s{sTW}")
    c.e(f"s_mul_i32 s3, s3, s{sT0}")
    c.e(f"s_add_u32 s{sOUT}, s{sKB2}, s3")
    c.e(f"s_lshl_b32 s{sOUT}, s{sOUT}, 10")
    c.e(f"s_add_u32 s{sOUT}, s{sOUT}, s{sT1}")
    vBi = a.get(2)
    c.e(f"v_and_b32 v{vt}, 31, v0")
    c.e(f"v_lshlrev_b32 v{vt}, 1, v{vt}")
    c.e(f"s_lshl_b32 s3, s{sTW}, 6")
    c.e(f"buffer_load_ushort v{vBi}, v{vt}, s[{S_B}:{S_B+3}], s3 offen")
    c.e(f"buffer_load_ushort v{vBi+1}, v{vt}, s[{S_B}:{S_B+3}], 0 offen offset:256")
    tr_addr(c, vRW, 320, 8, vt)
    c.e(f"s_mul_i32 s{sT0}, s{sTW}, 5120")
    c.e(f"v_add_u32 v{vRW}, s{sT0}, v{vRW}")
    for r in vCS + vC2: c.e(f"v_mov_b32 v{r}, 0")
    def work():
        c.e(f"v_add_u32 v{vRW+1}, s{sWOFF}, v{vRW}")
        for t in range(NAUX):
            c.e(f"ds_read_b64_tr_b16 v[{fW[t]}:{fW[t]+1}], v{vRW+1} offset:{64*t}")
            c.e(f"ds_read_b64_tr_b16 v[{fW[t]+2}:{fW[t]+3}], v{vRW+1} offset:{64*t+1280}")
        c.e("s_waitcnt lgkmcnt(0)")
        if 'nocs' in EXP: return
        for r in range(4):
            for t in range(NAUX):
                c.e(f"v_lshlrev_b32 v{vU+2*t}, 16, v{fW[t]+r}")
                c.e(f"v_and_b32 v{vU+2*t+1}, s{sMASK}, v{fW[t]+r}")
            for t in range(NAUX):
                c.e(f"v_add_f32 v{vCS[t]}, v{vCS[t]}, v{vU+2*t}")
                c.e(f"v_add_f32 v{vC2[t]}, v{vC2[t]}, v{vU+2*t+1}")
    c.e(f"s_lshl_b32 s{sT2}, s{sTB}, 4")
    c.e(f"s_lshl_b32 s{sT3}, s{sTB}, 11")
    c.e(f"s_add_u32 s{sT3}, s{sT3}, {STATS}")
    c.e(f"v_and_b32 v{vZ}, 3, v0")
    c.e(f"v_lshlrev_b32 v{vZ}, 2, v{vZ}")
    c.e(f"v_lshlrev_b32 v{vA}, 4, v0")
    c.e(f"s_mov_b32 s{sWOFF}, 0")
    c.e(f"s_mov_b32 s{sCH}, 0")
    c.e(f"s_cmp_eq_u32 s{sTW}, 0")
    c.e(f"s_cselect_b32 s{sXB}, {CHK}, 99")
    c.e("s_barrier")
    c.label("K1A_LOOP")
    c.e(f"s_cmp_lg_u32 s{sCH}, s{sXB}")
    c.e("s_cbranch_scc1 K1_AX0")
    c.e(f"buffer_load_dword v{vG}, v{vZ}, s[{S_D}:{S_D+3}], s{sT2} offen sc1")
    c.label("K1_AX0")
    if 'earlyfill' in EXP:
        c.e(f"s_cmp_lg_u32 s{sCH}, 2")
        c.e("s_cbranch_scc1 K1_AXF")
        o_fill(c, stt, vt2, "A")
        c.label("K1_AXF")
    work()
    c.e(f"s_cmp_lg_u32 s{sCH}, s{sXB}")
    c.e("s_cbranch_scc1 K1_AX1")
    c.e(f"s_mov_b32 s{sKB}, 0")
    c.label("K1_AXP")
    c.e("s_waitcnt vmcnt(0)")
    c.e(f"v_cmp_eq_u32 vcc, 1, v{vG}")
    c.e(f"s_add_u32 s{sKB}, s{sKB}, 1")
    c.e("s_cmp_eq_u64 vcc, -1")
    c.e("s_cbranch_scc1 K1_AXG")
    c.e("s_sleep 12")
    c.e(f"buffer_load_dword v{vG}, v{vZ}, s[{S_D}:{S_D+3}], s{sT2} offen sc1")
    c.e(f"s_cmp_lt_u32 s{sKB}, 0x10000")
    c.e("s_cbranch_scc1 K1_AXP")
    c.label("K1_AXG")
    c.e(f"buffer_load_dwordx4 v[{stt}:{stt+3}], v{vA}, s[{S_O}:{S_O+3}], s{sT3} offen sc1")
    c.e(f"buffer_load_dwordx4 v[{stt+4}:{stt+7}], v{vA}, s[{S_O}:{S_O+3}], s{sT3} offen offset:1024 sc1")
    c.label("K1_AX1")
    c.e(f"s_add_u32 s{sWOFF}, s{sWOFF}, {SLOT}")
    c.e(f"s_cmp_eq_u32 s{sWOFF}, {4*SLOT}")
    c.e(f"s_cselect_b32 s{sWOFF}, 0, s{sWOFF}")
    c.e(f"s_add_u32 s{sCH}, s{sCH}, 1")
    c.e(f"s_cmp_eq_u32 s{sCH}, 10")
    c.e("s_cbranch_scc1 K1A_END")
    trace_dyn(c, 0, sCH, vt)
    c.e("s_barrier")
    trace_dyn(c, 1, sCH, vt)
    c.e("s_branch K1A_LOOP")
    c.label("K1A_END")
    trace(c, 20, vt)
    for t in range(NAUX): c.e(f"v_add_f32 v{vCS[t]}, v{vCS[t]}, v{vC2[t]}")
    c.nop(4)
    c.e(f"v_and_b32 v{vt}, 31, v0")
    c.e(f"v_lshlrev_b32 v{vt}, 5, v{vt}")
    c.e(f"v_lshrrev_b32 v{vt2}, 5, v0")
    c.e(f"v_lshl_add_u32 v{vt}, v{vt2}, 2, v{vt}")
    c.e(f"s_lshl_b32 s{sT0}, s{sTW}, 3")
    c.e(f"v_add_u32 v{vt}, s{sT0}, v{vt}")
    c.e(f"v_add_u32 v{vt}, {CSP}, v{vt}")
    for t in range(NAUX):
        c.lds(f"ds_write_b32 v{vt}, v{vCS[t]} offset:{t*1024}")
    c.e(f"s_cmp_lg_u32 s{sTW}, 0")
    c.e("s_cbranch_scc1 K1_AX2")
    c.e("s_waitcnt vmcnt(0)")
    c.e(f"v_add_u32 v{vt}, {ST}, v{vA}")
    c.e(f"ds_write_b128 v{vt}, v[{stt}:{stt+3}]")
    c.e(f"ds_write_b128 v{vt}, v[{stt+4}:{stt+7}] offset:1024")
    c.label("K1_AX2")
    c.e("s_waitcnt vmcnt(0) lgkmcnt(0)")
    trace(c, 21, vt)
    c.e("s_barrier")
    trace_dump(c, vt)
    T = fW[0]; P0, P1, Q0_, Q1_ = fW[1], fW[2], fW[3], fW[4]
    c.e(f"v_and_b32 v{vt}, 31, v0")
    c.e(f"s_lshl_b32 s{sT0}, s{sTW}, 5")
    c.e(f"v_add_u32 v{vt2}, s{sT0}, v{vt}")
    c.e(f"v_lshlrev_b32 v{vt2}, 4, v{vt2}")
    c.e(f"v_add_u32 v{vt2}, {ST}, v{vt2}")
    c.e(f"ds_read_b128 v[{stt}:{stt+3}], v{vt2}")
    c.e(f"v_lshlrev_b32 v{vt}, 5, v{vt}")
    c.e(f"s_lshl_b32 s{sT0}, s{sTW}, 10")
    c.e(f"v_add_u32 v{vt2}, s{sT0}, v{vt}")
    c.e(f"v_add_u32 v{vt2}, {CSP}, v{vt2}")
    c.e(f"ds_read_b128 v[{P0}:{P0+3}], v{vt2}")
    c.e(f"ds_read_b128 v[{P1}:{P1+3}], v{vt2} offset:16")
    c.e(f"v_add_u32 v{vt}, {CSP + 4096}, v{vt}")
    c.e(f"ds_read_b128 v[{Q0_}:{Q0_+3}], v{vt}")
    c.e(f"ds_read_b128 v[{Q1_}:{Q1_+3}], v{vt} offset:16")
    c.e(f"v_cmp_gt_u32 vcc, 32, v0")
    c.e(f"v_lshlrev_b32 v{vBi}, 16, v{vBi}")
    c.e(f"v_lshlrev_b32 v{vBi+1}, 16, v{vBi+1}")
    c.e(f"v_cndmask_b32 v{vBi}, 0, v{vBi}, vcc")
    c.e(f"v_cndmask_b32 v{vBi+1}, 0, v{vBi+1}, vcc")
    c.e("s_waitcnt lgkmcnt(0)")
    for A, B in ((P0, P1), (Q0_, Q1_)):
        c.e(f"v_add_f32 v{A}, v{A}, v{A+1}"); c.e(f"v_add_f32 v{A+2}, v{A+2}, v{A+3}")
        c.e(f"v_add_f32 v{B}, v{B}, v{B+1}"); c.e(f"v_add_f32 v{B+2}, v{B+2}, v{B+3}")
        c.e(f"v_add_f32 v{A}, v{A}, v{A+2}"); c.e(f"v_add_f32 v{B}, v{B}, v{B+2}")
        c.e(f"v_add_f32 v{A}, v{A}, v{B}")
        c.e(f"v_cndmask_b32 v{A}, 0, v{A}, vcc")
    tq = vU
    build_Baug(c, stt+4, stt, stt+2, tq, tq+1, tq+2, tq+3)
    c.e(f"v_lshlrev_b32 v{vA}, 4, v0")
    c.e(f"s_lshl_b32 s{sT0}, s{sTW}, 10")
    c.e(f"v_add_u32 v{vt}, s{sT0}, v{vA}")
    c.e(f"v_add_u32 v{vt}, {BAUG}, v{vt}")
    c.e(f"ds_write_b128 v{vt}, v[{stt+4}:{stt+7}]")
    build_Aaug(c, P1, P0, vBi, tq, tq+1, tq+2)
    c.e(f"ds_write_b128 v{vt}, v[{P1}:{P1+3}] offset:4096")
    build_Aaug(c, Q1_, Q0_, vBi+1, tq, tq+1, tq+2)
    c.e(f"v_add_u32 v{vt2}, {AAUG + 4096}, v{vA}")
    c.e(f"ds_write_b128 v{vt2}, v[{Q1_}:{Q1_+3}]")
    c.e("s_waitcnt lgkmcnt(0)")
    c.e("s_barrier")
    c.e("s_setprio 3")
    if DIRECT:
        if 'earlyfill' not in EXP and 'ldfill' not in EXP: o_fill(c, T, vt2, "A")
        c.finish(0, sW, S_O)
        return a.hi
    c.e(f"s_lshl_b32 s{sT0}, s{sTW}, 11")
    c.e(f"v_add_u32 v{vt}, s{sT0}, v{vA}")
    c.e(f"v_add_u32 v{vt}, {OUTB}, v{vt}")
    for t in range(5):
        if t == 4:
            c.e(f"s_cmp_eq_u32 s{sFT}, 14")
            c.e(f"s_cbranch_scc1 K1_AX3")
        R_ = fW[t & 1] if False else (P0 if t & 1 else Q0_)
        R2 = (P1 if t & 1 else Q1_)
        c.e("s_barrier")
        c.e(f"ds_read_b128 v[{R_}:{R_+3}], v{vt} offset:{(t&1)*8192}")
        c.e(f"ds_read_b128 v[{R2}:{R2+3}], v{vt} offset:{(t&1)*8192 + 1024}")
        c.e(f"s_add_u32 s{sT0}, s{sOUT}, {2048*t}")
        c.e("s_waitcnt lgkmcnt(0)")
        c.e(f"buffer_store_dwordx4 v[{R_}:{R_+3}], v{vA}, s[{S_O}:{S_O+3}], s{sT0} offen sc0 sc1")
        c.e(f"buffer_store_dwordx4 v[{R2}:{R2+3}], v{vA}, s[{S_O}:{S_O+3}], s{sT0} offen offset:1024 sc0 sc1")
    c.label("K1_AX3")
    c.finish(0, sW, S_O)
    return a.hi

def k1_kv(c, fh):
    L = f"K1KV{fh}"
    a = Alloc(1, 168)
    vt, vt2 = a.get(), a.get()
    vRW = a.get()
    vRX = a.get(8)
    vL16 = a.get()
    vOnes = a.get()
    vS = a.get(2); vQ = a.get(2); vCS = a.get(); vC4 = a.get(4)
    acc = a.get(16, 4)
    fW = [a.get(4, 4) for _ in range(2)]
    fX = [a.get(4, 4) for _ in range(2)]
    wait_args(c)
    srd(c, S_X, 24, 25, M*D*2)
    srd(c, S_O, 42, 43, WS_USED)
    srd(c, S_D, 6, 7, 256)
    c.e(f"s_lshl_b32 s3, s{sTB}, 2")
    c.e(f"s_add_u32 s3, s3, s{sTW}")
    c.e(f"s_mul_i32 s{sOUT}, s3, 2560")
    c.e(f"s_add_u32 s{sOUT}, s{sOUT}, {KV}")
    c.e(f"v_lshlrev_b32 v{vL16}, 4, v0")
    tr_addr(c, vRW, 40, 8, vt)
    c.e(f"v_add_u32 v{vRW}, {2*fh*SLOT}, v{vRW}")
    x_read_addr(c, vRX, vt, vt2)
    c.e(f"v_mov_b32 v{vOnes}, 0x3f803f80")
    for r in (vS, vS+1, vQ, vQ+1, vCS, vC4, vC4+1, vC4+2, vC4+3): c.e(f"v_mov_b32 v{r}, 0")
    for i in range(16): c.e(f"v_mov_b32 v{acc+i}, 0")
    def reads(n):
        ch, sp = divmod(n, 4); slot = ch % 4; b = n & 1
        hi = slot >> 1; base = (slot & 1) * SLOT
        c.lds(f"ds_read_b128 v[{fX[b]}:{fX[b]+3}], v{vRX+4*hi+sp} offset:{base}", n)
        hf = n // 20; k0 = (n % 20) * 16
        off = hf*SLOT + k0*40
        c.lds(f"ds_read_b64_tr_b16 v[{fW[b]}:{fW[b]+1}], v{vRW} offset:{off}", n)
        c.lds(f"ds_read_b64_tr_b16 v[{fW[b]+2}:{fW[b]+3}], v{vRW} offset:{off+160}", n)
    tmp = a.get(8, 4)
    if fh == 0:
        c.e("s_setprio 3")
        m0_ = a.mark()
        xb = [a.get(40, 4), a.get(40, 4)]
        vG = a.get(); SQ = a.get(8)
        c.e(f"s_lshl_b32 s{sT0}, s{sTB}, 7")
        c.e(f"s_lshl_b32 s{sT1}, s{sTW}, 5")
        c.e(f"s_add_u32 s{sT0}, s{sT0}, s{sT1}")
        c.e(f"v_lshrrev_b32 v{vG}, 3, v0")
        c.e(f"v_add_u32 v{vG}, s{sT0}, v{vG}")
        c.e(f"v_mul_u32_u24 v{vG}, 1280, v{vG}")
        c.e(f"v_and_b32 v{vt}, 7, v0")
        c.e(f"v_lshl_add_u32 v{vG}, v{vt}, 4, v{vG}")
        def xload(g):
            for ch in range(10):
                c.e(f"s_mov_b32 s{sT1}, {g*10240 + ch*128}")
                c.vmem(f"buffer_load_dwordx4 v[{xb[g&1]+4*ch}:{xb[g&1]+4*ch+3}], v{vG}, s[{S_X}:{S_X+3}], s{sT1} offen", f"xs{g}")
        xload(0); xload(1)
        for r in range(8): c.e(f"v_mov_b32 v{SQ+r}, 0")
        for g in range(4):
            c.wait_vm(f"xs{g}")
            for r in range(40):
                c.e(f"v_dot2_f32_bf16 v{SQ+2*g}, v{xb[g&1]+r}, v{vOnes}, v{SQ+2*g}")
                c.e(f"v_dot2_f32_bf16 v{SQ+2*g+1}, v{xb[g&1]+r}, v{xb[g&1]+r}, v{SQ+2*g+1}")
            if g + 2 < 4: xload(g + 2)
        c.nop(4)
        for ctl in ("quad_perm:[1,0,3,2]", "quad_perm:[2,3,0,1]", "row_half_mirror"):
            for r in range(8):
                c.e(f"v_add_f32_dpp v{SQ+r}, v{SQ+r}, v{SQ+r} {ctl} row_mask:0xf bank_mask:0xf")
            c.nop(2)
        c.e(f"v_and_b32 v{vt}, 7, v0")
        for g in range(1, 4):
            c.e(f"v_cmp_eq_u32 vcc, {g}, v{vt}")
            c.nop(2)
            c.e(f"v_cndmask_b32 v{SQ}, v{SQ}, v{SQ+2*g}, vcc")
            c.e(f"v_cndmask_b32 v{SQ+1}, v{SQ+1}, v{SQ+2*g+1}, vcc")
        c.e(f"v_mul_f32 v{tmp}, {fhex(1.0/640)}, v{SQ}")
        c.e(f"v_mul_f32 v{SQ+1}, {fhex(1.0/640)}, v{SQ+1}")
        c.e(f"v_fma_f32 v{SQ+1}, -v{tmp}, v{tmp}, v{SQ+1}")
        c.e(f"v_max_f32 v{SQ+1}, 0, v{SQ+1}")
        c.e(f"v_add_f32 v{SQ+1}, {fhex(EPS)}, v{SQ+1}")
        c.e(f"v_rsq_f32 v{tmp+1}, v{SQ+1}")
        c.nop(1)
        c.e(f"v_mul_f32 v{tmp+2}, v{SQ+1}, v{tmp+1}")
        c.e(f"v_mov_b32 v{tmp+3}, 0")
        c.e(f"v_lshlrev_b32 v{vt2}, 3, v{vt}")
        c.e(f"v_lshrrev_b32 v{vG}, 3, v0")
        c.e(f"v_add_u32 v{vt2}, v{vt2}, v{vG}")
        c.e(f"v_lshlrev_b32 v{vt2}, 4, v{vt2}")
        c.e(f"s_lshl_b32 s{sT0}, s{sTB}, 2")
        c.e(f"s_add_u32 s{sT0}, s{sT0}, s{sTW}")
        c.e(f"s_lshl_b32 s{sT1}, s{sT0}, 9")
        c.e(f"s_add_u32 s{sT1}, s{sT1}, {STATS}")
        c.e(f"v_cmp_gt_u32 vcc, 4, v{vt}")
        c.e(f"s_and_saveexec_b64 s[4:5], vcc")
        c.e(f"buffer_store_dwordx4 v[{tmp}:{tmp+3}], v{vt2}, s[{S_O}:{S_O+3}], s{sT1} offen sc0 sc1")
        c.e(f"s_lshl_b32 s{sT1}, s{sTW}, 9")
        c.e(f"v_add_u32 v{vt2}, s{sT1}, v{vt2}")
        c.e(f"v_add_u32 v{vt2}, {ST}, v{vt2}")
        c.e(f"ds_write_b128 v{vt2}, v[{tmp}:{tmp+3}]")
        c.e("s_mov_b64 exec, -1")
        c.e("s_waitcnt vmcnt(0) lgkmcnt(0)")
        c.vm = []
        c.e(f"s_lshl_b32 s{sT0}, s{sT0}, 2")
        c.e(f"v_mov_b32 v{vt}, 1")
        c.e(f"v_mov_b32 v{vt2}, 0")
        c.e("s_mov_b64 exec, 1")
        c.e(f"buffer_store_dword v{vt}, v{vt2}, s[{S_D}:{S_D+3}], s{sT0} offen sc0 sc1")
        c.e("s_mov_b64 exec, -1")
        c.e("s_setprio 0")
        a.release(m0_)
    c.e("s_barrier")
    reads(0)
    for n in range(40):
        ch, sp = divmod(n, 4); b = n & 1
        c.wait_lg(n)
        if sp == 3 and ch + 1 < 10:
            c.e("s_barrier")
        if n + 1 < 40: reads(n + 1)
        if fh == 0:
            c.e(f"v_mfma_f32_32x32x16_bf16 v[{acc}:{acc+15}], v[{fW[b]}:{fW[b]+3}], v[{fX[b]}:{fX[b]+3}], v[{acc}:{acc+15}]")
        else:
            c.e(f"v_mfma_f32_32x32x16_bf16 v[{acc}:{acc+15}], v[{fX[b]}:{fX[b]+3}], v[{fW[b]}:{fW[b]+3}], v[{acc}:{acc+15}]")
    c.e(f"v_and_b32 v{vt}, 31, v0")
    c.e(f"s_lshl_b32 s{sT0}, s{sTW}, 5")
    c.e(f"v_add_u32 v{vt}, s{sT0}, v{vt}")
    c.e(f"v_lshlrev_b32 v{vt}, 4, v{vt}")
    c.e(f"v_add_u32 v{vt}, {ST}, v{vt}")
    c.lds(f"ds_read_b128 v[{tmp}:{tmp+3}], v{vt}")
    csb = [a.get(4, 4) for _ in range(4)]
    for n0 in range(0, 40, 4):
        for u in range(4):
            n = n0 + u; hf = n // 20; k0 = (n % 20) * 16; off = hf*SLOT + k0*40
            c.lds(f"ds_read_b64_tr_b16 v[{csb[u]}:{csb[u]+1}], v{vRW} offset:{off}", "cs")
            c.lds(f"ds_read_b64_tr_b16 v[{csb[u]+2}:{csb[u]+3}], v{vRW} offset:{off+160}", "cs")
        c.wait_lg0()
        for r in range(4):
            for u in range(4):
                c.e(f"v_dot2_f32_bf16 v{vC4+u}, v{csb[u]+r}, v{vOnes}, v{vC4+u}")
    c.nop(4)
    c.e(f"v_add_f32 v{vC4}, v{vC4}, v{vC4+1}")
    c.e(f"v_add_f32 v{vC4+2}, v{vC4+2}, v{vC4+3}")
    c.e(f"v_add_f32 v{vCS}, v{vC4}, v{vC4+2}")
    c.e(f"v_mov_b32 v{vt}, v{vCS}")
    c.nop(2)
    c.e(f"v_permlane32_swap_b32 v{vCS}, v{vt}")
    c.nop(2)
    c.e(f"v_add_f32 v{vCS}, v{vCS}, v{vt}")
    c.e(f"v_cmp_gt_u32 vcc, 32, v0")
    c.nop(2)
    c.e(f"v_cndmask_b32 v{vCS}, 0, v{vCS}, vcc")
    c.e(f"v_mov_b32 v{vt}, 0")
    t2 = a.get(4, 4)
    build_Baug(c, fX[0], tmp, tmp+2, t2, t2+1, t2+2, t2+3)
    build_Aaug(c, fW[0], vCS, vt, t2, t2+1, t2+2)
    c.nop(2)
    kvb = f"s{sOUT}"
    if fh == 0:
        c.e(f"v_mfma_f32_32x32x16_bf16 v[{acc}:{acc+15}], v[{fW[0]}:{fW[0]+3}], v[{fX[0]}:{fX[0]+3}], v[{acc}:{acc+15}]")
        c.nop(16)
        for r in range(12):
            c.e(f"v_mul_f32 v{acc+r}, v{acc+r}, v{tmp+1}")
        for p in range(6):
            c.e(f"v_cvt_pk_bf16_f32 v{acc+p}, v{acc+2*p}, v{acc+2*p+1}")
        c.e(f"buffer_store_dwordx4 v[{acc}:{acc+3}], v{vL16}, s[{S_O}:{S_O+3}], {kvb} offen sc0 sc1")
        c.e(f"v_lshlrev_b32 v{vt}, 3, v0")
        c.e(f"v_cmp_gt_u32 vcc, 32, v0")
        c.e(f"s_and_saveexec_b64 s[4:5], vcc")
        c.e(f"buffer_store_dwordx2 v[{acc+4}:{acc+5}], v{vt}, s[{S_O}:{S_O+3}], {kvb} offen offset:1024 sc0 sc1")
        c.finish(0, sW, S_O)
    else:
        c.e(f"v_mfma_f32_32x32x16_bf16 v[{acc}:{acc+15}], v[{fX[0]}:{fX[0]+3}], v[{fW[0]}:{fW[0]+3}], v[{acc}:{acc+15}]")
        c.e(f"v_and_b32 v{vt}, 31, v0")
        c.e(f"s_lshl_b32 s{sT0}, s{sTW}, 5")
        c.e(f"v_add_u32 v{vt}, s{sT0}, v{vt}")
        c.e(f"v_lshlrev_b32 v{vt}, 2, v{vt}")
        c.e(f"v_add_u32 v{vt}, {RS}, v{vt}")
        c.lds(f"ds_write_b32 v{vt}, v{tmp+1}")
        c.wait_lg0()
        c.e(f"v_lshrrev_b32 v{vt}, 5, v0")
        c.e(f"v_lshlrev_b32 v{vt}, 4, v{vt}")
        c.e(f"s_lshl_b32 s{sT0}, s{sTW}, 7")
        c.e(f"v_add_u32 v{vt}, s{sT0}, v{vt}")
        c.e(f"v_add_u32 v{vt}, {RS}, v{vt}")
        rr = a.get(16, 4)
        for j in range(4):
            c.lds(f"ds_read_b128 v[{rr+4*j}:{rr+4*j+3}], v{vt} offset:{32*j}")
        c.wait_lg0()
        c.nop(16)
        for r in range(16):
            c.e(f"v_mul_f32 v{acc+r}, v{acc+r}, v{rr+r}")
        for p in range(8):
            c.e(f"v_cvt_pk_bf16_f32 v{acc+p}, v{acc+2*p}, v{acc+2*p+1}")
        c.e(f"v_and_b32 v{vt}, 31, v0")
        c.e(f"v_lshrrev_b32 v{vt2}, 5, v0")
        c.e(f"v_mul_u32_u24 v{vt2}, 20, v{vt2}")
        c.e(f"v_add_u32 v{vt2}, v{vt2}, v{vt}")
        c.e(f"v_lshlrev_b32 v{vt2}, 4, v{vt2}")
        c.e(f"v_cmp_gt_u32 vcc, 20, v{vt}")
        c.e(f"s_and_saveexec_b64 s[4:5], vcc")
        c.e(f"buffer_store_dwordx4 v[{acc}:{acc+3}], v{vt2}, s[{S_O}:{S_O+3}], {kvb} offen offset:1280 sc0 sc1")
        c.e(f"buffer_store_dwordx4 v[{acc+4}:{acc+7}], v{vt2}, s[{S_O}:{S_O+3}], {kvb} offen offset:1920 sc0 sc1")
        c.finish(0, sW, S_O)
    return a.hi


def k1_loader(c, kv):
    a = Alloc(1, 168)
    vt, vt2 = a.get(), a.get()
    vXa, vXb = a.get(), a.get()
    vL16 = a.get()
    if 'noprio' not in EXP: c.e("s_setprio 3")
    c.e(f"s_lshl_b32 s{sW2K}, s{sTW}, 12")
    c.e(f"s_mul_i32 s{sW1K}, s{sTW}, 5120")
    if kv or 'norot' in EXP:
        c.e(f"s_mov_b32 s{sCH}, 0")
    else:
        c.e(f"s_lshr_b32 s{sCH}, s2, 3")
        c.e(f"s_mul_i32 s{sT0}, s{sCH}, 26")
        c.e(f"s_lshr_b32 s{sT0}, s{sT0}, 8")
        c.e(f"s_mul_i32 s{sT0}, s{sT0}, 10")
        c.e(f"s_sub_u32 s{sCH}, s{sCH}, s{sT0}")
    x_dma_addr(c, vXa, vXb, vt)
    c.e(f"v_lshlrev_b32 v{vL16}, 4, v0")
    if kv:
        wait_args(c)
        srd(c, S_X, 24, 25, M*D*2)
        srd(c, S_O, 42, 43, WS_USED)
    if not kv:
        vWd = [a.get() for _ in range(5)]
        c.e(f"s_lshl_b32 s{sT0}, s{sTW}, 4")
        c.e(f"s_mul_i32 s{sT0}, s{sT0}, s{sSTR}")
        for i, r in enumerate(vWd):
            c.e(f"v_add_u32 v{vt}, {64*i}, v0")
            c.e(f"v_mul_u32_u24 v{vt2}, 3277, v{vt}")
            c.e(f"v_lshrrev_b32 v{vt2}, 16, v{vt2}")
            c.e(f"v_mul_u32_u24 v{r}, 20, v{vt2}")
            c.e(f"v_sub_u32 v{vt}, v{vt}, v{r}")
            c.e(f"v_mul_u32_u24 v{r}, s{sSTR}, v{vt2}")
            c.e(f"v_lshl_add_u32 v{r}, v{vt}, 4, v{r}")
            c.e(f"v_add_u32 v{r}, s{sT0}, v{r}")
        def dma(tag):
            c.e(f"s_lshl_b32 s{sWOFF}, s{sCH}, 6")
            c.e(f"s_mul_i32 s{sWOFF}, s{sSTR}, s{sWOFF}")
            c.e(f"s_add_u32 s{sMASK}, s{sW1K}, s{sSLD}")
            for i, r in enumerate(vWd):
                c.e(f"s_add_u32 m0, s{sMASK}, {1024*i}")
                c.e("s_nop 0")
                c.vmem(f"buffer_load_dwordx4 v{r}, s[{S_W}:{S_W+3}], s{sWOFF} offen lds", tag)
            c.e(f"s_lshl_b32 s{sXB}, s{sCH}, 7")
            c.e(f"s_add_u32 s{sMASK}, s{sW2K}, s{sSLD}")
            for i in range(4):
                c.e(f"s_add_u32 m0, s{sMASK}, {XOFF + 1024*i}")
                c.e(f"s_add_u32 s{sXOFF}, s{sXB}, {(i >> 1)*16*1280}")
                c.vmem(f"buffer_load_dwordx4 v{vXb if i & 1 else vXa}, s[{S_X}:{S_X+3}], s{sXOFF} offen lds", tag)
            c.e(f"s_add_u32 s{sCH}, s{sCH}, 1")
            c.e(f"s_cmp_eq_u32 s{sCH}, 10")
            c.e(f"s_cselect_b32 s{sCH}, 0, s{sCH}")
            c.e(f"s_add_u32 s{sSLD}, s{sSLD}, {SLOT}")
            c.e(f"s_cmp_eq_u32 s{sSLD}, {4*SLOT}")
            c.e(f"s_cselect_b32 s{sSLD}, 0, s{sSLD}")
        c.e(f"s_mov_b32 s{sSLD}, 0")
        wait_args(c)
        srd(c, S_X, 24, 25, M*D*2)
        srd_w(c)
        dma("ch0")
        if 'ent' in EXP: c.stamp(2, real=True)
        if 'b0first' not in EXP: dma("ch1")
        if 'ent' in EXP: c.stamp(3, real=True)
        srd(c, S_O, 42, 43, WS_USED)
        side_job_setup(c)
        vSJ = a.get()
        tr_addr(c, vSJ, 1280, 4, vt)
        c.e(f"v_add_u32 v{vSJ}, {2*SLOT}, v{vSJ}")
        LT = list(range(NAUX, 5))
        vRW = a.get(2); vU = a.get(4); vCS = [a.get() for _ in LT]; vC2 = [a.get() for _ in LT]
        fW = [a.get(4, 4) for _ in LT]
        tr_addr(c, vRW, 320, 8, vt)
        c.e(f"s_mul_i32 s{sT0}, s{sTW}, 5120")
        c.e(f"v_add_u32 v{vRW}, s{sT0}, v{vRW}")
        for r in vCS + vC2: c.e(f"v_mov_b32 v{r}, 0")
        c.e(f"s_mov_b32 s{sOUT}, 0")
        c.e(f"s_mov_b32 s{sISH}, 0xffff0000")
        def cs_reads():
            c.e(f"v_add_u32 v{vRW+1}, s{sOUT}, v{vRW}")
            for k, t in enumerate(LT):
                c.e(f"ds_read_b64_tr_b16 v[{fW[k]}:{fW[k]+1}], v{vRW+1} offset:{64*t}")
                c.e(f"ds_read_b64_tr_b16 v[{fW[k]+2}:{fW[k]+3}], v{vRW+1} offset:{64*t+1280}")
            c.e(f"s_add_u32 s{sOUT}, s{sOUT}, {SLOT}")
            c.e(f"s_cmp_eq_u32 s{sOUT}, {4*SLOT}")
            c.e(f"s_cselect_b32 s{sOUT}, 0, s{sOUT}")
        def cs_work():
            w_ = []
            if 'nocs' in EXP: return w_
            for r in range(4):
                for k in range(len(LT)):
                    w_.append(f"v_lshlrev_b32 v{vU+2*k}, 16, v{fW[k]+r}")
                    w_.append(f"v_and_b32 v{vU+2*k+1}, s{sISH}, v{fW[k]+r}")
                for k in range(len(LT)):
                    w_.append(f"v_add_f32 v{vCS[k]}, v{vCS[k]}, v{vU+2*k}")
                    w_.append(f"v_add_f32 v{vC2[k]}, v{vC2[k]}, v{vU+2*k+1}")
            return w_
        def mix(emit):
            cs_reads()
            save = c.lines; c.lines = []
            emit()
            L_ = c.lines; c.lines = save
            idx = [i for i, l in enumerate(L_) if "buffer_load" in l]
            work = cs_work(); waited = False
            for i, l in enumerate(L_):
                c.lines.append(l)
                if i in idx:
                    p = idx.index(i)
                    if p >= 1 and work:
                        if not waited: c.e("s_waitcnt lgkmcnt(0)"); waited = True
                        n_ = (len(work) + (len(idx) - 1 - p)) // (len(idx) - p)
                        for _ in range(n_):
                            if work: c.e(work.pop(0))
            if not waited: c.e("s_waitcnt lgkmcnt(0)")
            for w_ in work: c.e(w_)
        trace(c, 22, vt)
        c.wait_vm("ch0")
        if 'ent' in EXP: c.stamp(4, real=True)
        trace(c, 0, vt)
        c.e("s_barrier")
        trace(c, 1, vt)
        if 'b0first' in EXP: mix(lambda: (dma("ch1"), dma("ch2"), dma("ch3")))
        else: mix(lambda: (dma("ch2"), dma("ch3")))
        c.e(f"s_setprio {PL}")
        c.e(f"s_mov_b32 s{sKB2}, 0")
        c.label("K1L_LOOP")
        c.e("s_waitcnt vmcnt(18)")
        trace_dyn(c, 2, sKB2, vt)
        c.e("s_barrier")
        trace_dyn(c, 3, sKB2, vt)
        mix(lambda: dma("x"))
        c.e(f"s_add_u32 s{sKB2}, s{sKB2}, 1")
        c.e(f"s_cmp_lt_u32 s{sKB2}, 6")
        c.e("s_cbranch_scc1 K1L_LOOP")
        c.e("s_waitcnt vmcnt(18)")
        c.e("s_barrier")
        def sjl():
            for i in range(5):
                c.e(f"s_add_u32 m0, s{sW1K}, {2*SLOT + 1024*i}")
                c.e(f"s_mul_i32 s{sT0}, s{sSEG}, s{sTW}")
                c.e(f"s_add_u32 s{sT0}, s{sT0}, {1024*i}")
                c.e(f"buffer_load_dwordx4 v{vL16}, s[{S_SJ}:{S_SJ+3}], s{sT0} offen lds")
        mix(sjl)
        sj = [a.get(4, 4) for _ in range(5)]
        def sj_reads():
            c.e(f"s_mul_i32 s{sT0}, s{sTW}, 320")
            c.e(f"v_add_u32 v{vt}, s{sT0}, v{vSJ}")
            for i in range(5):
                c.e(f"ds_read_b64_tr_b16 v[{sj[i]}:{sj[i]+1}], v{vt} offset:{64*i}")
                c.e(f"ds_read_b64_tr_b16 v[{sj[i]+2}:{sj[i]+3}], v{vt} offset:{64*i + 8*1280}")
        def sj_stores():
            c.e(f"s_mul_i32 s{sT1}, s{sTW}, s{sT2}")
            c.e(f"s_add_u32 s{sT1}, s{sT1}, s{sT3}")
            for i in range(5):
                c.e(f"s_add_u32 s{sT0}, s{sT1}, {1024*i}")
                c.e(f"buffer_store_dwordx4 v[{sj[i]}:{sj[i]+3}], v{vL16}, s[{S_SO}:{S_SO+3}], s{sT0} offen sc0 sc1")
        SJE = 'sjearly' in EXP
        if SJE:
            c.e("s_waitcnt vmcnt(0)")
            c.e("s_barrier")
            mix(lambda: None)
            sj_reads()
            c.e("s_waitcnt lgkmcnt(0)")
            sj_stores()
            c.e("s_barrier")
        else:
            c.e("s_waitcnt vmcnt(14)")
            c.e("s_barrier")
            mix(lambda: None)
            c.e("s_waitcnt vmcnt(0)")
            c.e("s_barrier")
        mix(lambda: None)
        c.vm = []
        for k in range(len(LT)): c.e(f"v_add_f32 v{vCS[k]}, v{vCS[k]}, v{vC2[k]}")
        c.e(f"v_and_b32 v{vt}, 31, v0")
        c.e(f"v_lshlrev_b32 v{vt}, 5, v{vt}")
        c.e(f"v_lshrrev_b32 v{vt2}, 5, v0")
        c.e(f"v_lshl_add_u32 v{vt}, v{vt2}, 2, v{vt}")
        c.e(f"s_lshl_b32 s{sT0}, s{sTW}, 3")
        c.e(f"v_add_u32 v{vt}, s{sT0}, v{vt}")
        c.e(f"v_add_u32 v{vt}, {CSP}, v{vt}")
        for k, t in enumerate(LT):
            c.e(f"ds_write_b32 v{vt}, v{vCS[k]} offset:{t*1024}")
        if not SJE: sj_reads()
        c.wait_lg0()
        c.e("s_barrier")
        trace_dump(c, vt)
        if not SJE: sj_stores()
        if DIRECT: c.e("s_barrier")
        else:
            for i in range(5): c.e("s_barrier")
            c.e(f"s_cmp_eq_u32 s{sFT}, 14")
            c.e("s_cbranch_scc1 K1L_X")
            c.e("s_barrier")
            c.label("K1L_X")
    else:
        c.e(f"s_lshr_b32 s{sT0}, s{sTW}, 1")
        c.e(f"s_cmp_eq_u32 s{sT0}, 0")
        c.e(f"s_cselect_b32 s{S_W}, s28, s30")
        c.e(f"s_cselect_b32 s{S_W+1}, s29, s31")
        c.e(f"s_and_b32 s{S_W+1}, s{S_W+1}, 0xffff")
        c.e(f"s_mov_b32 s{S_W+2}, 25600")
        c.e(f"s_mov_b32 s{S_W+3}, 0x20000")
        c.e(f"s_and_b32 s{sT1}, s{sTW}, 1")
        c.e(f"s_mul_i32 s{sWOFF}, s{sT1}, 12800")
        c.e(f"s_mul_i32 s{sW1K}, s{sTW}, {SLOT}")
        x_dma(c, vXa, vXb, 0, "ch0")
        for i in range(13):
            c.e(f"s_add_u32 m0, s{sW1K}, {1024*i}")
            c.e(f"s_add_u32 s{sT0}, s{sWOFF}, {1024*i}")
            c.vmem(f"buffer_load_dwordx4 v{vL16}, s[{S_W}:{S_W+3}], s{sT0} offen lds", "ch0")
        x_dma(c, vXa, vXb, 1, "ch1")
        c.wait_vm("ch0")
        c.e("s_barrier")
        for ch in range(2, 4): x_dma(c, vXa, vXb, ch, f"ch{ch}")
        for ch in range(9):
            c.wait_vm(f"ch{ch+1}")
            c.e("s_barrier")
            if ch + 4 < 10: x_dma(c, vXa, vXb, ch + 4, f"ch{ch+4}")
        o_fill(c, a.get(4, 4), vt, "K")
    c.finish(0, sW, S_O)
    return a.hi

def gen_k1():
    c = Code()
    k1_prologue(c)
    hi = 0
    c.e(f"s_cmp_eq_u32 s{sFT}, 15")
    c.e("s_cbranch_scc1 K1_KV")
    c.e(f"s_cmp_lg_u32 s{sFH}, 2")
    c.e("s_cbranch_scc1 K1_NOTL")
    cl = Code(); hi = max(hi, k1_loader(cl, False)); c.lines += cl.lines
    c.label("K1_NOTL")
    c.e(f"s_cmp_eq_u32 s{sFH}, 0")
    c.e("s_cbranch_scc0 K1_MAIN1")
    c0 = Code(); hi = max(hi, k1_compute(c0)); c.lines += c0.lines
    c.label("K1_MAIN1")
    c1 = Code(); hi = max(hi, k1_aux(c1)); c.lines += c1.lines
    c.label("K1_KV")
    c.e(f"s_cmp_eq_u32 s{sFH}, 2")
    c.e("s_cbranch_scc1 K1_LOADKV")
    c.e(f"s_cmp_eq_u32 s{sFH}, 0")
    c.e("s_cbranch_scc0 K1_KV1")
    c2 = Code(); hi = max(hi, k1_kv(c2, 0)); c.lines += c2.lines
    c.label("K1_KV1")
    c3 = Code(); hi = max(hi, k1_kv(c3, 1)); c.lines += c3.lines
    c.label("K1_LOADKV")
    cl = Code(); hi = max(hi, k1_loader(cl, True)); c.lines += cl.lines
    c.label("K1_END")
    c.e("s_endpgm")
    return c.text(), hi

if __name__ == "__main__":
    t, hi = gen_k1()
    print(t)
    import sys
    print("vgprs", hi, "lds", K1_LDS, file=sys.stderr)
```

```python
from core import *
import re
import k2 as K2old
from k2 import piece_addr
EXP = os.environ.get('EXP', '')

GP = int(re.search(r'gp=([0-9])', EXP).group(1)) if 'gp=' in EXP else 0
K2_LDS = 163840
S_WS, S_X, S_B2, S_OUT = 8, 12, 16, 20
sW, sTT, sHEAD, sT0, sT1, sT2, sIT, sGW, sFBK, sA, sB, sAS, sRB, sG, sFB, sTO, sSPIN, sPB = range(40, 58)
sVM = 58
K2old.sVM = sVM
NV = 168

def attn_tile(c, R, j, pat=None):
    S = R['S'][j & 1]; N = R['S'][(j + 1) & 1]; P = R['P']; O = R['O']
    K0, K1, Va, Vb, Q0, Q1 = R['K0'], R['K1'], R['Va'], R['Vb'], R['Q0'], R['Q1']
    vK0, vK1, vV = R['vK0'], R['vK1'], R['vV']
    def ex(lo):
        c.e(f"v_exp_f32 v{S+lo}, v{S+lo}")
        c.e(f"v_exp_f32 v{S+lo+1}, v{S+lo+1}")
        c.e(f"v_exp_f32 v{S+lo+2}, v{S+lo+2}")
        c.e(f"v_cvt_pk_bf16_f32 v{P+lo//2}, v{S+lo}, v{S+lo+1}")
        c.e(f"v_exp_f32 v{S+lo+3}, v{S+lo+3}")
        R['pend'] = (P + lo//2 + 1, S + lo + 2, S + lo + 3)
    def flush():
        if R.get('pend'):
            d, a_, b_ = R['pend']; c.e(f"v_cvt_pk_bf16_f32 v{d}, v{a_}, v{b_}"); R['pend'] = None
    T = 2560
    import re
    if pat is None:
        m = re.search(r"pat=([0-9\-]+)", EXP); pat = m.group(1) if m else "2--1"
    def pr(k):
        if pat[k] != '-': c.e(f"s_setprio {pat[k]}")
    W2 = 'w4' not in EXP
    pr(0)
    c.e("s_waitcnt lgkmcnt(2)" if W2 else "s_waitcnt lgkmcnt(3)")
    flush()
    c.e(f"v_mfma_f32_32x32x16_bf16 v[{N}:{N+15}], v[{K0}:{K0+3}], v[{Q0}:{Q0+3}], 0")
    c.e(f"ds_read_b128 v[{K0}:{K0+3}], v{vK0} offset:{(j+2)*T}")
    ex(0)
    pr(1)
    if not W2: c.e("s_waitcnt lgkmcnt(3)")
    c.e(f"v_mfma_f32_32x32x8_bf16 v[{N}:{N+15}], v[{K1}:{K1+1}], v[{Q1}:{Q1+1}], v[{N}:{N+15}]")
    flush()
    c.e(f"ds_read_b64 v[{K1}:{K1+1}], v{vK1} offset:{(j+2)*T}")
    ex(4)
    pr(2)
    c.e("s_waitcnt lgkmcnt(2)" if W2 else "s_waitcnt lgkmcnt(3)")
    flush()
    c.e(f"v_mfma_f32_32x32x16_bf16 v[{O}:{O+15}], v[{Vb}:{Vb+3}], v[{P+4}:{P+7}], v[{O}:{O+15}]")
    ex(8)
    pr(3)
    if not W2: c.e("s_waitcnt lgkmcnt(2)")
    c.e(f"v_mfma_f32_32x32x16_bf16 v[{O}:{O+15}], v[{Va}:{Va+3}], v[{P}:{P+3}], v[{O}:{O+15}]")
    flush()
    c.e(f"s_mov_b64 exec, s[{sVM}:{sVM+1}]")
    c.e(f"ds_read_b128 v[{Vb}:{Vb+3}], v{vV} offset:{j*T + 640}")
    c.e(f"ds_read_b128 v[{Va}:{Va+3}], v{vV} offset:{(j+1)*T}")
    c.e("s_mov_b64 exec, -1")
    ex(12)

PSTR = 35840
S9 = 4*PSTR

PROW = 656

def final_prefetch(c, F):
    vo, vn, vq, vt = F['vo'], F['vn'], F['vq'], F['vt']
    c.e(f"s_lshl_b32 s{sT0}, s{sW}, 6")
    c.e(f"v_add_u32 v{vq}, s{sT0}, v0")
    c.e(f"v_mul_u32_u24 v{vn}, 3277, v{vq}")
    c.e(f"v_lshrrev_b32 v{vn}, 16, v{vn}")
    c.e(f"v_mul_u32_u24 v{vt}, 20, v{vn}")
    c.e(f"v_sub_u32 v{vq}, v{vq}, v{vt}")
    c.e(f"s_mul_i32 s{sT1}, s{sFBK}, 320")
    c.e(f"v_lshlrev_b32 v{vt}, 4, v{vq}")
    c.e(f"v_add_u32 v{vt}, s{sT1}, v{vt}")
    c.vmem(f"buffer_load_dwordx4 v[{F['br']}:{F['br']+3}], v{vt}, s[{S_B2}:{S_B2+3}], 0 offen", "fin")
    c.e(f"s_lshl_b32 s{sT2}, s{sTO}, 5")
    c.e(f"v_add_u32 v{vo}, s{sT2}, v{vn}")
    c.e(f"v_mul_u32_u24 v{vo}, 1280, v{vo}")
    c.e(f"v_add_u32 v{vo}, v{vo}, v{vt}")
    c.e(f"v_cmp_gt_u32 vcc, 32, v{vn}")
    c.e(f"v_mov_b32 v{vt}, 0x7ffffff0")
    c.nop(1)
    c.e(f"v_cndmask_b32 v{vo}, v{vt}, v{vo}, vcc")
    c.vmem(f"buffer_load_dwordx4 v[{F['xr']}:{F['xr']+3}], v{vo}, s[{S_X}:{S_X+3}], 0 offen", "fin")
    c.e(f"v_min_u32 v{vn}, 31, v{vn}")
    c.e(f"v_mul_u32_u24 v{vn}, {PROW}, v{vn}")
    c.e(f"v_lshl_add_u32 v{vn}, v{vq}, 5, v{vn}")

def final_regs(base):
    a = Alloc(base, NV)
    F = dict(vo=a.get(), vn=a.get(), vq=a.get(), vt=a.get(), xr=a.get(4, 4), br=a.get(4, 4), rd=[a.get(4, 4) for _ in range(8)])
    return F, a.hi

def final_epilogue(c, F):
    vn, vq, vt, rd = F['vn'], F['vq'], F['vt'], F['rd']
    c.e(f"v_add_u32 v{vq}, {2*PSTR}, v{vn}")
    for k in range(4):
        base = vn if k < 2 else vq
        c.e(f"ds_read_b128 v[{rd[2*k]}:{rd[2*k]+3}], v{base} offset:{(k&1)*PSTR}")
        c.e(f"ds_read_b128 v[{rd[2*k+1]}:{rd[2*k+1]+3}], v{base} offset:{(k&1)*PSTR + 16}")
    c.e("s_waitcnt vmcnt(0) lgkmcnt(0)")
    for hf in range(2):
        for r in range(4):
            c.e(f"v_add_f32 v{rd[hf]+r}, v{rd[hf]+r}, v{rd[2+hf]+r}")
            c.e(f"v_add_f32 v{rd[4+hf]+r}, v{rd[4+hf]+r}, v{rd[6+hf]+r}")
        for r in range(4): c.e(f"v_add_f32 v{rd[hf]+r}, v{rd[hf]+r}, v{rd[4+hf]+r}")
    for src in (F['xr'], F['br']):
        for k in range(8):
            d = rd[k >> 2] + (k & 3)
            if k & 1: c.e(f"v_and_b32 v{vt}, 0xffff0000, v{src+(k>>1)}")
            else: c.e(f"v_lshlrev_b32 v{vt}, 16, v{src+(k>>1)}")
            c.e(f"v_add_f32 v{d}, v{d}, v{vt}")
    o = rd[2]
    for p in range(4):
        d = rd[p >> 1] + 2*(p & 1)
        c.e(f"v_cvt_pk_bf16_f32 v{o+p}, v{d}, v{d+1}")
    c.e(f"buffer_store_dwordx4 v[{o}:{o+3}], v{F['vo']}, s[{S_OUT}:{S_OUT+3}], 0 offen sc0 sc1")

def k2_args(c):
    c.e("s_waitcnt lgkmcnt(0)")
    c.stamp(0, real=True); c.stamp(1)
    srd(c, S_WS, 4, 5, WS_USED)

def k2_args2(c):
    srd(c, S_X, 6, 7, M*D*2)
    srd(c, S_B2, 24, 25, D*2)
    srd(c, S_OUT, 26, 27, M*D*2)

def gen_attn(c):
    a = Alloc(1, NV)
    vt, vt2, vn, vk = a.get(), a.get(), a.get(), a.get()
    vA, vB, vC = a.get(), a.get(), a.get()
    vL16 = a.get()
    vK0, vK1, vV = a.get(), a.get(), a.get()
    R = dict(S=[a.get(16, 4), a.get(16, 4)], P=a.get(8, 4), O=a.get(16, 4), K0=a.get(4, 4), K1=a.get(4, 4),
             Va=a.get(4, 4), Vb=a.get(4, 4), Q0=a.get(4, 4), Q1=a.get(4, 4), vK0=vK0, vK1=vK1, vV=vV)
    Q0, Q1, O, P = R['Q0'], R['Q1'], R['O'], R['P']
    c.e(f"s_lshr_b32 s{sT2}, s{sW}, 2")
    c.e(f"s_lshl_b32 s{sTT}, s{sRB}, 1")
    c.e(f"s_add_u32 s{sTT}, s{sTT}, s{sT2}")
    c.e(f"s_and_b32 s{sT2}, s{sW}, 3")
    c.e(f"s_lshl_b32 s{sHEAD}, s{sG}, 2")
    c.e(f"s_add_u32 s{sHEAD}, s{sHEAD}, s{sT2}")
    c.e(f"v_and_b32 v{vn}, 31, v0")
    c.e(f"v_lshrrev_b32 v{vt2}, 5, v0")
    c.e(f"s_mul_i32 s{sT0}, s{sHEAD}, 20")
    c.e(f"s_mul_i32 s{sT1}, s{sTT}, {40*1024}")
    c.e(f"v_lshlrev_b32 v{vk}, 2, v{vt2}")
    c.e(f"v_add_u32 v{vk}, s{sT0}, v{vk}")
    piece_addr(c, vA, vk, vn, vt, sT1)
    c.e(f"v_add_u32 v{vk}, 8, v{vk}")
    piece_addr(c, vB, vk, vn, vt, sT1)
    c.e(f"v_mov_b32 v{vk}, s{sT0}")
    c.e(f"v_add_u32 v{vk}, 16, v{vk}")
    piece_addr(c, vC, vk, vn, vt, sT1)
    k2_args(c)
    c.e(f"s_mov_b32 s{sT2}, {QF}")
    c.vmem(f"buffer_load_dwordx2 v[{Q0}:{Q0+1}], v{vA}, s[{S_WS}:{S_WS+3}], s{sT2} offen", "q")
    c.vmem(f"buffer_load_dwordx2 v[{Q0+2}:{Q0+3}], v{vB}, s[{S_WS}:{S_WS+3}], s{sT2} offen", "q")
    c.vmem(f"buffer_load_dwordx2 v[{Q1}:{Q1+1}], v{vC}, s[{S_WS}:{S_WS+3}], s{sT2} offen", "q")
    k2_args2(c)
    c.e(f"v_lshlrev_b32 v{vL16}, 4, v0")
    def base_addrs():
        c.e(f"v_mov_b32 v{vK0}, v{vL16}")
        c.e(f"v_lshlrev_b32 v{vK1}, 3, v{vn}")
        c.e(f"v_add_u32 v{vK1}, 1024, v{vK1}")
        c.e(f"v_lshrrev_b32 v{vt2}, 5, v0")
        c.e(f"v_mul_u32_u24 v{vV}, 20, v{vt2}")
        c.e(f"v_add_u32 v{vV}, v{vV}, v{vn}")
        c.e(f"v_lshlrev_b32 v{vV}, 4, v{vV}")
        c.e(f"v_add_u32 v{vV}, 1280, v{vV}")
        for r in range(16): c.e(f"v_mov_b32 v{O+r}, 0")
        for r in range(8): c.e(f"v_mov_b32 v{P+r}, 0")
    base_addrs()
    c.e(f"s_mov_b32 s{sVM}, 0x000fffff")
    c.e(f"s_mov_b32 s{sVM+1}, 0x000fffff")
    c.e(f"s_mov_b32 s{sFB}, 0")
    c.e(f"v_cmp_eq_u32 vcc, 20, v{vn}")
    c.e(f"v_mov_b32 v{vt}, 0x3f803f80")
    c.nop(1)
    for r in range(4):
        c.e(f"v_cndmask_b32 v{R['Va']+r}, 0, v{vt}, vcc")
        c.e(f"v_cndmask_b32 v{R['Vb']+r}, 0, v{vt}, vcc")
    c.wait_vm("q")
    c.e(f"v_cmp_gt_u32 vcc, 32, v0")
    c.nop(2)
    c.e(f"v_cndmask_b32 v{Q1}, 0, v{Q1}, vcc")
    c.e(f"v_cndmask_b32 v{Q1+1}, 0, v{Q1+1}, vcc")
    c.e("s_barrier")
    if 'clk' in EXP: c.stamp(2); c.stamp(3, real=True)
    elif 'tail' not in EXP: c.stamp(2)
    S0 = R['S'][0]
    c.e(f"ds_read_b128 v[{R['K0']}:{R['K0']+3}], v{vK0}")
    c.e(f"ds_read_b64 v[{R['K1']}:{R['K1']+1}], v{vK1}")
    c.e("s_waitcnt lgkmcnt(0)")
    c.e(f"v_mfma_f32_32x32x16_bf16 v[{S0}:{S0+15}], v[{R['K0']}:{R['K0']+3}], v[{Q0}:{Q0+3}], 0")
    c.e(f"v_mfma_f32_32x32x8_bf16 v[{S0}:{S0+15}], v[{R['K1']}:{R['K1']+1}], v[{Q1}:{Q1+1}], v[{S0}:{S0+15}]")
    c.e(f"ds_read_b128 v[{R['K0']}:{R['K0']+3}], v{vK0} offset:2560")
    c.e(f"ds_read_b64 v[{R['K1']}:{R['K1']+1}], v{vK1} offset:2560")
    c.e(f"s_mov_b64 exec, s[{sVM}:{sVM+1}]")
    c.e(f"ds_read_b128 v[{R['Vb']}:{R['Vb']+3}], v{vV}")
    c.e(f"ds_read_b128 v[{R['Va']}:{R['Va']+3}], v{vV}")
    c.e("s_mov_b64 exec, -1")
    c.e(f"s_mov_b32 s{sIT}, 0")
    c.nop(16)
    UN = int(os.environ.get('UN', '16'))
    def loop(tag, pat):
        c.label(f"K2_LOOP{tag}")
        for j in range(UN):
            attn_tile(c, R, j, pat)
            if UN == 16 and j == 7:
                c.e(f"s_cmp_eq_u32 s{sIT}, 0")
                c.e(f"s_cbranch_scc1 K2_BAR{tag}")
                c.e(f"s_cmp_lg_u32 s{sIT}, 3")
                c.e(f"s_cbranch_scc1 K2_NOBAR{tag}")
                c.e("s_waitcnt lgkmcnt(0)")
                c.label(f"K2_BAR{tag}")
                c.e("s_barrier")
                c.label(f"K2_NOBAR{tag}")
        c.e(f"v_add_u32 v{vK0}, {UN*2560}, v{vK0}")
        d, a_, b_ = R['pend']; c.e(f"v_cvt_pk_bf16_f32 v{d}, v{a_}, v{b_}"); R['pend'] = None
        c.e(f"v_add_u32 v{vK1}, {UN*2560}, v{vK1}")
        c.e(f"v_add_u32 v{vV}, {UN*2560}, v{vV}")
        c.e(f"s_add_u32 s{sIT}, s{sIT}, 1")
        if UN == 4:
            c.e(f"s_cmp_eq_u32 s{sIT}, 2")
            c.e(f"s_cbranch_scc1 K2_BAR{tag}")
            c.e(f"s_cmp_lg_u32 s{sIT}, 14")
            c.e(f"s_cbranch_scc1 K2_NOBAR{tag}")
            c.e("s_waitcnt lgkmcnt(0)")
            c.label(f"K2_BAR{tag}")
            c.e("s_barrier")
            c.label(f"K2_NOBAR{tag}")
        c.e(f"s_cmp_lt_u32 s{sIT}, {64//UN}")
        c.e(f"s_cbranch_scc1 K2_LOOP{tag}")
    if 'sym' != EXP:
        m_ = re.search(r"asym=([0-9\-]{4})([0-9\-]{4})", EXP)
        pa, pb = m_.groups() if m_ else ('3--0', '2--1')
        c.e(f"s_cmp_ge_u32 s{sW}, 4")
        c.e("s_cbranch_scc1 K2_LOOPB")
        loop("A", pa)
        c.e("s_branch K2_LOOPX")
        loop("B", pb)
        c.label("K2_LOOPX")
    else:
        loop("", None)
    c.e("s_waitcnt lgkmcnt(0)")
    c.nop(2)
    c.e(f"v_mfma_f32_32x32x16_bf16 v[{O}:{O+15}], v[{R['Vb']}:{R['Vb']+3}], v[{P+4}:{P+7}], v[{O}:{O+15}]")
    c.nop(16)
    if 'clk' in EXP: c.stamp(4); c.stamp(5, real=True)
    elif 'tail' not in EXP: c.stamp(3)
    c.label("K2_LEXT")
    c.e(f"v_mov_b32 v{vt}, v{O+8}")
    c.e(f"v_mov_b32 v{vt2}, v{O+8}")
    c.nop(2)
    c.e(f"v_permlane32_swap_b32 v{vt}, v{vt2}")
    c.nop(2)
    c.e(f"v_cmp_gt_u32 vcc, 32, v0")
    c.nop(2)
    c.e(f"v_cndmask_b32 v{vt}, v{O+8}, v{vt2}, vcc")
    c.e(f"s_cmp_lg_u32 s{sFB}, 0")
    c.e("s_cbranch_scc1 K2_NORM")
    c.e(f"v_mov_b32 v{vk}, {fhex(2.0**-60)}")
    c.e(f"v_cmp_ge_f32 s[4:5], v{vt}, v{vk}")
    c.e(f"v_mov_b32 v{vk}, {fhex(2.0**120)}")
    c.e(f"v_cmp_le_f32 s[6:7], v{vt}, v{vk}")
    c.e("s_and_b64 s[4:5], s[4:5], s[6:7]")
    t_ = R['S'][1]
    c.e(f"v_add_f32 v{t_}, v{O}, v{O+1}")
    c.e(f"v_add_f32 v{t_+1}, v{O+2}, v{O+3}")
    for r in range(4, 12, 2):
        c.e(f"v_add_f32 v{t_}, v{t_}, v{O+r}")
        c.e(f"v_add_f32 v{t_+1}, v{t_+1}, v{O+r+1}")
    c.e(f"v_add_f32 v{t_}, v{t_}, v{t_+1}")
    c.e(f"v_mov_b32 v{vk}, 0x7f800000")
    c.e(f"v_cmp_lt_f32 s[6:7], |v{t_}|, v{vk}")
    c.e("s_and_b64 s[4:5], s[4:5], s[6:7]")
    if 'forcefb' in EXP: c.e("s_mov_b64 s[4:5], 0")
    c.e("s_cmp_eq_u64 s[4:5], -1")
    c.e("s_cbranch_scc1 K2_NORM")
    vM = vk
    K0, K1, Va, Vb = R['K0'], R['K1'], R['Va'], R['Vb']
    base_addrs()
    c.e(f"v_mov_b32 v{vM}, 0xff800000")
    c.e(f"v_mov_b32 v{K1}, 0x3f803f80")
    c.e(f"v_mov_b32 v{K1+1}, 0x00003f80")
    c.e(f"s_mov_b32 s{sIT}, {KV}")
    def gl_k():
        c.e(f"buffer_load_dwordx4 v[{K0}:{K0+3}], v{vK0}, s[{S_WS}:{S_WS+3}], s{sIT} offen")
        c.e("s_mov_b64 exec, 0xffffffff")
        c.e(f"buffer_load_dwordx2 v[{K1}:{K1+1}], v{vK1}, s[{S_WS}:{S_WS+3}], s{sIT} offen")
        c.e("s_mov_b64 exec, -1")
    def qk():
        c.e(f"v_mfma_f32_32x32x16_bf16 v[{S0}:{S0+15}], v[{K0}:{K0+3}], v[{Q0}:{Q0+3}], 0")
        c.e(f"v_mfma_f32_32x32x8_bf16 v[{S0}:{S0+15}], v[{K1}:{K1+1}], v[{Q1}:{Q1+1}], v[{S0}:{S0+15}]")
        c.nop(20)
    c.label("K2_FBL")
    gl_k()
    c.e("s_waitcnt vmcnt(0)")
    qk()
    for r in range(0, 16, 2):
        c.e(f"v_max3_f32 v{vM}, v{vM}, v{S0+r}, v{S0+r+1}")
    c.e(f"s_add_u32 s{sIT}, s{sIT}, 2560")
    c.e(f"s_cmp_lt_u32 s{sIT}, {KV + 64*2560}")
    c.e("s_cbranch_scc1 K2_FBL")
    c.e(f"v_mov_b32 v{vt}, v{vM}")
    c.nop(2)
    c.e(f"v_permlane32_swap_b32 v{vM}, v{vt}")
    c.nop(2)
    c.e(f"v_max_f32 v{vM}, v{vM}, v{vt}")
    t0, t1, t2 = R['S'][1], R['S'][1]+1, R['S'][1]+2
    c.e(f"v_sub_f32 v{vM}, 0, v{vM}")
    c.e(f"v_cvt_pk_bf16_f32 v{t0}, v{vM}, v{vM}")
    c.e(f"v_and_b32 v{t0}, 0xffff0000, v{t0}")
    c.e(f"v_sub_f32 v{vM}, v{vM}, v{t0}")
    c.e(f"v_cvt_pk_bf16_f32 v{t1}, v{vM}, v{vM}")
    c.e(f"v_and_b32 v{t1}, 0xffff0000, v{t1}")
    c.e(f"v_sub_f32 v{vM}, v{vM}, v{t1}")
    c.e(f"v_cvt_pk_bf16_f32 v{t0}, v{t0}, v{t1}")
    c.e(f"v_mov_b32 v{t2}, 0")
    c.e(f"v_cvt_pk_bf16_f32 v{t1}, v{vM}, v{t2}")
    c.e(f"v_cmp_gt_u32 vcc, 32, v0")
    c.nop(2)
    c.e(f"v_cndmask_b32 v{Q1}, v{t0}, v{Q1}, vcc")
    c.e(f"v_cndmask_b32 v{Q1+1}, v{t1}, v{Q1+1}, vcc")
    c.e(f"s_mov_b32 s{sIT}, {KV}")
    c.label("K2_FB2")
    gl_k()
    c.e(f"s_mov_b64 exec, s[{sVM}:{sVM+1}]")
    c.e(f"buffer_load_dwordx4 v[{Va}:{Va+3}], v{vV}, s[{S_WS}:{S_WS+3}], s{sIT} offen")
    c.e(f"buffer_load_dwordx4 v[{Vb}:{Vb+3}], v{vV}, s[{S_WS}:{S_WS+3}], s{sIT} offen offset:640")
    c.e("s_mov_b64 exec, -1")
    c.e("s_waitcnt vmcnt(0)")
    qk()
    for r in range(16): c.e(f"v_exp_f32 v{S0+r}, v{S0+r}")
    c.nop(2)
    for p in range(8): c.e(f"v_cvt_pk_bf16_f32 v{P+p}, v{S0+2*p}, v{S0+2*p+1}")
    c.nop(2)
    c.e(f"v_mfma_f32_32x32x16_bf16 v[{O}:{O+15}], v[{Va}:{Va+3}], v[{P}:{P+3}], v[{O}:{O+15}]")
    c.e(f"v_mfma_f32_32x32x16_bf16 v[{O}:{O+15}], v[{Vb}:{Vb+3}], v[{P+4}:{P+7}], v[{O}:{O+15}]")
    c.e(f"s_add_u32 s{sIT}, s{sIT}, 2560")
    c.e(f"s_cmp_lt_u32 s{sIT}, {KV + 64*2560}")
    c.e("s_cbranch_scc1 K2_FB2")
    c.nop(20)
    c.e(f"s_mov_b32 s{sFB}, 1")
    c.e("s_branch K2_LEXT")
    c.label("K2_NORM")
    c.e(f"v_rcp_f32 v{vt}, v{vt}")
    c.e(f"v_cmp_gt_u32 vcc, 32, v0")
    for r in range(12): c.e(f"v_mul_f32 v{O+r}, v{O+r}, v{vt}")
    for p in range(6): c.e(f"v_cvt_pk_bf16_f32 v{O+p}, v{O+2*p}, v{O+2*p+1}")
    c.e(f"s_mul_i32 s{sT2}, s{sTT}, {40*1024}")
    c.e(f"s_add_u32 s{sT2}, s{sT2}, {OF}")
    c.e(f"s_lshl_b32 s{sT0}, s{sHEAD}, 10")
    c.e(f"s_add_u32 s{sT0}, s{sT0}, s{sT2}")
    c.e(f"s_lshl_b32 s{sT1}, s{sHEAD}, 8")
    c.e(f"s_add_u32 s{sT1}, s{sT1}, s{sT2}")
    c.e(f"s_add_u32 s{sT1}, s{sT1}, 32768")
    c.e(f"v_lshlrev_b32 v{vt}, 3, v0")
    c.e(f"buffer_store_dwordx4 v[{O}:{O+3}], v{vL16}, s[{S_WS}:{S_WS+3}], s{sT0} offen sc1")
    c.e("s_and_saveexec_b64 s[4:5], vcc")
    c.e(f"buffer_store_dwordx2 v[{O+4}:{O+5}], v{vt}, s[{S_WS}:{S_WS+3}], s{sT1} offen sc1")
    c.e("s_mov_b64 exec, -1")
    if 'waitst' in EXP: c.e("s_waitcnt vmcnt(0)")
    c.e("s_barrier")
    if 'clk' not in EXP: c.stamp(4)
    c.e("s_setprio 0")
    final_prefetch(c, FIN)
    c.e("s_barrier")
    if 'tail' in EXP and 'clk' not in EXP: c.stamp(2)
    c.e("s_branch K2_FINAL")
    return a.hi

def gen_gemm(c):
    a = Alloc(1, NV)
    vt, vL16, vF = a.get(), a.get(), a.get()
    acc = [a.get(16, 4) for _ in range(5)]
    fA = [[a.get(4, 4) for _ in range(5)] for _ in range(2)]
    oB = [a.get(4, 4) for _ in range(10)]
    fB = oB[:2]
    c.e("s_setprio 3")
    c.e(f"v_lshlrev_b32 v{vL16}, 4, v0")
    c.e(f"s_lshl_b32 s{sT1}, s{sGW}, 10")
    k2_args(c)
    def kv(i):
        c.e(f"s_add_u32 m0, s{sT1}, {4096*i}")
        c.e(f"s_add_u32 s{sT2}, s{sT1}, {KV + 4096*i}")
        c.vmem(f"buffer_load_dwordx4 v{vL16}, s[{S_WS}:{S_WS+3}], s{sT2} offen lds", f"kv{i}")
    NP = int(os.environ.get('NP', '7'))
    for i in range(NP): kv(i)
    k2_args2(c)
    for t in range(5):
        for r in range(16): c.e(f"v_mov_b32 v{acc[t]+r}, 0")
    c.wait_vm("kv6")
    c.e("s_barrier")
    for i in range(NP, 40): kv(i)
    c.wait_vm0()
    c.e("s_barrier")
    c.e(f"s_setprio {GP}")
    if 'tail' not in EXP: c.stamp(2)
    FL = " sc1" if 'fsc1' in EXP else (" nt" if 'fnt' in EXP else (" sc0" if 'fsc0' in EXP else ""))
    def loads(b, tag, nb=True, sc=""):
        if nb: c.vmem(f"buffer_load_dwordx4 v[{fB[b]}:{fB[b]+3}], v{vL16}, s[{S_WS}:{S_WS+3}], s{sB} offen{FL}", tag)
        for t in range(5):
            if t < 4: c.vmem(f"buffer_load_dwordx4 v[{fA[b][t]}:{fA[b][t]+3}], v{vL16}, s[{S_WS}:{S_WS+3}], s{sA} offen offset:{1024*t}{FL}", tag)
            else:
                c.e(f"s_add_u32 s{sAS}, s{sA}, 4096")
                c.vmem(f"buffer_load_dwordx4 v[{fA[b][t]}:{fA[b][t]+3}], v{vL16}, s[{S_WS}:{S_WS+3}], s{sAS} offen{FL}", tag)
        c.e(f"s_add_u32 s{sA}, s{sA}, 5120")
        if nb: c.e(f"s_add_u32 s{sB}, s{sB}, 1024")
    def mfmas(b, B=None):
        B = fB[b] if B is None else B
        for t in range(5):
            c.e(f"v_mfma_f32_32x32x16_bf16 v[{acc[t]}:{acc[t]+15}], v[{fA[b][t]}:{fA[b][t]+3}], v[{B}:{B+3}], v[{acc[t]}:{acc[t]+15}]")
    c.e(f"s_mul_i32 s{sA}, s{sFBK}, {108*5120}")
    c.e(f"s_mul_i32 s{sT0}, s{sGW}, {27*5120}")
    c.e(f"s_add_u32 s{sA}, s{sA}, s{sT0}")
    c.e(f"s_add_u32 s{sA}, s{sA}, {W2F}")
    c.e(f"s_mul_i32 s{sB}, s{sTO}, {108*1024}")
    c.e(f"s_mul_i32 s{sT0}, s{sGW}, {27*1024}")
    c.e(f"s_add_u32 s{sB}, s{sB}, s{sT0}")
    c.e(f"s_add_u32 s{sB}, s{sB}, {HF}")
    loads(0, "p")
    c.e(f"s_mov_b32 s{sIT}, {12 if 'noffn' in EXP else 0}")
    c.label("K2_GL")
    c.vm = ["a"]*6
    loads(1, "b"); c.wait_vm("a"); mfmas(0)
    loads(0, "a"); c.wait_vm("b"); mfmas(1)
    c.e(f"s_add_u32 s{sIT}, s{sIT}, 1")
    c.e(f"s_cmp_lt_u32 s{sIT}, 13")
    c.e("s_cbranch_scc1 K2_GL")
    c.wait_vm0(); mfmas(0)
    if 'tail' not in EXP: c.stamp(3)
    c.e(f"s_mul_i32 s{sA}, s{sFBK}, {40*5120}")
    c.e(f"s_mul_i32 s{sT0}, s{sGW}, {10*5120}")
    c.e(f"s_add_u32 s{sA}, s{sA}, s{sT0}")
    c.e(f"s_add_u32 s{sA}, s{sA}, {WOF}")
    loads(0, "w0", nb=False); loads(1, "w1", nb=False)
    c.e(f"v_lshlrev_b32 v{vt}, 7, v0")
    for i in range(5):
        c.e(f"s_add_u32 s{sAS}, s{sA}, {8192*i}")
        c.vmem(f"buffer_load_dword v{oB[2]+i}, v{vt}, s[{S_WS}:{S_WS+3}], s{sAS} offen", "warm")
    c.e(f"s_mul_i32 s{sPB}, s{sTO}, {40*1024}")
    c.e(f"s_add_u32 s{sPB}, s{sPB}, {OF}")
    c.e(f"s_lshl_b32 s{sT0}, s{sGW}, 13")
    c.e(f"s_add_u32 s{sB}, s{sPB}, s{sT0}")
    c.e(f"s_lshl_b32 s{sT0}, s{sGW}, 11")
    c.e(f"s_add_u32 s{sPB}, s{sPB}, s{sT0}")
    c.e(f"s_add_u32 s{sPB}, s{sPB}, 32768")
    c.e(f"s_mul_i32 s{sT1}, s{sGW}, {PSTR}")
    c.e(f"v_add_u32 v{vF}, s{sT1}, v{vL16}")
    vP = a.get(); vR = a.get(); vF9 = a.get()
    c.e(f"v_and_b32 v{vR}, 31, v0")
    c.e(f"v_lshlrev_b32 v{vR}, 3, v{vR}")
    c.e(f"v_lshrrev_b32 v{vP}, 5, v0")
    c.e(f"v_lshl_add_u32 v{vR}, v{vP}, 8, v{vR}")
    c.e(f"v_and_b32 v{vP}, 7, v0")
    c.e(f"v_lshlrev_b32 v{vP}, 8, v{vP}")
    c.e(f"v_lshrrev_b32 v{vt}, 3, v0")
    c.e(f"v_lshl_add_u32 v{vP}, v{vt}, 5, v{vP}")
    c.e("s_barrier")
    def wdma(i, dst, tag):
        c.e(f"s_add_u32 m0, s{sT1}, {dst}")
        c.e(f"s_add_u32 s{sT2}, s{sA}, {1024*i}")
        c.vmem(f"buffer_load_dwordx4 v{vL16}, s[{S_WS}:{S_WS+3}], s{sT2} offen lds", tag)
    for i in range(35): wdma(i, 1024*i, f"d{i//5 + 2}")
    if 'tail' in EXP: c.stamp(2)
    c.e("s_barrier")
    c.stamp(4)
    c.e("s_setprio 3")
    c.e(f"s_mul_i32 s{sT1}, s{sGW}, 5120")
    for i in range(35, 40): wdma(i, S9 + 1024*(i-35), "d9")
    c.e(f"v_add_u32 v{vF9}, s{sT1}, v{vL16}")
    c.e(f"v_add_u32 v{vF9}, {S9}, v{vF9}")
    def oloads():
        for i in range(8):
            q, r_ = divmod(i, 4)
            if r_ == 0 and q: c.e(f"s_add_u32 s{sAS}, s{sB}, 4096")
            sb = sB if q == 0 else sAS
            c.vmem(f"buffer_load_dwordx4 v[{oB[i]}:{oB[i]+3}], v{vL16}, s[{S_WS}:{S_WS+3}], s{sb} offen offset:{r_*1024} sc1", "o")
        for i in range(2):
            c.vmem(f"buffer_load_dwordx2 v[{oB[8+i]}:{oB[8+i]+1}], v{vR}, s[{S_WS}:{S_WS+3}], s{sPB} offen offset:{i*1024} sc1", "o")
            c.vmem(f"buffer_load_dwordx2 v[{oB[8+i]+2}:{oB[8+i]+3}], v{vR}, s[{S_WS}:{S_WS+3}], s{sPB} offen offset:{i*1024+512} sc1", "o")
    def ocheck():
        c.e(f"v_max_u32 v{vt}, v{oB[0]}, v{oB[0]+1}")
        regs = [oB[0]+2, oB[0]+3] + [oB[i]+r for i in range(1, 10) for r in range(4)]
        for k in range(0, len(regs), 2):
            c.e(f"v_max3_u32 v{vt}, v{vt}, v{regs[k]}, v{regs[k+1]}")
        c.e(f"v_cmp_eq_u32 vcc, -1, v{vt}")
        c.e("s_nop 1")
        c.e("s_cmp_eq_u64 vcc, 0")
    c.e(f"s_mov_b32 s{sSPIN}, 0")
    c.e("s_sleep %d" % int(re.search(r"slp=(\d+)", EXP).group(1) if 'slp=' in EXP else 4))
    c.label("K2_POLL")
    oloads()
    c.e("s_waitcnt vmcnt(0)")
    ocheck()
    c.e("s_cbranch_scc1 K2_GOT")
    c.e(f"s_add_u32 s{sSPIN}, s{sSPIN}, 1")
    c.e("s_sleep 2")
    c.e(f"s_cmp_lt_u32 s{sSPIN}, 0x40000")
    c.e("s_cbranch_scc1 K2_POLL")
    c.label("K2_GOT")
    c.vm = []
    c.stamp(5)
    def lreads(step):
        b = step & 1
        for t in range(5):
            if step < 9: c.lds(f"ds_read_b128 v[{fA[b][t]}:{fA[b][t]+3}], v{vF} offset:{((step-2)*5 + t)*1024}", f"r{step}")
            else: c.lds(f"ds_read_b128 v[{fA[b][t]}:{fA[b][t]+3}], v{vF9} offset:{t*1024}", f"r{step}")
    c.e(f"v_and_b32 v{vP}, 31, v0")
    c.e(f"v_mul_u32_u24 v{vP}, {PROW}, v{vP}")
    c.e(f"v_lshrrev_b32 v{vR}, 5, v0")
    c.e(f"v_lshl_add_u32 v{vP}, v{vR}, 4, v{vP}")
    c.e(f"s_mul_i32 s{sT0}, s{sGW}, {PSTR}")
    c.e(f"v_add_u32 v{vP}, s{sT0}, v{vP}")
    mfmas(0, oB[0]); lreads(2)
    mfmas(1, oB[1]); lreads(3)
    for i in range(2, 10):
        c.wait_lg(f"r{i}")
        mfmas(i & 1, oB[i])
        if i + 2 < 10: lreads(i + 2)
        if i == 3: final_prefetch(c, FING)
    if 'tail' in EXP: c.stamp(3)
    c.nop(16)
    for t in range(5):
        for j in range(4):
            c.e(f"ds_write_b128 v{vP}, v[{acc[t]+4*j}:{acc[t]+4*j+3}] offset:{(32*t + 8*j)*4}")
    c.e("s_waitcnt lgkmcnt(0)")
    c.e("s_barrier")
    return a.hi

FIN, FINHI = final_regs(124)
FING = FIN

def gen_k2f():
    c = Code()
    c.e("s_cmp_ge_u32 s2, 256")
    c.e("s_cbranch_scc1 K2_END")
    c.e("s_load_dwordx2 s[4:5], s[0:1], 96")
    c.e("s_load_dwordx2 s[6:7], s[0:1], 0")
    c.e("s_load_dwordx4 s[24:27], s[0:1], 72")
    c.e("v_lshrrev_b32 v1, 6, v0")
    c.e("v_and_b32 v0, 63, v0")
    c.e(f"v_readfirstlane_b32 s{sW}, v1")
    c.e(f"s_and_b32 s{sRB}, s2, 31")
    c.e(f"s_lshr_b32 s{sG}, s2, 5")
    c.e(f"s_lshr_b32 s{sT0}, s{sG}, 2")
    c.e(f"s_lshl_b32 s{sTO}, s{sRB}, 1")
    c.e(f"s_add_u32 s{sTO}, s{sTO}, s{sT0}")
    c.e(f"s_and_b32 s{sFBK}, s{sG}, 3")
    c.e(f"s_sub_u32 s{sGW}, s{sW}, 8")
    c.e(f"s_cmp_ge_u32 s{sW}, 8")
    c.e("s_cbranch_scc1 K2_GEMM")
    ca = Code(); h1 = gen_attn(ca); c.lines += ca.lines
    c.label("K2_GEMM")
    cg = Code(); h2 = gen_gemm(cg); c.lines += cg.lines
    c.label("K2_FINAL")
    final_epilogue(c, FIN)
    c.label("K2_DONE")
    c.finish(1, sW, S_WS)
    c.label("K2_END")
    c.e("s_endpgm")
    return c.text(), max(h1, h2, FINHI), K2_LDS
```

```python
import sys
from core import *
import k1
HEADER = """; Two launches (hand-written generator: see comments at each kernel):
;   k1_kernel: LayerNorm folded into the projections (raw x through MFMA, per-token statistics and per-column weight sums applied as one
;   k2_kernel: 8 waves multi-query attention (K/V image resident in LDS, P = exp2(S) with the row sum taken by a ones-row of V^T; a run-time
"""
def build(which=("k1",)):
    launches = []; body = ""; desc = ""
    if "k1" in which:
        t, hi = k1.gen_k1()
        launches.append(f"; @launch kernel=k1_kernel grid=(256,1,1) block=(768,1,1) lds={k1.K1_LDS}")
        body += kernel_header("k1_kernel") + t
        desc += kernel_desc("k1_kernel", 168, ns=102)
    if "k2" in which and "k2f" not in which:
        import k2
        t, hi, lds = k2.gen_k2()
        launches.append(f"; @launch kernel=k2_kernel grid=(256,1,1) block=(512,1,1) lds={lds}")
        body += kernel_header("k2_kernel") + t
        desc += kernel_desc("k2_kernel", hi)
    if "k2f" in which:
        import k2f
        t, hi, lds = k2f.gen_k2f()
        launches.append(f"; @launch kernel=k2_kernel grid=(256,1,1) block=(768,1,1) lds={lds}")
        body += kernel_header("k2_kernel") + t
        desc += kernel_desc("k2_kernel", hi)
    if "k3" in which:
        import k3
        t, hi, lds = k3.gen_k3()
        launches.append(f"; @launch kernel=k3_kernel grid=(256,1,1) block=(512,1,1) lds={lds}")
        body += kernel_header("k3_kernel") + t
        desc += kernel_desc("k3_kernel", hi)
    body += "CODE_END:\n    s_endpgm\n"
    s = "\n".join(launches) + "\n" + HEADER
    s += '.amdgcn_target "amdgcn-amd-amdhsa--gfx950"\n.text\n' + body
    s += '.section .rodata,"a"\n' + desc
    return s
if __name__ == "__main__":
    print(build(sys.argv[1].split(",")))
```

```python
from core import *
import re
import k2 as K2old
from k2 import piece_addr
EXP = os.environ.get('EXP', '')

GP = int(re.search(r'gp=([0-9])', EXP).group(1)) if 'gp=' in EXP else 0
K2_LDS = 163840
S_WS, S_X, S_B2, S_OUT = 8, 12, 16, 20
sW, sTT, sHEAD, sT0, sT1, sT2, sIT, sGW, sFBK, sA, sB, sAS, sRB, sG, sFB, sTO, sSPIN, sPB = range(40, 58)
sVM = 58
K2old.sVM = sVM
NV = 168

def attn_tile(c, R, j, pat=None):
    S = R['S'][j & 1]; N = R['S'][(j + 1) & 1]; P = R['P']; O = R['O']
    K0, K1, Va, Vb, Q0, Q1 = R['K0'], R['K1'], R['Va'], R['Vb'], R['Q0'], R['Q1']
    vK0, vK1, vV = R['vK0'], R['vK1'], R['vV']
    def ex(lo):
        c.e(f"v_exp_f32 v{S+lo}, v{S+lo}")
        c.e(f"v_exp_f32 v{S+lo+1}, v{S+lo+1}")
        c.e(f"v_exp_f32 v{S+lo+2}, v{S+lo+2}")
        c.e(f"v_cvt_pk_bf16_f32 v{P+lo//2}, v{S+lo}, v{S+lo+1}")
        c.e(f"v_exp_f32 v{S+lo+3}, v{S+lo+3}")
        R['pend'] = (P + lo//2 + 1, S + lo + 2, S + lo + 3)
    def flush():
        if R.get('pend'):
            d, a_, b_ = R['pend']; c.e(f"v_cvt_pk_bf16_f32 v{d}, v{a_}, v{b_}"); R['pend'] = None
    T = 2560
    import re
    if pat is None:
        m = re.search(r"pat=([0-9\-]+)", EXP); pat = m.group(1) if m else "2--1"
    def pr(k):
        if pat[k] != '-': c.e(f"s_setprio {pat[k]}")
    W2 = 'w4' not in EXP
    pr(0)
    c.e("s_waitcnt lgkmcnt(2)" if W2 else "s_waitcnt lgkmcnt(3)")
    flush()
    c.e(f"v_mfma_f32_32x32x16_bf16 v[{N}:{N+15}], v[{K0}:{K0+3}], v[{Q0}:{Q0+3}], 0")
    c.e(f"ds_read_b128 v[{K0}:{K0+3}], v{vK0} offset:{(j+2)*T}")
    ex(0)
    pr(1)
    if not W2: c.e("s_waitcnt lgkmcnt(3)")
    c.e(f"v_mfma_f32_32x32x8_bf16 v[{N}:{N+15}], v[{K1}:{K1+1}], v[{Q1}:{Q1+1}], v[{N}:{N+15}]")
    flush()
    if 'k1m' in EXP: c.e("s_mov_b64 exec, 0xffffffff")
    c.e(f"ds_read_b64 v[{K1}:{K1+1}], v{vK1} offset:{(j+2)*T}")
    if 'k1m' in EXP: c.e("s_mov_b64 exec, -1")
    ex(4)
    pr(2)
    c.e("s_waitcnt lgkmcnt(2)" if W2 else "s_waitcnt lgkmcnt(3)")
    flush()
    c.e(f"v_mfma_f32_32x32x16_bf16 v[{O}:{O+15}], v[{Vb}:{Vb+3}], v[{P+4}:{P+7}], v[{O}:{O+15}]")
    ex(8)
    pr(3)
    if not W2: c.e("s_waitcnt lgkmcnt(2)")
    c.e(f"v_mfma_f32_32x32x16_bf16 v[{O}:{O+15}], v[{Va}:{Va+3}], v[{P}:{P+3}], v[{O}:{O+15}]")
    flush()
    c.e(f"s_mov_b64 exec, s[{sVM}:{sVM+1}]")
    c.e(f"ds_read_b128 v[{Vb}:{Vb+3}], v{vV} offset:{j*T + 640}")
    c.e(f"ds_read_b128 v[{Va}:{Va+3}], v{vV} offset:{(j+1)*T}")
    c.e("s_mov_b64 exec, -1")
    ex(12)

PSTR = 35840
S9 = 4*PSTR

PROW = 656

def final_prefetch(c, F):
    vo, vn, vq, vt = F['vo'], F['vn'], F['vq'], F['vt']
    c.e(f"s_lshl_b32 s{sT0}, s{sW}, 6")
    c.e(f"v_add_u32 v{vq}, s{sT0}, v0")
    c.e(f"v_mul_u32_u24 v{vn}, 3277, v{vq}")
    c.e(f"v_lshrrev_b32 v{vn}, 16, v{vn}")
    c.e(f"v_mul_u32_u24 v{vt}, 20, v{vn}")
    c.e(f"v_sub_u32 v{vq}, v{vq}, v{vt}")
    c.e(f"s_mul_i32 s{sT1}, s{sFBK}, 320")
    c.e(f"v_lshlrev_b32 v{vt}, 4, v{vq}")
    c.e(f"v_add_u32 v{vt}, s{sT1}, v{vt}")
    c.vmem(f"buffer_load_dwordx4 v[{F['br']}:{F['br']+3}], v{vt}, s[{S_B2}:{S_B2+3}], 0 offen", "fin")
    c.e(f"s_lshl_b32 s{sT2}, s{sTO}, 5")
    c.e(f"v_add_u32 v{vo}, s{sT2}, v{vn}")
    c.e(f"v_mul_u32_u24 v{vo}, 1280, v{vo}")
    c.e(f"v_add_u32 v{vo}, v{vo}, v{vt}")
    c.e(f"v_cmp_gt_u32 vcc, 32, v{vn}")
    c.e(f"v_mov_b32 v{vt}, 0x7ffffff0")
    c.nop(1)
    c.e(f"v_cndmask_b32 v{vo}, v{vt}, v{vo}, vcc")
    c.vmem(f"buffer_load_dwordx4 v[{F['xr']}:{F['xr']+3}], v{vo}, s[{S_X}:{S_X+3}], 0 offen", "fin")
    c.e(f"v_min_u32 v{vn}, 31, v{vn}")
    c.e(f"v_mul_u32_u24 v{vn}, {PROW}, v{vn}")
    c.e(f"v_lshl_add_u32 v{vn}, v{vq}, 5, v{vn}")

def final_regs(base):
    a = Alloc(base, NV)
    F = dict(vo=a.get(), vn=a.get(), vq=a.get(), vt=a.get(), xr=a.get(4, 4), br=a.get(4, 4), rd=[a.get(4, 4) for _ in range(8)])
    return F, a.hi

def final_epilogue(c, F):
    vn, vq, vt, rd = F['vn'], F['vq'], F['vt'], F['rd']
    c.e(f"v_add_u32 v{vq}, {2*PSTR}, v{vn}")
    for k in range(4):
        base = vn if k < 2 else vq
        c.e(f"ds_read_b128 v[{rd[2*k]}:{rd[2*k]+3}], v{base} offset:{(k&1)*PSTR}")
        c.e(f"ds_read_b128 v[{rd[2*k+1]}:{rd[2*k+1]+3}], v{base} offset:{(k&1)*PSTR + 16}")
    c.e("s_waitcnt vmcnt(0) lgkmcnt(0)")
    for hf in range(2):
        for r in range(4):
            c.e(f"v_add_f32 v{rd[hf]+r}, v{rd[hf]+r}, v{rd[2+hf]+r}")
            c.e(f"v_add_f32 v{rd[4+hf]+r}, v{rd[4+hf]+r}, v{rd[6+hf]+r}")
        for r in range(4): c.e(f"v_add_f32 v{rd[hf]+r}, v{rd[hf]+r}, v{rd[4+hf]+r}")
    for src in (F['xr'], F['br']):
        for k in range(8):
            d = rd[k >> 2] + (k & 3)
            if k & 1: c.e(f"v_and_b32 v{vt}, 0xffff0000, v{src+(k>>1)}")
            else: c.e(f"v_lshlrev_b32 v{vt}, 16, v{src+(k>>1)}")
            c.e(f"v_add_f32 v{d}, v{d}, v{vt}")
    o = rd[2]
    for p in range(4):
        d = rd[p >> 1] + 2*(p & 1)
        c.e(f"v_cvt_pk_bf16_f32 v{o+p}, v{d}, v{d+1}")
    c.e(f"buffer_store_dwordx4 v[{o}:{o+3}], v{F['vo']}, s[{S_OUT}:{S_OUT+3}], 0 offen sc0 sc1")

def k2_args(c):
    c.e("s_waitcnt lgkmcnt(0)")
    c.stamp(0, real=True); c.stamp(1)
    srd(c, S_WS, 4, 5, WS_USED)

def k2_args2(c):
    srd(c, S_X, 6, 7, M*D*2)
    srd(c, S_B2, 24, 25, D*2)
    srd(c, S_OUT, 26, 27, M*D*2)

def gen_attn(c):
    a = Alloc(1, NV)
    vt, vt2, vn, vk = a.get(), a.get(), a.get(), a.get()
    vA, vB, vC = a.get(), a.get(), a.get()
    vL16 = a.get()
    vK0, vK1, vV = a.get(), a.get(), a.get()
    R = dict(S=[a.get(16, 4), a.get(16, 4)], P=a.get(8, 4), O=a.get(16, 4), K0=a.get(4, 4), K1=a.get(4, 4),
             Va=a.get(4, 4), Vb=a.get(4, 4), Q0=a.get(4, 4), Q1=a.get(4, 4), vK0=vK0, vK1=vK1, vV=vV)
    Q0, Q1, O, P = R['Q0'], R['Q1'], R['O'], R['P']
    c.e(f"s_lshr_b32 s{sT2}, s{sW}, 2")
    c.e(f"s_lshl_b32 s{sTT}, s{sRB}, 1")
    c.e(f"s_add_u32 s{sTT}, s{sTT}, s{sT2}")
    c.e(f"s_and_b32 s{sT2}, s{sW}, 3")
    c.e(f"s_lshl_b32 s{sHEAD}, s{sG}, 2")
    c.e(f"s_add_u32 s{sHEAD}, s{sHEAD}, s{sT2}")
    c.e(f"v_and_b32 v{vn}, 31, v0")
    c.e(f"v_lshrrev_b32 v{vt2}, 5, v0")
    c.e(f"s_mul_i32 s{sT0}, s{sHEAD}, 20")
    c.e(f"s_mul_i32 s{sT1}, s{sTT}, {40*1024}")
    c.e(f"v_lshlrev_b32 v{vk}, 2, v{vt2}")
    c.e(f"v_add_u32 v{vk}, s{sT0}, v{vk}")
    piece_addr(c, vA, vk, vn, vt, sT1)
    c.e(f"v_add_u32 v{vk}, 8, v{vk}")
    piece_addr(c, vB, vk, vn, vt, sT1)
    c.e(f"v_mov_b32 v{vk}, s{sT0}")
    c.e(f"v_add_u32 v{vk}, 16, v{vk}")
    piece_addr(c, vC, vk, vn, vt, sT1)
    k2_args(c)
    c.e(f"s_mov_b32 s{sT2}, {QF}")
    c.vmem(f"buffer_load_dwordx2 v[{Q0}:{Q0+1}], v{vA}, s[{S_WS}:{S_WS+3}], s{sT2} offen", "q")
    c.vmem(f"buffer_load_dwordx2 v[{Q0+2}:{Q0+3}], v{vB}, s[{S_WS}:{S_WS+3}], s{sT2} offen", "q")
    c.vmem(f"buffer_load_dwordx2 v[{Q1}:{Q1+1}], v{vC}, s[{S_WS}:{S_WS+3}], s{sT2} offen", "q")
    k2_args2(c)
    c.e(f"v_lshlrev_b32 v{vL16}, 4, v0")
    def base_addrs():
        c.e(f"v_mov_b32 v{vK0}, v{vL16}")
        c.e(f"v_lshlrev_b32 v{vK1}, 3, v{vn}")
        c.e(f"v_add_u32 v{vK1}, 1024, v{vK1}")
        c.e(f"v_lshrrev_b32 v{vt2}, 5, v0")
        c.e(f"v_mul_u32_u24 v{vV}, 20, v{vt2}")
        c.e(f"v_add_u32 v{vV}, v{vV}, v{vn}")
        c.e(f"v_lshlrev_b32 v{vV}, 4, v{vV}")
        c.e(f"v_add_u32 v{vV}, 1280, v{vV}")
        for r in range(16): c.e(f"v_mov_b32 v{O+r}, 0")
        for r in range(8): c.e(f"v_mov_b32 v{P+r}, 0")
    base_addrs()
    c.e(f"s_mov_b32 s{sVM}, 0x000fffff")
    c.e(f"s_mov_b32 s{sVM+1}, 0x000fffff")
    c.e(f"s_mov_b32 s{sFB}, 0")
    c.e(f"v_cmp_eq_u32 vcc, 20, v{vn}")
    c.e(f"v_mov_b32 v{vt}, 0x3f803f80")
    c.nop(1)
    for r in range(4):
        c.e(f"v_cndmask_b32 v{R['Va']+r}, 0, v{vt}, vcc")
        c.e(f"v_cndmask_b32 v{R['Vb']+r}, 0, v{vt}, vcc")
    c.wait_vm("q")
    c.e(f"v_cmp_gt_u32 vcc, 32, v0")
    c.nop(2)
    c.e(f"v_cndmask_b32 v{Q1}, 0, v{Q1}, vcc")
    c.e(f"v_cndmask_b32 v{Q1+1}, 0, v{Q1+1}, vcc")
    c.e("s_barrier")
    if 'clk' in EXP: c.stamp(2); c.stamp(3, real=True)
    elif 'tail' not in EXP: c.stamp(2)
    S0 = R['S'][0]
    c.e(f"ds_read_b128 v[{R['K0']}:{R['K0']+3}], v{vK0}")
    if 'k1m' in EXP:
        c.e(f"v_mov_b32 v{R['K1']}, 0"); c.e(f"v_mov_b32 v{R['K1']+1}, 0"); c.e("s_mov_b64 exec, 0xffffffff")
    c.e(f"ds_read_b64 v[{R['K1']}:{R['K1']+1}], v{vK1}")
    if 'k1m' in EXP: c.e("s_mov_b64 exec, -1")
    c.e("s_waitcnt lgkmcnt(0)")
    c.e(f"v_mfma_f32_32x32x16_bf16 v[{S0}:{S0+15}], v[{R['K0']}:{R['K0']+3}], v[{Q0}:{Q0+3}], 0")
    c.e(f"v_mfma_f32_32x32x8_bf16 v[{S0}:{S0+15}], v[{R['K1']}:{R['K1']+1}], v[{Q1}:{Q1+1}], v[{S0}:{S0+15}]")
    c.e(f"ds_read_b128 v[{R['K0']}:{R['K0']+3}], v{vK0} offset:2560")
    if 'k1m' in EXP: c.e("s_mov_b64 exec, 0xffffffff")
    c.e(f"ds_read_b64 v[{R['K1']}:{R['K1']+1}], v{vK1} offset:2560")
    if 'k1m' in EXP: c.e("s_mov_b64 exec, -1")
    c.e(f"s_mov_b64 exec, s[{sVM}:{sVM+1}]")
    c.e(f"ds_read_b128 v[{R['Vb']}:{R['Vb']+3}], v{vV}")
    c.e(f"ds_read_b128 v[{R['Va']}:{R['Va']+3}], v{vV}")
    c.e("s_mov_b64 exec, -1")
    c.e(f"s_mov_b32 s{sIT}, 0")
    c.nop(16)
    UN = int(os.environ.get('UN', '16'))
    def loop(tag, pat):
        c.label(f"K2_LOOP{tag}")
        for j in range(UN):
            attn_tile(c, R, j, pat)
            if UN == 16 and j == 7:
                c.e(f"s_cmp_eq_u32 s{sIT}, 0")
                c.e(f"s_cbranch_scc1 K2_BAR{tag}")
                c.e(f"s_cmp_lg_u32 s{sIT}, 3")
                c.e(f"s_cbranch_scc1 K2_NOBAR{tag}")
                c.e("s_waitcnt lgkmcnt(0)")
                c.label(f"K2_BAR{tag}")
                c.e("s_barrier")
                c.label(f"K2_NOBAR{tag}")
        c.e(f"v_add_u32 v{vK0}, {UN*2560}, v{vK0}")
        d, a_, b_ = R['pend']; c.e(f"v_cvt_pk_bf16_f32 v{d}, v{a_}, v{b_}"); R['pend'] = None
        c.e(f"v_add_u32 v{vK1}, {UN*2560}, v{vK1}")
        c.e(f"v_add_u32 v{vV}, {UN*2560}, v{vV}")
        c.e(f"s_add_u32 s{sIT}, s{sIT}, 1")
        if UN == 4:
            c.e(f"s_cmp_eq_u32 s{sIT}, 2")
            c.e(f"s_cbranch_scc1 K2_BAR{tag}")
            c.e(f"s_cmp_lg_u32 s{sIT}, 14")
            c.e(f"s_cbranch_scc1 K2_NOBAR{tag}")
            c.e("s_waitcnt lgkmcnt(0)")
            c.label(f"K2_BAR{tag}")
            c.e("s_barrier")
            c.label(f"K2_NOBAR{tag}")
        c.e(f"s_cmp_lt_u32 s{sIT}, {64//UN}")
        c.e(f"s_cbranch_scc1 K2_LOOP{tag}")
    if 'sym' != EXP:
        m_ = re.search(r"asym=([0-9\-]{4})([0-9\-]{4})", EXP)
        pa, pb = m_.groups() if m_ else ('3--0', '2--1')
        c.e(f"s_cmp_ge_u32 s{sW}, 4")
        c.e("s_cbranch_scc1 K2_LOOPB")
        loop("A", pa)
        c.e("s_branch K2_LOOPX")
        loop("B", pb)
        c.label("K2_LOOPX")
    else:
        loop("", None)
    c.e("s_waitcnt lgkmcnt(0)")
    c.nop(2)
    c.e(f"v_mfma_f32_32x32x16_bf16 v[{O}:{O+15}], v[{R['Vb']}:{R['Vb']+3}], v[{P+4}:{P+7}], v[{O}:{O+15}]")
    c.nop(16)
    if 'clk' in EXP: c.stamp(4); c.stamp(5, real=True)
    elif 'tail' not in EXP: c.stamp(3)
    c.label("K2_LEXT")
    c.e(f"v_mov_b32 v{vt}, v{O+8}")
    c.e(f"v_mov_b32 v{vt2}, v{O+8}")
    c.nop(2)
    c.e(f"v_permlane32_swap_b32 v{vt}, v{vt2}")
    c.nop(2)
    c.e(f"v_cmp_gt_u32 vcc, 32, v0")
    c.nop(2)
    c.e(f"v_cndmask_b32 v{vt}, v{O+8}, v{vt2}, vcc")
    c.e(f"s_cmp_lg_u32 s{sFB}, 0")
    c.e("s_cbranch_scc1 K2_NORM")
    c.e(f"v_mov_b32 v{vk}, {fhex(2.0**-60)}")
    c.e(f"v_cmp_ge_f32 s[4:5], v{vt}, v{vk}")
    c.e(f"v_mov_b32 v{vk}, {fhex(2.0**120)}")
    c.e(f"v_cmp_le_f32 s[6:7], v{vt}, v{vk}")
    c.e("s_and_b64 s[4:5], s[4:5], s[6:7]")
    t_ = R['S'][1]
    c.e(f"v_add_f32 v{t_}, v{O}, v{O+1}")
    c.e(f"v_add_f32 v{t_+1}, v{O+2}, v{O+3}")
    for r in range(4, 12, 2):
        c.e(f"v_add_f32 v{t_}, v{t_}, v{O+r}")
        c.e(f"v_add_f32 v{t_+1}, v{t_+1}, v{O+r+1}")
    c.e(f"v_add_f32 v{t_}, v{t_}, v{t_+1}")
    c.e(f"v_mov_b32 v{vk}, 0x7f800000")
    c.e(f"v_cmp_lt_f32 s[6:7], |v{t_}|, v{vk}")
    c.e("s_and_b64 s[4:5], s[4:5], s[6:7]")
    if 'forcefb' in EXP: c.e("s_mov_b64 s[4:5], 0")
    c.e("s_cmp_eq_u64 s[4:5], -1")
    c.e("s_cbranch_scc1 K2_NORM")
    vM = vk
    K0, K1, Va, Vb = R['K0'], R['K1'], R['Va'], R['Vb']
    base_addrs()
    c.e(f"v_mov_b32 v{vM}, 0xff800000")
    c.e(f"v_mov_b32 v{K1}, 0x3f803f80")
    c.e(f"v_mov_b32 v{K1+1}, 0x00003f80")
    c.e(f"s_mov_b32 s{sIT}, {KV}")
    def gl_k():
        c.e(f"buffer_load_dwordx4 v[{K0}:{K0+3}], v{vK0}, s[{S_WS}:{S_WS+3}], s{sIT} offen")
        c.e("s_mov_b64 exec, 0xffffffff")
        c.e(f"buffer_load_dwordx2 v[{K1}:{K1+1}], v{vK1}, s[{S_WS}:{S_WS+3}], s{sIT} offen")
        c.e("s_mov_b64 exec, -1")
    def qk():
        c.e(f"v_mfma_f32_32x32x16_bf16 v[{S0}:{S0+15}], v[{K0}:{K0+3}], v[{Q0}:{Q0+3}], 0")
        c.e(f"v_mfma_f32_32x32x8_bf16 v[{S0}:{S0+15}], v[{K1}:{K1+1}], v[{Q1}:{Q1+1}], v[{S0}:{S0+15}]")
        c.nop(20)
    c.label("K2_FBL")
    gl_k()
    c.e("s_waitcnt vmcnt(0)")
    qk()
    for r in range(0, 16, 2):
        c.e(f"v_max3_f32 v{vM}, v{vM}, v{S0+r}, v{S0+r+1}")
    c.e(f"s_add_u32 s{sIT}, s{sIT}, 2560")
    c.e(f"s_cmp_lt_u32 s{sIT}, {KV + 64*2560}")
    c.e("s_cbranch_scc1 K2_FBL")
    c.e(f"v_mov_b32 v{vt}, v{vM}")
    c.nop(2)
    c.e(f"v_permlane32_swap_b32 v{vM}, v{vt}")
    c.nop(2)
    c.e(f"v_max_f32 v{vM}, v{vM}, v{vt}")
    t0, t1, t2 = R['S'][1], R['S'][1]+1, R['S'][1]+2
    c.e(f"v_sub_f32 v{vM}, 0, v{vM}")
    c.e(f"v_cvt_pk_bf16_f32 v{t0}, v{vM}, v{vM}")
    c.e(f"v_and_b32 v{t0}, 0xffff0000, v{t0}")
    c.e(f"v_sub_f32 v{vM}, v{vM}, v{t0}")
    c.e(f"v_cvt_pk_bf16_f32 v{t1}, v{vM}, v{vM}")
    c.e(f"v_and_b32 v{t1}, 0xffff0000, v{t1}")
    c.e(f"v_sub_f32 v{vM}, v{vM}, v{t1}")
    c.e(f"v_cvt_pk_bf16_f32 v{t0}, v{t0}, v{t1}")
    c.e(f"v_mov_b32 v{t2}, 0")
    c.e(f"v_cvt_pk_bf16_f32 v{t1}, v{vM}, v{t2}")
    c.e(f"v_cmp_gt_u32 vcc, 32, v0")
    c.nop(2)
    c.e(f"v_cndmask_b32 v{Q1}, v{t0}, v{Q1}, vcc")
    c.e(f"v_cndmask_b32 v{Q1+1}, v{t1}, v{Q1+1}, vcc")
    c.e(f"s_mov_b32 s{sIT}, {KV}")
    c.label("K2_FB2")
    gl_k()
    c.e(f"s_mov_b64 exec, s[{sVM}:{sVM+1}]")
    c.e(f"buffer_load_dwordx4 v[{Va}:{Va+3}], v{vV}, s[{S_WS}:{S_WS+3}], s{sIT} offen")
    c.e(f"buffer_load_dwordx4 v[{Vb}:{Vb+3}], v{vV}, s[{S_WS}:{S_WS+3}], s{sIT} offen offset:640")
    c.e("s_mov_b64 exec, -1")
    c.e("s_waitcnt vmcnt(0)")
    qk()
    for r in range(16): c.e(f"v_exp_f32 v{S0+r}, v{S0+r}")
    c.nop(2)
    for p in range(8): c.e(f"v_cvt_pk_bf16_f32 v{P+p}, v{S0+2*p}, v{S0+2*p+1}")
    c.nop(2)
    c.e(f"v_mfma_f32_32x32x16_bf16 v[{O}:{O+15}], v[{Va}:{Va+3}], v[{P}:{P+3}], v[{O}:{O+15}]")
    c.e(f"v_mfma_f32_32x32x16_bf16 v[{O}:{O+15}], v[{Vb}:{Vb+3}], v[{P+4}:{P+7}], v[{O}:{O+15}]")
    c.e(f"s_add_u32 s{sIT}, s{sIT}, 2560")
    c.e(f"s_cmp_lt_u32 s{sIT}, {KV + 64*2560}")
    c.e("s_cbranch_scc1 K2_FB2")
    c.nop(20)
    c.e(f"s_mov_b32 s{sFB}, 1")
    c.e("s_branch K2_LEXT")
    c.label("K2_NORM")
    c.e(f"v_rcp_f32 v{vt}, v{vt}")
    c.e(f"v_cmp_gt_u32 vcc, 32, v0")
    for r in range(12): c.e(f"v_mul_f32 v{O+r}, v{O+r}, v{vt}")
    for p in range(6): c.e(f"v_cvt_pk_bf16_f32 v{O+p}, v{O+2*p}, v{O+2*p+1}")
    c.e(f"s_mul_i32 s{sT2}, s{sTT}, {40*1024}")
    c.e(f"s_add_u32 s{sT2}, s{sT2}, {OF}")
    c.e(f"s_lshl_b32 s{sT0}, s{sHEAD}, 10")
    c.e(f"s_add_u32 s{sT0}, s{sT0}, s{sT2}")
    c.e(f"s_lshl_b32 s{sT1}, s{sHEAD}, 8")
    c.e(f"s_add_u32 s{sT1}, s{sT1}, s{sT2}")
    c.e(f"s_add_u32 s{sT1}, s{sT1}, 32768")
    c.e(f"v_lshlrev_b32 v{vt}, 3, v0")
    c.e(f"buffer_store_dwordx4 v[{O}:{O+3}], v{vL16}, s[{S_WS}:{S_WS+3}], s{sT0} offen sc1")
    c.e("s_and_saveexec_b64 s[4:5], vcc")
    c.e(f"buffer_store_dwordx2 v[{O+4}:{O+5}], v{vt}, s[{S_WS}:{S_WS+3}], s{sT1} offen sc1")
    c.e("s_mov_b64 exec, -1")
    if 'waitst' in EXP: c.e("s_waitcnt vmcnt(0)")
    c.e("s_barrier")
    if 'clk' not in EXP: c.stamp(4)
    c.e("s_setprio 0")
    final_prefetch(c, FIN)
    c.e("s_barrier")
    if 'tail' in EXP and 'clk' not in EXP: c.stamp(2)
    c.e("s_branch K2_FINAL")
    return a.hi

def gen_gemm(c):
    a = Alloc(1, NV)
    vt, vL16, vF = a.get(), a.get(), a.get()
    acc = [a.get(16, 4) for _ in range(5)]
    fA = [[a.get(4, 4) for _ in range(5)] for _ in range(2)]
    oB = [a.get(4, 4) for _ in range(10)]
    fB = oB[:2]
    c.e("s_setprio 3")
    c.e(f"v_lshlrev_b32 v{vL16}, 4, v0")
    c.e(f"s_lshl_b32 s{sT1}, s{sGW}, 10")
    k2_args(c)
    def kv(i):
        c.e(f"s_add_u32 m0, s{sT1}, {4096*i}")
        c.e(f"s_add_u32 s{sT2}, s{sT1}, {KV + 4096*i}")
        c.vmem(f"buffer_load_dwordx4 v{vL16}, s[{S_WS}:{S_WS+3}], s{sT2} offen lds", f"kv{i}")
    NP = int(os.environ.get('NP', '7'))
    for i in range(NP): kv(i)
    k2_args2(c)
    for t in range(5):
        for r in range(16): c.e(f"v_mov_b32 v{acc[t]+r}, 0")
    c.wait_vm("kv6")
    c.e("s_barrier")
    for i in range(NP, 40): kv(i)
    c.wait_vm0()
    c.e("s_barrier")
    c.e(f"s_setprio {GP}")
    if 'tail' not in EXP: c.stamp(2)
    FL = " sc1" if 'fsc1' in EXP else (" nt" if 'fnt' in EXP else (" sc0" if 'fsc0' in EXP else ""))
    def loads(b, tag, nb=True, sc=""):
        if nb: c.vmem(f"buffer_load_dwordx4 v[{fB[b]}:{fB[b]+3}], v{vL16}, s[{S_WS}:{S_WS+3}], s{sB} offen{FL}", tag)
        for t in range(5):
            if t < 4: c.vmem(f"buffer_load_dwordx4 v[{fA[b][t]}:{fA[b][t]+3}], v{vL16}, s[{S_WS}:{S_WS+3}], s{sA} offen offset:{1024*t}{FL}", tag)
            else:
                c.e(f"s_add_u32 s{sAS}, s{sA}, 4096")
                c.vmem(f"buffer_load_dwordx4 v[{fA[b][t]}:{fA[b][t]+3}], v{vL16}, s[{S_WS}:{S_WS+3}], s{sAS} offen{FL}", tag)
        c.e(f"s_add_u32 s{sA}, s{sA}, 5120")
        if nb: c.e(f"s_add_u32 s{sB}, s{sB}, 1024")
    def mfmas(b, B=None):
        B = fB[b] if B is None else B
        for t in range(5):
            c.e(f"v_mfma_f32_32x32x16_bf16 v[{acc[t]}:{acc[t]+15}], v[{fA[b][t]}:{fA[b][t]+3}], v[{B}:{B+3}], v[{acc[t]}:{acc[t]+15}]")
    c.e(f"s_mul_i32 s{sA}, s{sFBK}, {108*5120}")
    c.e(f"s_mul_i32 s{sT0}, s{sGW}, {27*5120}")
    c.e(f"s_add_u32 s{sA}, s{sA}, s{sT0}")
    c.e(f"s_add_u32 s{sA}, s{sA}, {W2F}")
    c.e(f"s_mul_i32 s{sB}, s{sTO}, {108*1024}")
    c.e(f"s_mul_i32 s{sT0}, s{sGW}, {27*1024}")
    c.e(f"s_add_u32 s{sB}, s{sB}, s{sT0}")
    c.e(f"s_add_u32 s{sB}, s{sB}, {HF}")
    loads(0, "p")
    c.e(f"s_mov_b32 s{sIT}, {12 if 'noffn' in EXP else 0}")
    c.label("K2_GL")
    c.vm = ["a"]*6
    loads(1, "b"); c.wait_vm("a"); mfmas(0)
    loads(0, "a"); c.wait_vm("b"); mfmas(1)
    c.e(f"s_add_u32 s{sIT}, s{sIT}, 1")
    c.e(f"s_cmp_lt_u32 s{sIT}, 13")
    c.e("s_cbranch_scc1 K2_GL")
    c.wait_vm0(); mfmas(0)
    if 'tail' not in EXP: c.stamp(3)
    c.e(f"s_mul_i32 s{sA}, s{sFBK}, {40*5120}")
    c.e(f"s_mul_i32 s{sT0}, s{sGW}, {10*5120}")
    c.e(f"s_add_u32 s{sA}, s{sA}, s{sT0}")
    c.e(f"s_add_u32 s{sA}, s{sA}, {WOF}")
    loads(0, "w0", nb=False); loads(1, "w1", nb=False)
    c.e(f"v_lshlrev_b32 v{vt}, 7, v0")
    for i in range(5):
        c.e(f"s_add_u32 s{sAS}, s{sA}, {8192*i}")
        c.vmem(f"buffer_load_dword v{oB[2]+i}, v{vt}, s[{S_WS}:{S_WS+3}], s{sAS} offen", "warm")
    c.e(f"s_mul_i32 s{sPB}, s{sTO}, {40*1024}")
    c.e(f"s_add_u32 s{sPB}, s{sPB}, {OF}")
    c.e(f"s_lshl_b32 s{sT0}, s{sGW}, 13")
    c.e(f"s_add_u32 s{sB}, s{sPB}, s{sT0}")
    c.e(f"s_lshl_b32 s{sT0}, s{sGW}, 11")
    c.e(f"s_add_u32 s{sPB}, s{sPB}, s{sT0}")
    c.e(f"s_add_u32 s{sPB}, s{sPB}, 32768")
    c.e(f"s_mul_i32 s{sT1}, s{sGW}, {PSTR}")
    c.e(f"v_add_u32 v{vF}, s{sT1}, v{vL16}")
    vP = a.get(); vR = a.get(); vF9 = a.get()
    c.e(f"v_and_b32 v{vR}, 31, v0")
    c.e(f"v_lshlrev_b32 v{vR}, 3, v{vR}")
    c.e(f"v_lshrrev_b32 v{vP}, 5, v0")
    c.e(f"v_lshl_add_u32 v{vR}, v{vP}, 8, v{vR}")
    c.e(f"v_and_b32 v{vP}, 7, v0")
    c.e(f"v_lshlrev_b32 v{vP}, 8, v{vP}")
    c.e(f"v_lshrrev_b32 v{vt}, 3, v0")
    c.e(f"v_lshl_add_u32 v{vP}, v{vt}, 5, v{vP}")
    c.e("s_barrier")
    def wdma(i, dst, tag):
        c.e(f"s_add_u32 m0, s{sT1}, {dst}")
        c.e(f"s_add_u32 s{sT2}, s{sA}, {1024*i}")
        c.vmem(f"buffer_load_dwordx4 v{vL16}, s[{S_WS}:{S_WS+3}], s{sT2} offen lds", tag)
    for i in range(35): wdma(i, 1024*i, f"d{i//5 + 2}")
    if 'tail' in EXP: c.stamp(2)
    c.e("s_barrier")
    c.stamp(4)
    c.e("s_setprio 3")
    c.e(f"s_mul_i32 s{sT1}, s{sGW}, 5120")
    for i in range(35, 40): wdma(i, S9 + 1024*(i-35), "d9")
    c.e(f"v_add_u32 v{vF9}, s{sT1}, v{vL16}")
    c.e(f"v_add_u32 v{vF9}, {S9}, v{vF9}")
    def oloads():
        for i in range(8):
            q, r_ = divmod(i, 4)
            if r_ == 0 and q: c.e(f"s_add_u32 s{sAS}, s{sB}, 4096")
            sb = sB if q == 0 else sAS
            c.vmem(f"buffer_load_dwordx4 v[{oB[i]}:{oB[i]+3}], v{vL16}, s[{S_WS}:{S_WS+3}], s{sb} offen offset:{r_*1024} sc1", "o")
        for i in range(2):
            c.vmem(f"buffer_load_dwordx2 v[{oB[8+i]}:{oB[8+i]+1}], v{vR}, s[{S_WS}:{S_WS+3}], s{sPB} offen offset:{i*1024} sc1", "o")
            c.vmem(f"buffer_load_dwordx2 v[{oB[8+i]+2}:{oB[8+i]+3}], v{vR}, s[{S_WS}:{S_WS+3}], s{sPB} offen offset:{i*1024+512} sc1", "o")
    def ocheck():
        c.e(f"v_max_u32 v{vt}, v{oB[0]}, v{oB[0]+1}")
        regs = [oB[0]+2, oB[0]+3] + [oB[i]+r for i in range(1, 10) for r in range(4)]
        for k in range(0, len(regs), 2):
            c.e(f"v_max3_u32 v{vt}, v{vt}, v{regs[k]}, v{regs[k+1]}")
        c.e(f"v_cmp_eq_u32 vcc, -1, v{vt}")
        c.e("s_nop 1")
        c.e("s_cmp_eq_u64 vcc, 0")
    c.e(f"s_mov_b32 s{sSPIN}, 0")
    c.e("s_sleep %d" % int(re.search(r"slp=(\d+)", EXP).group(1) if 'slp=' in EXP else 4))
    c.label("K2_POLL")
    oloads()
    c.e("s_waitcnt vmcnt(0)")
    ocheck()
    c.e("s_cbranch_scc1 K2_GOT")
    c.e(f"s_add_u32 s{sSPIN}, s{sSPIN}, 1")
    c.e("s_sleep 2")
    c.e(f"s_cmp_lt_u32 s{sSPIN}, 0x40000")
    c.e("s_cbranch_scc1 K2_POLL")
    c.label("K2_GOT")
    c.vm = []
    c.stamp(5)
    def lreads(step):
        b = step & 1
        for t in range(5):
            if step < 9: c.lds(f"ds_read_b128 v[{fA[b][t]}:{fA[b][t]+3}], v{vF} offset:{((step-2)*5 + t)*1024}", f"r{step}")
            else: c.lds(f"ds_read_b128 v[{fA[b][t]}:{fA[b][t]+3}], v{vF9} offset:{t*1024}", f"r{step}")
    c.e(f"v_and_b32 v{vP}, 31, v0")
    c.e(f"v_mul_u32_u24 v{vP}, {PROW}, v{vP}")
    c.e(f"v_lshrrev_b32 v{vR}, 5, v0")
    c.e(f"v_lshl_add_u32 v{vP}, v{vR}, 4, v{vP}")
    c.e(f"s_mul_i32 s{sT0}, s{sGW}, {PSTR}")
    c.e(f"v_add_u32 v{vP}, s{sT0}, v{vP}")
    mfmas(0, oB[0]); lreads(2)
    mfmas(1, oB[1]); lreads(3)
    for i in range(2, 10):
        c.wait_lg(f"r{i}")
        mfmas(i & 1, oB[i])
        if i + 2 < 10: lreads(i + 2)
        if i == 3: final_prefetch(c, FING)
    if 'tail' in EXP: c.stamp(3)
    c.nop(16)
    for t in range(5):
        for j in range(4):
            c.e(f"ds_write_b128 v{vP}, v[{acc[t]+4*j}:{acc[t]+4*j+3}] offset:{(32*t + 8*j)*4}")
    c.e("s_waitcnt lgkmcnt(0)")
    c.e("s_barrier")
    return a.hi

FIN, FINHI = final_regs(124)
FING = FIN

def gen_k2f():
    c = Code()
    c.e("s_cmp_ge_u32 s2, 256")
    c.e("s_cbranch_scc1 K2_END")
    c.e("s_load_dwordx2 s[4:5], s[0:1], 96")
    c.e("s_load_dwordx2 s[6:7], s[0:1], 0")
    c.e("s_load_dwordx4 s[24:27], s[0:1], 72")
    c.e("v_lshrrev_b32 v1, 6, v0")
    c.e("v_and_b32 v0, 63, v0")
    c.e(f"v_readfirstlane_b32 s{sW}, v1")
    if 'map2' not in EXP:
        c.e(f"s_and_b32 s{sRB}, s2, 31")
        c.e(f"s_lshr_b32 s{sG}, s2, 5")
    else:
        c.e(f"s_and_b32 s{sT0}, s2, 7")
        c.e(f"s_lshr_b32 s{sT1}, s2, 3")
        c.e(f"s_lshr_b32 s{sRB}, s{sT0}, 1")
        c.e(f"s_lshl_b32 s{sRB}, s{sRB}, 3")
        c.e(f"s_and_b32 s{sT2}, s{sT1}, 7")
        c.e(f"s_add_u32 s{sRB}, s{sRB}, s{sT2}")
        c.e(f"s_and_b32 s{sG}, s{sT0}, 1")
        c.e(f"s_lshl_b32 s{sG}, s{sG}, 1")
        c.e(f"s_lshr_b32 s{sT2}, s{sT1}, 4")
        c.e(f"s_add_u32 s{sG}, s{sG}, s{sT2}")
        c.e(f"s_bfe_u32 s{sT2}, s{sT1}, 0x10003")
        c.e(f"s_lshl_b32 s{sT2}, s{sT2}, 2")
        c.e(f"s_add_u32 s{sG}, s{sG}, s{sT2}")
    c.e(f"s_lshr_b32 s{sT0}, s{sG}, 2")
    c.e(f"s_lshl_b32 s{sTO}, s{sRB}, 1")
    c.e(f"s_add_u32 s{sTO}, s{sTO}, s{sT0}")
    c.e(f"s_and_b32 s{sFBK}, s{sG}, 3")
    c.e(f"s_sub_u32 s{sGW}, s{sW}, 8")
    c.e(f"s_cmp_ge_u32 s{sW}, 8")
    c.e("s_cbranch_scc1 K2_GEMM")
    ca = Code(); h1 = gen_attn(ca); c.lines += ca.lines
    c.label("K2_GEMM")
    cg = Code(); h2 = gen_gemm(cg); c.lines += cg.lines
    c.label("K2_FINAL")
    final_epilogue(c, FIN)
    c.label("K2_DONE")
    c.finish(1, sW, S_WS)
    c.label("K2_END")
    c.e("s_endpgm")
    return c.text(), max(h1, h2, FINHI), K2_LDS
```
